```python
import torch

def _softmax(x, axis=-1):
    return torch.softmax(x, dim=axis)
def _gelu(x):
    return torch.nn.functional.gelu(x, approximate="tanh")
def _silu(x):
    return torch.nn.functional.silu(x)
def _sigmoid(x):
    return torch.sigmoid(x)
def _layernorm(x, axis=-1, eps=1e-5):
    m = x.mean(dim=axis, keepdim=True)
    v = x.var(dim=axis, keepdim=True, unbiased=False)
    return (x - m) / torch.sqrt(v + eps)
def _scatter_add(tgt, idx, src, axis=0):
    return tgt.clone().index_add_(axis, idx, src)
def _segment_sum(src, seg, n):
    out = torch.zeros((n,) + src.shape[1:], dtype=src.dtype)
    return out.index_add_(0, seg, src)
def _pad(x, pw):
    flat = tuple(v for pair in reversed(pw) for v in pair)
    return torch.nn.functional.pad(x, flat)

kernel_name = 'concat_heads__compressed_kv_cla__mha_block_cached__decode'

def setup_inputs():

    _w = (lambda a: (lambda t: t.to(torch.bfloat16) if t.is_floating_point() else t)(torch.as_tensor(a)))
    def _A_setup():
        B, H, Sq, Sk, D, M = 4, 32, 1, 4096, 128, 512
        Dc = 4 * D
        return {
            "x": _w((lambda *s: torch.randn(*s, dtype=torch.bfloat16) * 3.2)(B, Sq, M)),
            "c_kv": _w((lambda *s: torch.randn(*s, dtype=torch.bfloat16) * 0.1)(B, Sk, Dc)),
            "w_q": _w((lambda *s: torch.randn(*s, dtype=torch.bfloat16) * 6.4)(M, H, D) * (M ** -0.5)),
            "w_uk": _w((lambda *s: torch.randn(*s, dtype=torch.bfloat16) * 6.4)(Dc, H, D) * (Dc ** -0.5)),
            "w_uv": _w((lambda *s: torch.randn(*s, dtype=torch.bfloat16) * 0.1)(Dc, H, D) * (Dc ** -0.5)),
            "w_o": _w((lambda *s: torch.randn(*s, dtype=torch.bfloat16) * 0.1)(H, D, M) * ((H * D) ** -0.5)),
        }
    _A_in = _A_setup()

    def _B_setup():
        B, Sq, D = 4, 1, 512
        H, Sk, Dh = 32, 4096, 128
        return {
            "x": _w((lambda *s: torch.randn(*s, dtype=torch.bfloat16) * 1.6)(B, Sq, D)),
            "k_cache": _w((lambda *s: torch.randn(*s, dtype=torch.bfloat16) * 1.6)(B, H, Sk, Dh)),
            "v_cache": _w((lambda *s: torch.randn(*s, dtype=torch.bfloat16) * 0.05)(B, H, Sk, Dh)),
            "wq": _w((lambda *s: torch.randn(*s, dtype=torch.bfloat16) * 1.6)(D, H * Dh) * (D ** -0.5)),
            "wo": _w((lambda *s: torch.randn(*s, dtype=torch.bfloat16) * 0.05)(H * Dh, D) * ((H * Dh) ** -0.5)),
        }
    _B_in = _B_setup()

    return {
        "A_x": _A_in["x"],
        "A_c_kv": _A_in["c_kv"],
        "A_w_q": _A_in["w_q"],
        "A_w_uk": _A_in["w_uk"],
        "A_w_uv": _A_in["w_uv"],
        "A_w_o": _A_in["w_o"],
        "B_x": _B_in["x"],
        "B_k_cache": _B_in["k_cache"],
        "B_v_cache": _B_in["v_cache"],
        "B_wq": _B_in["wq"],
        "B_wo": _B_in["wo"],
    }

def reference(A_x, A_c_kv, A_w_q, A_w_uk, A_w_uv, A_w_o, B_x, B_k_cache, B_v_cache, B_wq, B_wo):
    def _A_ref(x, c_kv, w_q, w_uk, w_uv, w_o):
        B, Sq, M = x.shape[0], x.shape[1], x.shape[2]
        Sk = c_kv.shape[1]
        H, D = w_q.shape[1], w_q.shape[2]
        q = torch.einsum("bqm,mhd->bhqd", x, w_q)
        k = torch.einsum("bkc,chd->bhkd", c_kv, w_uk)
        v = torch.einsum("bkc,chd->bhkd", c_kv, w_uv)
        scores = torch.einsum("bhqd,bhkd->bhqk", q, k) * (D ** -0.5)
        off = Sk - Sq
        qi = torch.arange(Sq)[:, None]
        kj = torch.arange(Sk)[None, :]
        cmask = kj <= (qi + off)
        scores = torch.where(cmask[None, None], scores, -1e9)
        p = _softmax(scores, axis=-1)
        ctx = torch.einsum("bhqk,bhkd->bhqd", p, v)
        return torch.einsum("bhqd,hdm->bqm", ctx, w_o)

    def _B_ref(x, k_cache, v_cache, wq, wo):
        B, Sq, D = x.shape
        H, Dh = 32, 128
        q = (lambda x, *d: x.permute(*d))((x @ wq).reshape(B, Sq, H, Dh), 0, 2, 1, 3)
        scores = torch.einsum("bhqd,bhkd->bhqk", q, k_cache) * (Dh ** -0.5)
        p = _softmax(scores, axis=-1)
        o = torch.einsum("bhqk,bhkd->bhqd", p, v_cache)
        return (lambda x, *d: x.permute(*d))(o, 0, 2, 1, 3).reshape(B, Sq, H * Dh) @ wo

    a = _A_ref(A_x, A_c_kv, A_w_q, A_w_uk, A_w_uv, A_w_o)
    b = _B_ref(B_x, B_k_cache, B_v_cache, B_wq, B_wo)
    return torch.concatenate([a, b], axis=-1)
```

```python
import re

REG = re.compile(r"\b([vas])(?:(\d+)|\[(\d+):(\d+)\])")
TRANS = ("v_exp_f32", "v_log_f32", "v_rcp_f32", "v_rsq_f32", "v_sqrt_f32", "v_sin_f32", "v_cos_f32")


def regs_of(op):
    out = set()
    op = op.strip()
    if op.startswith("vcc"):
        return {("s", 106), ("s", 107)}
    if op.startswith("exec"):
        return {("x", 0)}
    if op == "m0":
        return {("m", 0)}
    for m in REG.finditer(op):
        k = m.group(1)
        if m.group(2) is not None:
            out.add((k, int(m.group(2))))
        else:
            out.update((k, i) for i in range(int(m.group(3)), int(m.group(4)) + 1))
    return out


class Ins:
    def __init__(self, text):
        self.text = text
        t = text.split(";")[0].strip()
        self.label = t[:-1] if t.endswith(":") else None
        self.directive = t.startswith(".") or not t
        self.mn = "" if self.label or self.directive else t.split()[0]
        rest = t[len(self.mn):].strip() if self.mn else ""
        ops = [o.strip() for o in re.split(r",(?![^\[]*\])", rest)] if rest else []
        if ops:
            last = ops[-1].split()
            self.mods = " ".join(last[1:])
            ops[-1] = last[0]
        else:
            self.mods = ""
        self.ops = ops
        mn = self.mn
        self.defs, self.uses = set(), set()
        self.mfma = mn.startswith("v_mfma") or mn.startswith("v_smfmac")
        self.valu = mn.startswith("v_") and not self.mfma
        self.vmem = mn.startswith("buffer_") or mn.startswith("global_")
        self.ds = mn.startswith("ds_")
        self.salu = mn.startswith("s_")
        self.dpp = "_dpp" in mn
        self.trans = any(mn.startswith(x) for x in TRANS)
        self.perml = mn.startswith("v_permlane")
        self.rdlane = mn.startswith("v_readlane") or mn.startswith("v_readfirstlane")
        self.ldsdma = self.vmem and re.search(r"\blds\b", self.mods) is not None
        self.states = 1
        self.target = None
        self.srcc = set()
        self.ab = set()
        self.wide_store = set()
        R = [regs_of(o) for o in ops]
        if mn == "s_nop":
            self.states = int(ops[0], 0) + 1
        elif mn.startswith("s_cbranch") or mn == "s_branch":
            self.target = ops[0]
        elif self.mfma:
            self.defs = R[0]
            self.ab = R[1] | R[2]
            self.srcc = R[3] if mn.startswith("v_mfma") else R[0]
            if mn.startswith("v_smfmac"):
                self.ab |= R[3]
            self.uses = self.ab | self.srcc
            self.passes = 8 if "32x32" in mn else 4
        elif self.valu:
            self.defs = set(R[0]) if R else set()
            for r in R[1:]:
                self.uses |= r
            if self.perml:
                self.defs |= R[1]
                self.uses |= R[0]
            if mn.startswith("v_fmac") or mn.startswith("v_dot2c") or self.dpp or mn.startswith("v_writelane"):
                self.uses |= R[0]
            if "_co_" in mn:
                self.defs |= R[1]
        elif self.vmem:
            is_load = "_load" in mn and not self.ldsdma
            ret_atomic = "_atomic" in mn and re.search(r"\bsc0\b", self.mods)
            if is_load:
                self.defs = R[0]
                for r in R[1:]:
                    self.uses |= r
            else:
                for r in R:
                    self.uses |= r
                if ret_atomic:
                    self.defs = R[0]
                if re.search(r"store_dwordx[34]", mn):
                    self.wide_store = R[0] if mn.startswith("buffer_") else R[1]
            if self.ldsdma:
                self.uses.add(("m", 0))
        elif self.ds:
            if mn.startswith("ds_read") or "permute" in mn or "swizzle" in mn:
                self.defs = R[0]
                for r in R[1:]:
                    self.uses |= r
            else:
                for r in R:
                    self.uses |= r
        elif self.salu:
            if R and not mn.startswith("s_cmp") and not mn.startswith("s_waitcnt"):
                self.defs = R[0]
                for r in R[1:]:
                    self.uses |= r
            else:
                for r in R:
                    self.uses |= r
        self.real = bool(self.mn)


def vec(s):
    return {r for r in s if r[0] in "va"}


def sca(s):
    return {r for r in s if r[0] == "s"}


def need(p, c):
    n = 0
    if p.valu:
        pv, ps = vec(p.defs), sca(p.defs)
        if c.mfma and pv & c.uses:
            n = max(n, 2)
        if c.dpp and pv & c.uses:
            n = max(n, 2)
        if c.perml and pv & c.uses:
            n = max(n, 2)
        if c.rdlane and pv & c.uses:
            n = max(n, 1)
        if p.trans and c.valu and pv & c.uses:
            n = max(n, 1)
        if ps & c.uses:
            if c.vmem:
                n = max(n, 5)
            elif c.rdlane or c.mn.startswith("v_writelane"):
                n = max(n, 4)
            elif c.valu or c.mfma:
                n = max(n, 2)
            elif c.salu:
                n = max(n, 1)
        if ("x", 0) in p.defs or p.mn.startswith("v_cmpx"):
            n = max(n, 5)
    if p.mfma:
        big = {4: 8, 8: 12}[p.passes]
        if c.mfma:
            if p.defs & c.ab:
                n = max(n, big)
            if p.defs & c.srcc and not (p.defs == c.srcc and p.passes == c.passes):
                n = max(n, big - 2)
            if p.defs & c.defs and not (p.defs & c.srcc):
                n = max(n, big - 2)
        elif (c.valu or c.vmem or c.ds) and p.defs & (c.uses | c.defs):
            n = max(n, big)
        if c.valu and p.srcc & c.defs:
            n = max(n, {4: 3, 8: 7}[p.passes])
    if p.salu and ("m", 0) in p.defs and c.ldsdma:
        n = max(n, 1)
    if p.wide_store and p.wide_store & c.defs:
        n = max(n, 2)
    return n


WINDOW = 14


class Asm:
    def __init__(self):
        self.ins = []

    def __call__(self, text):
        for line in text.split("\n"):
            line = line.strip()
            if line:
                self._add(Ins(line))

    def _missing(self, hist, c):
        miss, dist = 0, 0
        for p in reversed(hist):
            if not p.real:
                continue
            miss = max(miss, need(p, c) - dist)
            dist += p.states
            if dist >= WINDOW:
                break
        return miss

    def _add(self, c):
        if c.real:
            k = len(self.ins)
            while k > 0 and self.ins[k - 1].mn not in ("s_branch", "s_endpgm", "s_setpc_b64") and len(self.ins) - k < 64:
                k -= 1
            miss = self._missing(self.ins[k:], c)
            if miss > 0:
                self.ins.append(Ins(f"s_nop {miss - 1}"))
        self.ins.append(c)

    def check_edges(self):
        labels = {i.label: n for n, i in enumerate(self.ins) if i.label}
        bad = []
        for n, b in enumerate(self.ins):
            if b.target is None:
                continue
            hist = self.ins[max(0, n - 40): n + 1]
            dist = 0
            for c in self.ins[labels[b.target]:]:
                if not c.real:
                    continue
                m = self._missing(hist, c)
                if m > 0:
                    bad.append((b.text, c.text, m))
                hist = hist + [c]
                dist += c.states
                if dist >= WINDOW or c.mn in ("s_branch", "s_endpgm"):
                    break
        return bad

    def text(self):
        bad = self.check_edges()
        assert not bad, f"wait states short across branches: {bad}"
        out = []
        for i in self.ins:
            out.append(i.text if (i.label or i.directive) else "    " + i.text)
        return "\n".join(out) + "\n"
```

```python
import math
import os
import struct
import sys

sys.path.insert(0, os.path.dirname(os.path.abspath(__file__)))
from asmlib import Asm

NAME = "concat_heads__compressed_kv_cla__mha_block_cached__decode"

DEF = dict(
    chunk=1,
    nwait=15,
    kv="nt",
    wsh="",
    wpr="nt",
    kpre=8,
    wo_it0=1,
    near_it=9,
    stamps=0,
)

WS_QA, WS_PART, WS_PML, WS_YA = 0x0, 0x20000, 0x120000, 0x124000
WS_YB, WS_BML, WS_NEAR, WS_STAMP = 0x170000, 0x230000, 0x232000, 0x300000
WS_SIZE = 0x400000
C_CLR, C_Q, C_P, C_Y = 0, 64, 128, 192

WROW = 1056
L_MISC = 128 * WROW
L_QP, L_MX, L_OA, L_RED, L_CX = L_MISC, L_MISC + 8192, L_MISC + 8448, L_MISC + 9472, L_MISC + 10240
LDS_BYTES = L_MISC + 14336
CROW = 1040
CTILE = 32 * CROW

SCALE = struct.unpack("<I", struct.pack("<f", math.log2(math.e) / math.sqrt(128.0)))[0]
SPIN = 1 << 18

P_AX, P_CKV, P_AWQ, P_AWUK, P_AWUV, P_AWO, P_BX, P_K, P_V, P_BWQ, P_BWO, P_OUT, P_DBG, P_WS = range(36, 64, 2)
DPP_ID = "quad_perm:[0,1,2,3]"


def gen(**kw):
    o = dict(DEF)
    o.update(kw)
    A = Asm()
    chunk, nwait = o["chunk"], o["nwait"]
    uid = [0]

    def vr(b, n=4):
        return f"v[{b}:{b+n-1}]"

    def ar(b, n=4):
        return f"a[{b}:{b+n-1}]"

    def srd(s, ptr, size, add=None):
        if add is None:
            A(f"s_mov_b32 s{s}, s{ptr}\ns_mov_b32 s{s+1}, s{ptr+1}")
        else:
            A(f"s_add_u32 s{s}, s{ptr}, {add}\ns_addc_u32 s{s+1}, s{ptr+1}, 0")
        A(f"s_mov_b32 s{s+2}, {size:#x}\ns_mov_b32 s{s+3}, 0x20000")

    def stamp(k):
        if o["stamps"]:
            A(f"s_memrealtime s[{76+2*k}:{77+2*k}]\ns_waitcnt lgkmcnt(0)")

    def stamps_out():
        if o["stamps"]:
            A("s_lshl_b32 s24, s2, 2\ns_add_u32 s24, s24, s3\ns_lshl_b32 s24, s24, 6")
            A(f"s_add_u32 s24, s24, {WS_STAMP:#x}")
            A("s_mov_b64 exec, 1")
            for k in range(12):
                A(f"v_mov_b32 v1, s{76+2*k}")
                A(f"buffer_store_dword v1, off, s[12:15], s24 offset:{4*k}")
            A("s_getreg_b32 s25, hwreg(HW_REG_XCC_ID, 0, 4)\nv_mov_b32 v1, s25")
            A("buffer_store_dword v1, off, s[12:15], s24 offset:48")

    def signal(cnt):
        uid[0] += 1
        A("s_waitcnt vmcnt(0)\ns_barrier")
        A(f"s_cmp_lg_u32 s3, 0\ns_cbranch_scc1 L_sig{uid[0]}")
        A("s_mov_b64 exec, 1\nv_mov_b32 v1, 1")
        A(f"buffer_atomic_add v1, off, s[16:19], 0 offset:{cnt}")
        A(f"s_mov_b64 exec, -1\nL_sig{uid[0]}:")

    def await_cnt(cnt, val, sleep=16):
        uid[0] += 1
        u = uid[0]
        A(f"s_cmp_lg_u32 s3, 0\ns_cbranch_scc1 L_aw{u}_x")
        A(f"s_mov_b32 s24, {SPIN}")
        A(f"L_aw{u}:")
        A(f"buffer_load_dword v1, off, s[16:19], 0 offset:{cnt} sc1")
        A("s_waitcnt vmcnt(0)\nv_readfirstlane_b32 s25, v1")
        A(f"s_cmp_ge_u32 s25, {val}\ns_cbranch_scc1 L_aw{u}_x")
        A(f"s_sleep {sleep}\ns_sub_u32 s24, s24, 1\ns_cmp_lg_u32 s24, 0\ns_cbranch_scc1 L_aw{u}")
        A(f"L_aw{u}_x:\ns_barrier")

    MASK, SELE, SELO = 20, 24, 28
    WB = 128

    def make_masks(sel=True):
        A("v_and_b32 v3, 1, v0\nv_lshlrev_b32 v3, 4, v3\nv_mov_b32 v4, 0xffff\nv_lshlrev_b32 v4, v3, v4")
        A("v_bfe_u32 v3, v0, 1, 2")
        for i in range(4):
            A(f"v_cmp_eq_u32 vcc, {i}, v3\nv_cndmask_b32 v{MASK+i}, 0, v4, vcc")
        if sel:
            A("v_mov_b32 v3, 0x0c0c0c0c\ns_mov_b32 s24, 0x01000100\ns_mov_b32 s25, 0x03020302")
            for i in range(4):
                A(f"v_bfi_b32 v{SELE+i}, v{MASK+i}, s24, v3\nv_bfi_b32 v{SELO+i}, v{MASK+i}, s25, v3")

    def gemv(xs, accs, wait=None, after=None):
        for j in range(32):
            sel = SELO if j & 1 else SELE
            for p, (x, acc) in enumerate(zip(xs, accs)):
                bb = 8 if p == 0 else 4
                for i in range(4):
                    A(f"v_perm_b32 v{bb+i}, v{x+j//2}, v{x+j//2}, v{sel+i}")
                if p == 0 and wait:
                    wait(j)
                A(f"v_mfma_f32_16x16x32_bf16 {vr(acc)}, {vr(WB+4*j)}, {vr(bb)}, {'0' if j == 0 else vr(acc)}")
            if after:
                after(j)

    def q_reduce(accs, rd, dst, tmp):
        A("v_lshrrev_b32 v3, 4, v0\nv_lshlrev_b32 v3, 7, v3\nv_and_b32 v4, 7, v0\nv_lshl_add_u32 v3, v4, 2, v3")
        A("v_bfe_u32 v4, v0, 3, 1\nv_lshl_add_u32 v3, v4, 9, v3")
        A(f"s_lshl_b32 s24, s3, 11\ns_add_u32 s24, s24, {L_QP}\nv_add_u32 v3, s24, v3")
        for p, acc in enumerate(accs):
            for r in range(4):
                A(f"ds_write_b32 v3, v{acc+r} offset:{p*1024 + r*32}")
        A("s_waitcnt lgkmcnt(0)\ns_barrier")
        for w in range(4):
            A(f"ds_read_b128 {vr(tmp+8*w)}, v{rd} offset:{w*2048}")
            A(f"ds_read_b128 {vr(tmp+8*w+4)}, v{rd} offset:{w*2048+16}")
        for w in range(1, 4):
            A(f"s_waitcnt lgkmcnt({6-2*w})")
            for e in range(8):
                A(f"v_add_f32 v{tmp+e}, v{tmp+e}, v{tmp+8*w+e}")
        for i in range(4):
            A(f"v_cvt_pk_bf16_f32 v{dst+i}, v{tmp+2*i}, v{tmp+2*i+1}")

    def diag_sum(D, y, t):
        src = D + y
        for a in range(4):
            if a != y:
                A(f"v_add_f32_dpp v{t}, v{D+a}, v{src} quad_perm:[{a},{a},{a},{a}] row_mask:0xf bank_mask:0xf")
                src = t

    def quad_masks():
        for y in range(1, 4):
            A(f"s_mov_b32 s{62+2*y}, {0x11111111 << y:#x}\ns_mov_b32 s{63+2*y}, {0x11111111 << y:#x}")

    def wave_reduce(op, v, sdst):
        for c in ("row_ror:8", "row_ror:4", "row_ror:2", "row_ror:1"):
            A(f"{op}_dpp v{v}, v{v}, v{v} {c} row_mask:0xf bank_mask:0xf")
        A(f"{op}_dpp v{v}, v{v}, v{v} row_bcast:15 row_mask:0xa bank_mask:0xf")
        A(f"{op}_dpp v{v}, v{v}, v{v} row_bcast:31 row_mask:0xc bank_mask:0xf")
        A(f"v_readlane_b32 s{sdst}, v{v}, 63")

    def wo_dma(it_s, pol):
        A(f"s_and_b32 s24, s{it_s}, 3\ns_lshl_b32 s24, s24, 1\ns_lshr_b32 s25, s{it_s}, 2\ns_or_b32 s24, s24, s25")
        A("s_lshl_b32 s24, s24, 10\ns_add_u32 s24, s24, s33")
        A(f"s_mul_i32 s25, s{it_s}, {4*WROW}\ns_add_u32 m0, s25, s34")
        for r in range(4):
            A(f"buffer_load_dwordx4 v2, s[8:11], s24 offen {pol} lds")
            if r < 3:
                A(f"s_add_u32 s24, s24, 8192\ns_add_u32 m0, m0, {WROW}")

    def wo_transpose():
        A(f"v_lshrrev_b32 v3, 2, v0\nv_mul_u32_u24 v3, {WROW}, v3\nv_and_b32 v4, 3, v0\nv_lshl_add_u32 v3, v4, 3, v3")
        A(f"s_lshl_b32 s24, s3, 8\nv_add_u32 v3, s24, v3\nv_add_u32 v4, {64*WROW}, v3")
        for T in range(8):
            for i in range(4):
                for z in range(2):
                    A(f"ds_read_b64_tr_b16 {vr(WB+(T*4+i)*4+2*z, 2)}, v{3 if i < 2 else 4} offset:{(32*(i&1)+16*z)*WROW + T*32}")

    def project(aop, dacc, merge):
        for T in range(8):
            D = dacc + 4 * T
            for i in range(4):
                if T == 0:
                    A(f"s_waitcnt lgkmcnt({3-i})")
                A(f"v_mfma_f32_16x16x32_bf16 {vr(D)}, {vr(aop+4*i)}, {vr(WB+(T*4+i)*4)}, {'0' if i == 0 else vr(D)}")
            if T >= 2:
                merge(T - 2, dacc + 4 * (T - 2))
        merge(6, dacc + 24)
        merge(7, dacc + 28)

    A(f"{NAME}_kernel:")
    A("s_load_dwordx16 s[36:51], s[0:1], 0\ns_load_dwordx8 s[52:59], s[0:1], 64\ns_load_dwordx4 s[60:63], s[0:1], 96")
    A("s_cmp_ge_u32 s2, 256\ns_cbranch_scc1 L_end")
    A("v_lshrrev_b32 v1, 6, v0\nv_and_b32 v0, 63, v0\nv_readfirstlane_b32 s3, v1")
    A("v_lshlrev_b32 v2, 4, v0")
    A("s_cmp_lt_u32 s2, 32\ns_cbranch_scc1 L_W")
    A("s_cmp_ge_u32 s2, 224\ns_cbranch_scc1 L_C")

    RING, XR, BQ, SR = 64, 32, 32, 48
    A("s_sub_u32 s24, s2, 32\ns_and_b32 s25, s24, 7\ns_lshr_b32 s24, s24, 3")
    A("s_mul_i32 s26, s24, 43\ns_lshr_b32 s26, s26, 8\ns_mul_i32 s27, s26, 6\ns_sub_u32 s27, s24, s27")
    A("s_lshl_b32 s26, s26, 3\ns_add_u32 s26, s26, s25")
    A("s_cmp_ge_u32 s27, 3\ns_cselect_b32 s28, 1, 0\ns_mul_i32 s29, s28, 3\ns_sub_u32 s29, s27, s29")
    A("s_lshr_b32 s30, s3, 1\ns_lshl_b32 s24, s28, 1\ns_add_u32 s30, s30, s24")
    A("s_and_b32 s31, s3, 1\ns_lshl_b32 s24, s29, 1\ns_add_u32 s31, s31, s24")
    A("s_lshl_b32 s30, s30, 5\ns_add_u32 s30, s30, s26\ns_lshl_b32 s30, s30, 20")
    A("v_lshrrev_b32 v3, 4, v0\nv_and_b32 v4, 15, v0")
    A("v_lshlrev_b32 v5, 18, v3\nv_lshl_add_u32 v5, v4, 4, v5")
    A("v_lshrrev_b32 v6, 3, v4\nv_lshlrev_b32 v6, 10, v6\nv_lshl_add_u32 v6, v3, 6, v6")
    A("v_bfe_u32 v1, v0, 2, 2\nv_lshlrev_b32 v1, 8, v1\nv_lshl_add_u32 v1, v3, 6, v1")
    A("v_and_b32 v4, 3, v0\nv_lshl_add_u32 v1, v4, 4, v1")
    A(f"s_mul_i32 s35, s31, {chunk*1024}\ns_mov_b32 s32, s35")
    A("s_lshl_b32 s24, s28, 11\ns_lshl_b32 s25, s3, 8\ns_add_u32 s24, s24, s25")
    A("s_lshl_b32 s25, s3, 20\ns_lshl_b32 s33, s26, 8\ns_add_u32 s25, s25, s33")
    A("s_waitcnt lgkmcnt(0)")
    stamp(0)
    srd(20, P_BX, 4096)
    srd(8, P_BWQ, 4 << 20)
    srd(4, P_K, 1 << 20, add="s30")

    def sload(i, slot):
        A(f"buffer_load_dwordx4 {vr(RING+4*slot)}, v1, s[4:7], s32 offen offset:{(i % chunk)*1024} {o['kv']}")
        if i % chunk == chunk - 1:
            A(f"s_add_u32 s32, s32, {6*chunk*1024}")

    for i in range(4):
        A(f"buffer_load_dwordx4 {vr(XR+4*i)}, v6, s[20:23], s24 offen offset:{16*i}")
    seq = []
    kp = o["kpre"]
    nk = 0
    for j in range(32):
        while nk < kp and nk * 32 <= j * kp:
            seq.append(("k", nk))
            nk += 1
        seq.append(("w", j))
    seq += [("k", i) for i in range(nk, 16)]
    for kind, i in seq:
        if kind == "k":
            sload(i, i)
        else:
            A(f"buffer_load_dwordx4 {vr(WB+4*i)}, v5, s[8:11], s25 offen {o['wsh']}")
            if i < 31:
                A("s_add_u32 s25, s25, 8192")
    srd(12, P_WS, WS_SIZE)
    srd(16, P_DBG, 256)
    srd(8, P_BWO, 4 << 20)
    make_masks()
    quad_masks()
    A("v_lshrrev_b32 v3, 4, v0\nv_lshlrev_b32 v7, 7, v3\nv_and_b32 v4, 3, v0\nv_lshl_add_u32 v7, v4, 5, v7")
    A(f"s_lshr_b32 s24, s3, 1\ns_lshl_b32 s24, s24, 9\ns_add_u32 s24, s24, {L_QP}\nv_add_u32 v60, s24, v7")
    A("s_lshl_b32 s33, s26, 17\ns_lshl_b32 s24, s3, 15\ns_add_u32 s33, s33, s24")
    A(f"s_mul_i32 s34, s3, {32*WROW}")
    A(f"s_waitcnt vmcnt({len(seq)})")
    gemv([XR], [12], wait=lambda j: A(f"s_waitcnt vmcnt({len(seq) - 1 - seq.index(('w', j))})"))
    q_reduce([12], 60, 8, WB)
    for x in range(16):
        A(f"v_mov_b32 v{BQ+x}, 0")
    for x in range(4):
        for i in range(4):
            A(f"v_mov_b32_dpp v{BQ+4*x+i}, v{8+i} {DPP_ID} row_mask:0xf bank_mask:{1 << x:#x}")
    stamp(1)

    A("s_mov_b32 s27, 0")
    A("L_BK:")
    A("s_cmp_lg_u32 s27, 10\ns_cbranch_scc1 L_BK_a")
    A(f"s_add_u32 s4, s{P_V}, s30\ns_addc_u32 s5, s{P_V+1}, 0\ns_mov_b32 s32, s35\nv_mov_b32 v1, v2")
    A(f"buffer_load_dword v61, off, s[16:19], 0 offset:{C_CLR} sc1")
    A("L_BK_a:")
    A(f"s_sub_u32 s70, s27, {o['wo_it0']}\ns_cmp_ge_u32 s70, 8\ns_cbranch_scc1 L_BK_b")
    wo_dma(70, o["wsh"])
    A("L_BK_b:")
    for k in range(10):
        A(f"v_mov_b32 v{SR+k}, v{SR+k+1}")
    for j in range(16):
        x, y = j & 3, j >> 2
        D = 12 + 4 * (y & 1)
        A(f"s_waitcnt vmcnt({nwait})")
        A(f"v_mfma_f32_16x16x32_bf16 {vr(D)}, {vr(RING+4*j)}, {vr(BQ+4*x)}, {'0' if x == 0 else vr(D)}")
        sload(j, j)
        if x == 3:
            if y == 0:
                diag_sum(D, 0, SR + 10)
            else:
                diag_sum(D, y, 3)
                A(f"v_cndmask_b32 v{SR+10}, v{SR+10}, v3, s[{62+2*y}:{63+2*y}]")
    A("s_add_u32 s27, s27, 1\ns_cmp_lt_u32 s27, 11\ns_cbranch_scc1 L_BK")
    stamp(2)

    lg = int(math.log2(chunk))
    A("v_and_b32 v3, 3, v0\nv_bfe_u32 v4, v0, 2, 2\nv_lshl_add_u32 v3, v3, 2, v4\nv_add_u32 v3, 160, v3")
    A(f"v_lshrrev_b32 v3, {lg}, v3\nv_mul_u32_u24 v3, 6, v3\nv_add_u32 v3, s31, v3")
    A(f"v_mov_b32 v4, 0xff800000\nv_cmp_gt_u32 vcc, {1024 // chunk}, v3\nv_cndmask_b32 v{SR+10}, v4, v{SR+10}, vcc")
    A(f"v_max3_f32 v3, v{SR}, v{SR+1}, v{SR+2}")
    for k in range(3, 11, 2):
        A(f"v_max3_f32 v3, v3, v{SR+k}, v{SR+k+1}")
    wave_reduce("v_max_f32", 3, 24)
    A(f"s_lshl_b32 s25, s3, 2\ns_add_u32 s25, s25, {L_MX}\nv_mov_b32 v4, s25\nv_mov_b32 v3, s24")
    A("ds_write_b32 v4, v3\nv_xor_b32 v4, 4, v4")
    A("v_readfirstlane_b32 s25, v61")
    A("s_cmp_ge_u32 s25, 64\ns_cbranch_scc1 L_B_clr")
    A(f"s_mov_b32 s24, {SPIN}")
    A("L_B_clrw:")
    A(f"buffer_load_dword v61, off, s[16:19], 0 offset:{C_CLR} sc1")
    A("s_waitcnt vmcnt(0)\nv_readfirstlane_b32 s25, v61")
    A("s_cmp_ge_u32 s25, 64\ns_cbranch_scc1 L_B_clr")
    A("s_sleep 16\ns_sub_u32 s24, s24, 1\ns_cmp_lg_u32 s24, 0\ns_cbranch_scc1 L_B_clrw")
    A("L_B_clr:")
    A("s_waitcnt lgkmcnt(0)\ns_barrier")
    A("ds_read_b32 v5, v4")
    A(f"s_mov_b32 s71, {SCALE:#x}")
    A("s_waitcnt lgkmcnt(0)\nv_max_f32 v5, v3, v5\nv_mul_f32 v6, s71, v5")
    wo_transpose()
    for k in range(11):
        A(f"v_fma_f32 v{SR+k}, v{SR+k}, s71, -v6")
    for k in range(11):
        A(f"v_exp_f32 v{SR+k}, v{SR+k}")
    A(f"v_add_f32 v7, v{SR}, v{SR+1}")
    for k in range(2, 11):
        A(f"v_add_f32 v7, v7, v{SR+k}")
    for k in range(11):
        A(f"v_cvt_pk_bf16_f32 v{SR+k}, v{SR+k}, v{SR+k}")
    wave_reduce("v_add_f32", 7, 24)
    A("s_lshl_b32 s72, s28, 5\ns_add_u32 s72, s72, s26\ns_mul_i32 s72, s72, 3\ns_add_u32 s72, s72, s29")
    A("s_lshl_b32 s25, s72, 2\ns_add_u32 s73, s25, s3")
    A(f"s_lshl_b32 s25, s73, 3\ns_add_u32 s25, s25, {WS_BML:#x}")
    A("v_mov_b32 v7, s24\ns_mov_b64 exec, 1")
    A("buffer_store_dwordx2 v[6:7], off, s[12:15], s25 sc1")
    A("s_mov_b64 exec, -1")
    A(f"s_lshl_b32 s73, s73, 10\ns_add_u32 s73, s73, {WS_YB:#x}")
    A(f"s_lshl_b32 s72, s72, 2\ns_add_u32 s72, s72, {WS_NEAR:#x}")
    A("v_lshrrev_b32 v3, 4, v0\nv_lshlrev_b32 v60, 6, v3\nv_and_b32 v4, 7, v0\nv_lshl_add_u32 v60, v4, 3, v60")
    A(f"s_lshl_b32 s24, s3, 8\ns_add_u32 s24, s24, {L_OA}\nv_add_u32 v60, s24, v60")
    A(f"v_and_b32 v4, 3, v0\nv_lshlrev_b32 v61, 8, v4\nv_lshl_add_u32 v61, v3, 4, v61\nv_add_u32 v61, {L_OA}, v61")
    for i in range(4):
        A(f"v_mov_b32 v{12+i}, 0")
    A("v_mov_b32 v62, 1")
    stamp(3)

    nlast = -(-(1024 // chunk) // 6) * chunk - 160
    A("s_mov_b32 s27, 0")
    A("L_BV:")
    A(f"s_cmp_lg_u32 s27, {o['near_it']}\ns_cbranch_scc1 L_BV_a")
    A("s_cmp_lg_u32 s3, 0\ns_cbranch_scc1 L_BV_a")
    A("s_mov_b64 exec, 1\nbuffer_store_dword v62, off, s[12:15], s72 sc1\ns_mov_b64 exec, -1")
    A("L_BV_a:")
    for j in range(16):
        x, y = j & 3, j >> 2
        if j == nlast:
            A("s_cmp_eq_u32 s27, 10\ns_cbranch_scc1 L_BT")
        for i in range(4):
            A(f"v_and_b32_dpp v{8+i}, v{SR}, v{MASK+i} row_newbcast:{4*x+y} row_mask:0xf bank_mask:0xf")
        A(f"s_waitcnt vmcnt({nwait})")
        A(f"v_mfma_f32_16x16x32_bf16 v[12:15], {vr(RING+4*j)}, v[8:11], v[12:15]")
        sload(j, j)
    for k in range(10):
        A(f"v_mov_b32 v{SR+k}, v{SR+k+1}")
    A("s_add_u32 s27, s27, 1\ns_branch L_BV")

    A("L_BT:")
    A("s_nop 4")
    stamp(4)
    A("v_cvt_pk_bf16_f32 v4, v12, v13\nv_cvt_pk_bf16_f32 v5, v14, v15")
    A("ds_write_b64 v60, v[4:5]\ns_waitcnt lgkmcnt(0)\ns_barrier")
    for i in range(4):
        A(f"ds_read_b128 {vr(8+4*i)}, v61 offset:{64*i}")

    def merge_b(T, D):
        A(f"v_add_f32_dpp v{4+(T>>2)}, v{D}, v{D+1} {DPP_ID} row_mask:{1 << (T & 3):#x} bank_mask:0xf")
        A(f"v_add_f32_dpp v{6+(T>>2)}, v{D+2}, v{D+3} {DPP_ID} row_mask:{1 << (T & 3):#x} bank_mask:0xf")
    project(8, 24, merge_b)
    A("buffer_store_dwordx4 v[4:7], v2, s[12:15], s73 offen sc1")
    stamp(5)
    stamps_out()
    A("s_endpgm")

    def r_setup():
        A("s_lshr_b32 s24, s74, 5\ns_lshl_b32 s24, s24, 5\ns_lshl_b32 s25, s3, 3\ns_add_u32 s24, s24, s25")
        A("v_lshrrev_b32 v3, 3, v0\nv_add_u32 v17, s24, v3")
        A("v_mul_u32_u24 v16, 0x3000, v17\nv_and_b32 v3, 7, v0\nv_lshl_add_u32 v16, v3, 4, v16")
        A(f"s_and_b32 s24, s74, 31\ns_lshl_b32 s24, s24, 7\ns_add_u32 s24, s24, {WS_YB:#x}\nv_add_u32 v16, s24, v16")
        for i in range(4):
            A(f"v_mov_b32 v{8+i}, -1")
        for t in range(3):
            A(f"s_mov_b32 s24, {t*4096}\nbuffer_store_dwordx4 v[8:11], v16, s[12:15], s24 offen sc1")
        A("s_lshl_b32 s24, s74, 2\ns_add_u32 s24, s24, s3\ns_cmp_ge_u32 s24, 9")
        uid[0] += 1
        A(f"s_cbranch_scc1 L_rs{uid[0]}")
        A(f"s_lshl_b32 s24, s24, 10\ns_add_u32 s24, s24, {WS_BML:#x}")
        A("buffer_store_dwordx4 v[8:11], v2, s[12:15], s24 offen sc1")
        A(f"L_rs{uid[0]}:")

    def clr_signal():
        uid[0] += 1
        A(f"s_cmp_lg_u32 s3, 0\ns_cbranch_scc1 L_cs{uid[0]}")
        A("s_mov_b64 exec, 1\nv_mov_b32 v3, 1")
        A(f"buffer_atomic_add v3, off, s[16:19], 0 offset:{C_CLR}")
        A(f"s_mov_b64 exec, -1\nL_cs{uid[0]}:")

    XA, XB = 32, 48
    A("L_W:")
    A("s_mov_b32 s26, s2\ns_mov_b32 s74, s2")
    A("v_lshrrev_b32 v3, 4, v0\nv_and_b32 v4, 15, v0")
    A("v_lshlrev_b32 v18, 18, v3\nv_lshl_add_u32 v18, v4, 4, v18")
    A("v_lshrrev_b32 v6, 3, v4\nv_lshlrev_b32 v6, 10, v6\nv_lshl_add_u32 v19, v3, 6, v6")
    A("v_bfe_u32 v1, v0, 2, 2\nv_lshlrev_b32 v64, 18, v1\nv_lshl_add_u32 v64, v3, 6, v64")
    A("v_and_b32 v4, 3, v0\nv_lshl_add_u32 v64, v4, 4, v64")
    A("v_lshlrev_b32 v65, 9, v1\nv_lshl_add_u32 v65, v3, 7, v65\nv_lshl_add_u32 v65, v4, 5, v65")
    A(f"v_add_u32 v65, {L_QP}, v65")
    A("v_lshlrev_b32 v66, 15, v1\nv_lshl_add_u32 v66, v3, 6, v66\nv_lshl_add_u32 v66, v4, 4, v66")
    A("s_lshl_b32 s35, s3, 20\ns_lshl_b32 s24, s26, 8\ns_add_u32 s35, s35, s24")
    A("s_waitcnt lgkmcnt(0)")
    stamp(0)
    srd(20, P_AX, 4096)
    srd(4, P_AWQ, 4 << 20)
    srd(12, P_WS, WS_SIZE)
    srd(16, P_DBG, 256)
    A("s_lshl_b32 s24, s3, 8")
    for p in range(2):
        for i in range(4):
            A(f"buffer_load_dwordx4 {vr(XA+16*p+4*i)}, v19, s[20:23], s24 offen offset:{2048*p+16*i}")
    A("s_mov_b32 s32, s35")

    def wload(j, voff):
        A(f"buffer_load_dwordx4 {vr(WB+4*j)}, v{voff}, s[4:7], s32 offen {o['wpr']}")
        A("s_add_u32 s32, s32, 8192")
    for j in range(32):
        wload(j, 18)
    r_setup()
    srd(4, P_AWUK, 4 << 20)
    A("s_mov_b32 s32, s35")
    make_masks()
    quad_masks()
    A("s_waitcnt vmcnt(32)")
    gemv([XA, XB], [12, 68], wait=lambda j: A("s_waitcnt vmcnt(31)"), after=lambda j: wload(j, 64))
    q_reduce([12, 68], 65, 8, 72)
    stamp(1)
    TQ = 72
    for j in range(32):
        y = j >> 3
        D = 12 if j & 1 else 68
        A(f"s_waitcnt vmcnt({31-j})")
        A(f"v_mfma_f32_16x16x32_bf16 {vr(D)}, {vr(WB+4*j)}, v[8:11], 0")
        if y == 0:
            diag_sum(D, 0, TQ + j)
        else:
            diag_sum(D, y, 3)
            A(f"v_cndmask_b32 v{TQ+(j&7)}, v{TQ+(j&7)}, v3, s[{62+2*y}:{63+2*y}]")
    A(f"s_mov_b32 s71, {SCALE:#x}")
    for e in range(8):
        A(f"v_mul_f32 v{TQ+e}, s71, v{TQ+e}")
    for i in range(4):
        A(f"v_cvt_pk_bf16_f32 v{4+i}, v{TQ+2*i}, v{TQ+2*i+1}")
    A(f"s_lshl_b32 s24, s26, 10\ns_lshl_b32 s25, s3, 8\ns_add_u32 s24, s24, s25\ns_add_u32 s24, s24, {WS_QA:#x}")
    A("buffer_store_dwordx4 v[4:7], v66, s[12:15], s24 offen sc1")
    signal(C_Q)
    clr_signal()
    stamp(2)
    srd(4, P_AWUV, 4 << 20)
    srd(8, P_AWO, 4 << 20)
    A("s_mov_b32 s32, s35")
    for j in range(32):
        wload(j, 18)
    A("s_lshl_b32 s33, s26, 17\ns_lshl_b32 s24, s3, 15\ns_add_u32 s33, s33, s24")
    A(f"s_mul_i32 s34, s3, {32*WROW}")
    A("s_mov_b32 s70, 0\nL_W_wo:")
    A("s_waitcnt vmcnt(24)")
    wo_dma(70, o["wpr"])
    A("s_add_u32 s70, s70, 1\ns_cmp_lt_u32 s70, 8\ns_cbranch_scc1 L_W_wo")
    A("s_waitcnt vmcnt(0)")
    stamp(3)
    await_cnt(C_P, 32)
    stamp(4)
    PR = 72
    A(f"s_lshl_b32 s24, s26, 2\ns_add_u32 s24, s24, s3\ns_lshl_b32 s25, s24, 6\ns_add_u32 s25, s25, {WS_PML:#x}")
    A("v_and_b32 v3, 7, v0\nv_lshlrev_b32 v3, 3, v3")
    A("buffer_load_dwordx2 v[4:5], v3, s[12:15], s25 offen sc1")
    A(f"s_lshl_b32 s24, s24, 13\ns_add_u32 s24, s24, {WS_PART:#x}")
    for s in range(8):
        A(f"buffer_load_dwordx4 {vr(PR+4*s)}, v2, s[12:15], s24 offen offset:{(s & 3)*1024} sc1")
        if s == 3:
            A("s_add_u32 s24, s24, 4096")
    A("s_waitcnt vmcnt(8)")
    A("v_mov_b32 v6, v4")
    for c in ("row_ror:4", "row_ror:2", "row_ror:1"):
        A(f"v_max_f32_dpp v6, v6, v6 {c} row_mask:0xf bank_mask:0xf")
    A("v_sub_f32 v4, v4, v6\nv_exp_f32 v4, v4\nv_mul_f32 v5, v4, v5")
    for c in ("row_ror:4", "row_ror:2", "row_ror:1"):
        A(f"v_add_f32_dpp v5, v5, v5 {c} row_mask:0xf bank_mask:0xf")
    A("v_rcp_f32 v5, v5\nv_mul_f32 v4, v4, v5")
    CA = 104
    for s in range(8):
        A(f"v_readlane_b32 s24, v4, {s}")
        A(f"s_waitcnt vmcnt({7-s})")
        for i in range(4):
            A(f"v_lshlrev_b32 v5, 16, v{PR+4*s+i}\nv_and_b32 v6, 0xffff0000, v{PR+4*s+i}")
            if s == 0:
                A(f"v_mul_f32 v{CA+2*i}, s24, v5\nv_mul_f32 v{CA+2*i+1}, s24, v6")
            else:
                A(f"v_fmac_f32 v{CA+2*i}, s24, v5\nv_fmac_f32 v{CA+2*i+1}, s24, v6")
    for i in range(4):
        A(f"v_cvt_pk_bf16_f32 v{4+i}, v{CA+2*i}, v{CA+2*i+1}")
    A(f"s_lshl_b32 s24, s3, 10\ns_add_u32 s24, s24, {L_CX}\nv_add_u32 v3, s24, v2")
    A("ds_write_b128 v3, v[4:7]")
    A(f"s_lshl_b32 s24, s3, 8\ns_add_u32 s24, s24, {L_CX}\nv_add_u32 v3, s24, v19")
    A("s_waitcnt lgkmcnt(0)\ns_barrier")
    for p in range(2):
        for i in range(4):
            A(f"ds_read_b128 {vr(XA+16*p+4*i)}, v3 offset:{2048*p+16*i}")
    A("s_waitcnt lgkmcnt(0)")
    gemv([XA, XB], [12, 68])
    A("v_lshrrev_b32 v3, 4, v0\nv_lshlrev_b32 v3, 7, v3\nv_and_b32 v4, 7, v0\nv_lshl_add_u32 v3, v4, 4, v3")
    A("v_bfe_u32 v4, v0, 3, 1\nv_lshl_add_u32 v3, v4, 9, v3")
    A(f"s_lshl_b32 s24, s3, 11\ns_add_u32 s24, s24, {L_QP}\nv_add_u32 v3, s24, v3")
    A("ds_write_b128 v3, v[12:15]\nds_write_b128 v3, v[68:71] offset:1024")
    A("s_waitcnt lgkmcnt(0)\ns_barrier")
    A(f"v_and_b32 v5, 31, v0\ns_lshl_b32 s24, s3, 9\ns_add_u32 s24, s24, {L_QP}\nv_lshl_add_u32 v3, v5, 4, s24")
    for w in range(4):
        A(f"ds_read_b128 {vr(72+4*w)}, v3 offset:{w*2048}")
    A(f"s_lshl_b32 s24, s3, 8\ns_add_u32 s24, s24, {L_OA}\nv_lshl_add_u32 v5, v5, 3, s24")
    A("s_waitcnt lgkmcnt(0)")
    for w in range(1, 4):
        for r in range(4):
            A(f"v_add_f32 v{72+r}, v{72+r}, v{72+4*w+r}")
    A("v_cvt_pk_bf16_f32 v6, v72, v73\nv_cvt_pk_bf16_f32 v7, v74, v75")
    A("ds_write_b64 v5, v[6:7]")
    wo_transpose()
    A(f"v_lshrrev_b32 v3, 4, v0\nv_and_b32 v4, 3, v0\nv_lshlrev_b32 v5, 8, v4\nv_lshl_add_u32 v5, v3, 4, v5\nv_add_u32 v5, {L_OA}, v5")
    A("s_waitcnt lgkmcnt(0)\ns_barrier")
    for i in range(4):
        A(f"ds_read_b128 {vr(XA+4*i)}, v5 offset:{64*i}")

    def merge_w(T, D):
        for r in range(4):
            A(f"v_mov_b32_dpp v{4+4*(T>>2)+r}, v{D+r} {DPP_ID} row_mask:{1 << (T & 3):#x} bank_mask:0xf")
    project(XA, 72, merge_w)
    A(f"s_lshl_b32 s24, s26, 13\ns_lshl_b32 s25, s3, 11\ns_add_u32 s24, s24, s25\ns_add_u32 s24, s24, {WS_YA:#x}")
    A("buffer_store_dwordx4 v[4:7], v2, s[12:15], s24 offen sc1")
    A("buffer_store_dwordx4 v[8:11], v2, s[12:15], s24 offen offset:1024 sc1")
    signal(C_Y)
    stamp(5)
    A("s_branch L_R")

    ST, SS, PP, TR, ACC = 32, 64, 80, 96, 128
    A("L_C:")
    A("s_sub_u32 s26, s2, 224\ns_add_u32 s74, s26, 32")
    A("s_lshl_b32 s30, s26, 19")
    A("s_waitcnt lgkmcnt(0)")
    stamp(0)
    srd(4, P_CKV, 1 << 19, add="s30")
    srd(12, P_WS, WS_SIZE)
    srd(16, P_DBG, 256)
    A(f"s_lshl_b32 s32, s3, 13\ns_mul_i32 s34, s3, {8*CROW}")

    def c_dma():
        A("s_add_u32 m0, s33, s34")
        for r in range(8):
            A(f"buffer_load_dwordx4 v2, s[4:7], s32 offen {o['wpr']} lds")
            if r < 7:
                A(f"s_add_u32 s32, s32, 1024\ns_add_u32 m0, m0, {CROW}")
        A(f"s_add_u32 s32, s32, {32768 - 7*1024}")
    r_setup()
    for t in range(3):
        A(f"s_mov_b32 s33, {t*CTILE}")
        c_dma()
    A("v_and_b32 v3, 31, v0\nv_lshrrev_b32 v4, 5, v0")
    A(f"v_mul_u32_u24 v18, {CROW}, v3\nv_lshl_add_u32 v18, v4, 4, v18\nv_add_u32 v18, {3*CTILE}, v18")
    A("v_and_b32 v5, 16, v0\nv_and_b32 v6, 3, v0\nv_lshl_add_u32 v5, v6, 2, v5\nv_bfe_u32 v7, v0, 2, 2\nv_add_u32 v5, v5, v7")
    A(f"v_mul_u32_u24 v19, {CROW}, v5\nv_lshl_add_u32 v19, v4, 4, v19")
    A(f"v_lshl_add_u32 v5, v7, 2, v4\nv_mul_u32_u24 v20, {CROW}, v5\nv_lshl_add_u32 v20, v6, 3, v20")
    A("v_bfe_u32 v5, v0, 4, 1\nv_lshl_add_u32 v20, v5, 5, v20\ns_lshl_b32 s24, s3, 8\nv_add_u32 v20, s24, v20")
    await_cnt(C_Q, 32)
    stamp(1)
    A(f"s_lshr_b32 s28, s26, 3\ns_lshl_b32 s24, s28, 15\ns_lshl_b32 s25, s3, 13\ns_add_u32 s24, s24, s25\ns_add_u32 s24, s24, {WS_QA:#x}")
    for r in range(8):
        A(f"buffer_load_dwordx4 {vr(ST+4*r)}, v2, s[12:15], s24 offen offset:{(r & 3)*1024} sc1")
        if r == 3:
            A("s_add_u32 s24, s24, 4096")
    A(f"s_add_u32 s24, s34, {3*CTILE}\nv_add_u32 v3, s24, v2")
    for r in range(8):
        A(f"s_waitcnt vmcnt({7-r})\nds_write_b128 v3, {vr(ST+4*r)} offset:{r*CROW}")
    A("s_waitcnt lgkmcnt(0)\ns_barrier")
    clr_signal()
    for k in range(32):
        A(f"ds_read_b128 {ar(4*k)}, v18 offset:{32*k}")
    for r in range(64):
        A(f"v_mov_b32 v{ACC+r}, 0")
    A("v_mov_b32 v22, 0xff800000\nv_mov_b32 v23, 0")
    A(f"s_mov_b32 s27, 0\ns_mov_b32 s33, {3*CTILE}\ns_mov_b32 s35, 0")
    A("s_waitcnt lgkmcnt(0)")
    stamp(2)
    A("L_CT:")
    A("s_waitcnt vmcnt(16)\ns_barrier")
    c_dma()
    A("v_add_u32 v24, s35, v19\nv_add_u32 v25, s35, v20")
    A(f"s_mov_b32 s33, s35\ns_add_u32 s35, s35, {CTILE}\ns_cmp_eq_u32 s35, {4*CTILE}\ns_cselect_b32 s35, 0, s35")
    reads = [("q", k) for k in range(32)] + [("t", k) for k in range(16)]

    def c_read(n):
        kind, k = reads[n]
        if kind == "q":
            A(f"ds_read_b128 {vr(ST+4*(k & 7))}, v24 offset:{32*k}")
        else:
            ct, ks, z = k >> 2, (k >> 1) & 1, k & 1
            A(f"ds_read_b64_tr_b16 {vr(TR+2*k, 2)}, v25 offset:{(16*ks+2*z)*CROW + 64*ct}")
    for n in range(7):
        c_read(n)
    issued = 7
    for k in range(32):
        A(f"s_waitcnt lgkmcnt({issued-k-1})")
        A(f"v_mfma_f32_32x32x16_bf16 {vr(SS,16)}, {vr(ST+4*(k & 7))}, {ar(4*k)}, {'0' if k == 0 else vr(SS,16)}")
        for _ in range(1 if issued < 32 else 2):
            c_read(issued)
            issued += 1
    while issued < len(reads):
        c_read(issued)
        issued += 1
    A(f"v_max3_f32 v3, v{SS}, v{SS+1}, v22")
    for r in range(2, 16, 2):
        A(f"v_max3_f32 v3, v3, v{SS+r}, v{SS+r+1}")
    A("v_mov_b32 v4, v3\nv_permlane32_swap_b32 v3, v4\nv_max_f32 v3, v3, v4")
    A("v_sub_f32 v4, v22, v3\nv_exp_f32 v4, v4\nv_mov_b32 v22, v3")
    for r in range(16):
        A(f"v_sub_f32 v{SS+r}, v{SS+r}, v3")
    for r in range(16):
        A(f"v_exp_f32 v{SS+r}, v{SS+r}")
    for r in range(0, 64, 2):
        A(f"v_pk_mul_f32 {vr(ACC+r,2)}, {vr(ACC+r,2)}, v[4:5] op_sel_hi:[1,0]")
    A(f"v_fma_f32 v23, v23, v4, v{SS}")
    for r in range(1, 16):
        A(f"v_add_f32 v23, v23, v{SS+r}")
    for i in range(8):
        A(f"v_cvt_pk_bf16_f32 v{PP+i}, v{SS+2*i}, v{SS+2*i+1}")
    A("s_waitcnt lgkmcnt(0)")
    for ks in range(2):
        for ct in range(4):
            A(f"v_mfma_f32_32x32x16_bf16 {vr(ACC+16*ct,16)}, {vr(TR+8*ct+4*ks)}, {vr(PP+4*ks)}, {vr(ACC+16*ct,16)}")
    A("s_add_u32 s27, s27, 1\ns_cmp_lt_u32 s27, 16\ns_cbranch_scc1 L_CT")
    stamp(3)
    A("s_waitcnt vmcnt(0)\ns_barrier")
    A("v_mov_b32 v4, v23\nv_permlane32_swap_b32 v23, v4\nv_add_f32 v23, v23, v4")
    A("v_and_b32 v3, 31, v0\nv_lshlrev_b32 v5, 8, v3")
    A(f"s_lshl_b32 s24, s26, 3\ns_add_u32 s24, s24, {WS_PML:#x}")
    A("s_cmp_lg_u32 s3, 0\ns_cbranch_scc1 L_C_ml")
    A("buffer_store_dwordx2 v[22:23], v5, s[12:15], s24 offen sc1")
    A("L_C_ml:")
    TROW = 272
    A(f"v_lshrrev_b32 v4, 5, v0\nv_mul_u32_u24 v3, {TROW}, v3\nv_lshl_add_u32 v3, v4, 3, v3")
    A(f"s_mul_i32 s24, s3, {32*TROW}\nv_add_u32 v3, s24, v3")
    for ct in range(4):
        for q in range(4):
            r = ACC + 16 * ct + 4 * q
            d = ST + 2 * ((ct * 4 + q) & 7)
            A(f"v_cvt_pk_bf16_f32 v{d}, v{r}, v{r+1}\nv_cvt_pk_bf16_f32 v{d+1}, v{r+2}, v{r+3}")
            A(f"ds_write_b64 v3, {vr(d,2)} offset:{64*ct+16*q}")
    A(f"v_lshrrev_b32 v4, 4, v0\nv_and_b32 v5, 15, v0\nv_mul_u32_u24 v3, {TROW}, v4\nv_lshl_add_u32 v3, v5, 4, v3\nv_add_u32 v3, s24, v3")
    A("v_lshlrev_b32 v4, 15, v4\nv_lshl_add_u32 v4, v5, 4, v4")
    A("s_waitcnt lgkmcnt(0)")
    for k in range(8):
        A(f"ds_read_b128 {vr(SS+4*k)}, v3 offset:{4*k*TROW}")
    A(f"s_lshl_b32 s24, s26, 10\ns_lshl_b32 s25, s3, 8\ns_add_u32 s24, s24, s25\ns_add_u32 s24, s24, {WS_PART:#x}")
    for k in range(8):
        A(f"s_waitcnt lgkmcnt({7-k})")
        A(f"buffer_store_dwordx4 {vr(SS+4*k)}, v4, s[12:15], s24 offen sc1")
        A("s_add_u32 s24, s24, 0x20000")
    signal(C_P)
    stamp(4)

    def final_reduce(vout):
        A("v_permlane32_swap_b32 v4, v6\nv_permlane32_swap_b32 v5, v7")
        A("v_add_f32 v4, v4, v6\nv_add_f32 v5, v5, v7")
        A("v_permlane16_swap_b32 v4, v5\nv_add_f32 v4, v4, v5")
        A("v_add_f32_dpp v4, v4, v4 row_ror:8 row_mask:0xf bank_mask:0xf")
        A("ds_write_b32 v26, v4\ns_waitcnt lgkmcnt(0)\ns_barrier")
        uid[0] += 1
        A(f"s_cmp_lg_u32 s3, 0\ns_cbranch_scc1 L_fr{uid[0]}")
        A("ds_read_b128 v[4:7], v27\ns_waitcnt lgkmcnt(0)")
        A("v_add_f32 v4, v4, v5\nv_add_f32 v6, v6, v7\nv_add_f32 v4, v4, v6\nv_cvt_pk_bf16_f32 v4, v4, v4")
        A(f"buffer_store_short v4, v{vout}, s[20:23], 0 offen")
        A(f"L_fr{uid[0]}:")

    A("L_R:")
    srd(20, P_OUT, 8192)
    A("v_lshrrev_b32 v3, 4, v0\nv_and_b32 v4, 7, v0\nv_lshl_add_u32 v5, v3, 3, v4")
    A(f"v_lshlrev_b32 v27, 4, v5\nv_add_u32 v27, {L_RED}, v27\ns_lshl_b32 s24, s3, 2\nv_add_u32 v26, s24, v27")
    A("v_lshlrev_b32 v28, 11, v3\nv_lshl_add_u32 v28, v4, 1, v28\ns_lshl_b32 s24, s74, 4\nv_add_u32 v28, s24, v28")
    A("v_lshrrev_b32 v5, 1, v3\nv_lshlrev_b32 v29, 11, v5\nv_and_b32 v5, 1, v3\nv_lshl_add_u32 v29, v5, 7, v29\nv_lshl_add_u32 v29, v4, 1, v29")
    A("s_lshr_b32 s28, s74, 5\ns_lshl_b32 s24, s28, 12\ns_bfe_u32 s25, s74, 0x20003\ns_lshl_b32 s25, s25, 8\ns_add_u32 s24, s24, s25")
    A("s_and_b32 s25, s74, 7\ns_lshl_b32 s25, s25, 4\ns_add_u32 s24, s24, s25\ns_add_u32 s24, s24, 1024\nv_add_u32 v29, s24, v29")
    A("v_and_b32 v5, 31, v17\nv_lshlrev_b32 v5, 13, v5\nv_lshl_add_u32 v30, v4, 4, v5")
    await_cnt(C_Y, 32)
    stamp(6)
    A(f"s_lshl_b32 s24, s74, 7\ns_add_u32 s24, s24, {WS_YA:#x}")
    A("buffer_load_dwordx4 v[4:7], v30, s[12:15], s24 offen sc1\ns_waitcnt vmcnt(0)")
    final_reduce(28)
    stamp(7)

    ML, WT, YD = 32, 56, 64
    A(f"v_mul_u32_u24 v31, 96, v17\ns_mov_b32 s29, {WS_BML:#x}\ns_mov_b32 s24, {SPIN}")
    A("L_R_ml:")
    for k in range(6):
        A(f"buffer_load_dwordx4 {vr(ML+4*k)}, v31, s[12:15], s29 offen offset:{16*k} sc1")
    A("s_waitcnt vmcnt(0)")
    A(f"v_max3_u32 v3, v{ML}, v{ML+1}, v{ML+2}")
    for k in range(3, 23, 2):
        A(f"v_max3_u32 v3, v3, v{ML+k}, v{ML+k+1}")
    A(f"v_max_u32 v3, v3, v{ML+23}")
    A("v_cmp_eq_u32 vcc, -1, v3\ns_nop 4\ns_cbranch_vccz L_R_mlx")
    A("s_sleep 16\ns_sub_u32 s24, s24, 1\ns_cmp_lg_u32 s24, 0\ns_cbranch_scc1 L_R_ml")
    A("L_R_mlx:")
    for b in range(2):
        m = [ML + 8 * t + 4 * b for t in range(3)]
        A(f"v_max3_f32 v3, v{m[0]}, v{m[1]}, v{m[2]}")
        for t in range(3):
            A(f"v_sub_f32 v{WT+2*t+b}, v{m[t]}, v3\nv_exp_f32 v{WT+2*t+b}, v{WT+2*t+b}")
            A(f"v_add_f32 v{m[t]+1}, v{m[t]+1}, v{m[t]+3}")
        A(f"v_mul_f32 v4, v{WT+b}, v{m[0]+1}\nv_fmac_f32 v4, v{WT+2+b}, v{m[1]+1}\nv_fmac_f32 v4, v{WT+4+b}, v{m[2]+1}")
        A("v_rcp_f32 v4, v4")
        for t in range(3):
            A(f"v_mul_f32 v{WT+2*t+b}, v{WT+2*t+b}, v4")
    stamp(8)
    A("s_cmp_lg_u32 s3, 0\ns_cbranch_scc1 L_R_nx")
    A(f"s_mul_i32 s29, s28, 384\ns_add_u32 s29, s29, {WS_NEAR:#x}\ns_mov_b32 s24, {SPIN}")
    A("v_min_u32 v3, 23, v0\nv_lshlrev_b32 v3, 4, v3")
    A("L_R_n:")
    A("buffer_load_dwordx4 v[4:7], v3, s[12:15], s29 offen sc1\ns_waitcnt vmcnt(0)")
    A("v_max3_u32 v4, v4, v5, v6\nv_max_u32 v4, v4, v7")
    A("v_cmp_eq_u32 vcc, -1, v4\ns_nop 4\ns_cbranch_vccz L_R_nx")
    A("s_sleep 8\ns_sub_u32 s24, s24, 1\ns_cmp_lg_u32 s24, 0\ns_cbranch_scc1 L_R_n")
    A("L_R_nx:")
    A("s_barrier")
    stamp(9)
    A(f"s_mov_b32 s24, {SPIN}\ns_mov_b32 s29, 4096\ns_mov_b32 s30, 8192")
    A("L_R_y:")
    for t, so in enumerate(("0", "s29", "s30")):
        A(f"buffer_load_dwordx4 {vr(YD+4*t)}, v16, s[12:15], {so} offen sc1")
    A("s_waitcnt vmcnt(0)")
    A(f"v_max3_u32 v3, v{YD}, v{YD+1}, v{YD+2}")
    for k in range(3, 11, 2):
        A(f"v_max3_u32 v3, v3, v{YD+k}, v{YD+k+1}")
    A(f"v_max_u32 v3, v3, v{YD+11}")
    A("v_cmp_eq_u32 vcc, -1, v3\ns_sub_u32 s24, s24, 1\ns_cmp_eq_u32 s24, 0\ns_cbranch_scc1 L_R_yx")
    A("s_and_b64 exec, exec, vcc\ns_cbranch_scc1 L_R_y")
    A("L_R_yx:")
    A("s_mov_b64 exec, -1")
    stamp(10)
    for r in range(4):
        A(f"v_mul_f32 v{4+r}, v{WT+(r>>1)}, v{YD+r}")
    for t in range(1, 3):
        for r in range(4):
            A(f"v_fmac_f32 v{4+r}, v{WT+2*t+(r>>1)}, v{YD+4*t+r}")
    final_reduce(29)
    stamp(11)
    stamps_out()
    A("L_end:")
    A("s_endpgm")

    ref = open(os.path.join(os.path.dirname(os.path.abspath(__file__)), "..", NAME + ".s.ref")).read().splitlines()
    head = [l for l in ref if l.startswith(";") and "@launch" not in l]
    head.append(f"; @launch grid=(256,1,1) block=(256,1,1) lds={LDS_BYTES}")
    pre = f'.amdgcn_target "amdgcn-amd-amdhsa--gfx950"\n.text\n.globl {NAME}_kernel\n.p2align 8\n.type {NAME}_kernel,@function\n'
    post = f""".section .rodata,"a"
.p2align 6
.amdhsa_kernel {NAME}_kernel
  .amdhsa_next_free_vgpr 384
  .amdhsa_next_free_sgpr 102
  .amdhsa_accum_offset 256
  .amdhsa_group_segment_fixed_size 0
  .amdhsa_kernarg_size 112
  .amdhsa_user_sgpr_count 2
  .amdhsa_user_sgpr_kernarg_segment_ptr 1
  .amdhsa_system_sgpr_workgroup_id_x 1
  .amdhsa_float_denorm_mode_32 3
.end_amdhsa_kernel
"""
    return "\n".join(head) + "\n" + pre + A.text() + post


if __name__ == "__main__":
    kw = {}
    out = None
    for a in sys.argv[1:]:
        if "=" in a:
            k, v = a.split("=", 1)
            kw[k] = int(v) if v.lstrip("-").isdigit() else v
        else:
            out = a
    s = gen(**kw)
    if out:
        open(out, "w").write(s)
    else:
        sys.stdout.write(s)
```

```python
import re

REG = re.compile(r"\b([vas])(?:(\d+)|\[(\d+):(\d+)\])")
TRANS = ("v_exp_f32", "v_log_f32", "v_rcp_f32", "v_rsq_f32", "v_sqrt_f32", "v_sin_f32", "v_cos_f32")


def regs_of(op):
    out = set()
    op = op.strip()
    if op.startswith("vcc"):
        return {("s", 106), ("s", 107)}
    if op.startswith("exec"):
        return {("x", 0)}
    if op == "m0":
        return {("m", 0)}
    for m in REG.finditer(op):
        k = m.group(1)
        if m.group(2) is not None:
            out.add((k, int(m.group(2))))
        else:
            out.update((k, i) for i in range(int(m.group(3)), int(m.group(4)) + 1))
    return out


class Ins:
    def __init__(self, text):
        self.text = text
        t = text.split(";")[0].strip()
        self.label = t[:-1] if t.endswith(":") else None
        self.directive = t.startswith(".") or not t
        self.mn = "" if self.label or self.directive else t.split()[0]
        rest = t[len(self.mn):].strip() if self.mn else ""
        ops = [o.strip() for o in re.split(r",(?![^\[]*\])", rest)] if rest else []
        if ops:
            last = ops[-1].split()
            self.mods = " ".join(last[1:])
            ops[-1] = last[0]
        else:
            self.mods = ""
        self.ops = ops
        mn = self.mn
        self.defs, self.uses = set(), set()
        self.mfma = mn.startswith("v_mfma") or mn.startswith("v_smfmac")
        self.valu = mn.startswith("v_") and not self.mfma
        self.vmem = mn.startswith("buffer_") or mn.startswith("global_")
        self.ds = mn.startswith("ds_")
        self.salu = mn.startswith("s_")
        self.dpp = "_dpp" in mn
        self.trans = any(mn.startswith(x) for x in TRANS)
        self.perml = mn.startswith("v_permlane")
        self.rdlane = mn.startswith("v_readlane") or mn.startswith("v_readfirstlane")
        self.ldsdma = self.vmem and re.search(r"\blds\b", self.mods) is not None
        self.states = 1
        self.target = None
        self.srcc = set()
        self.ab = set()
        self.wide_store = set()
        R = [regs_of(o) for o in ops]
        if mn == "s_nop":
            self.states = int(ops[0], 0) + 1
        elif mn.startswith("s_cbranch") or mn == "s_branch":
            self.target = ops[0]
        elif self.mfma:
            self.defs = R[0]
            self.ab = R[1] | R[2]
            self.srcc = R[3] if mn.startswith("v_mfma") else R[0]
            if mn.startswith("v_smfmac"):
                self.ab |= R[3]
            self.uses = self.ab | self.srcc
            self.passes = 8 if "32x32" in mn else 4
        elif self.valu:
            self.defs = set(R[0]) if R else set()
            for r in R[1:]:
                self.uses |= r
            if self.perml:
                self.defs |= R[1]
                self.uses |= R[0]
            if mn.startswith("v_fmac") or mn.startswith("v_dot2c") or self.dpp or mn.startswith("v_writelane"):
                self.uses |= R[0]
            if "_co_" in mn:
                self.defs |= R[1]
        elif self.vmem:
            is_load = "_load" in mn and not self.ldsdma
            ret_atomic = "_atomic" in mn and re.search(r"\bsc0\b", self.mods)
            if is_load:
                self.defs = R[0]
                for r in R[1:]:
                    self.uses |= r
            else:
                for r in R:
                    self.uses |= r
                if ret_atomic:
                    self.defs = R[0]
                if re.search(r"store_dwordx[34]", mn):
                    self.wide_store = R[0] if mn.startswith("buffer_") else R[1]
            if self.ldsdma:
                self.uses.add(("m", 0))
        elif self.ds:
            if mn.startswith("ds_read") or "permute" in mn or "swizzle" in mn:
                self.defs = R[0]
                for r in R[1:]:
                    self.uses |= r
            else:
                for r in R:
                    self.uses |= r
        elif self.salu:
            if R and not mn.startswith("s_cmp") and not mn.startswith("s_waitcnt"):
                self.defs = R[0]
                for r in R[1:]:
                    self.uses |= r
            else:
                for r in R:
                    self.uses |= r
        self.real = bool(self.mn)


def vec(s):
    return {r for r in s if r[0] in "va"}


def sca(s):
    return {r for r in s if r[0] == "s"}


def need(p, c):
    n = 0
    if p.valu:
        pv, ps = vec(p.defs), sca(p.defs)
        if c.mfma and pv & c.uses:
            n = max(n, 2)
        if c.dpp and pv & c.uses:
            n = max(n, 2)
        if c.perml and pv & c.uses:
            n = max(n, 2)
        if c.rdlane and pv & c.uses:
            n = max(n, 1)
        if p.trans and c.valu and pv & c.uses:
            n = max(n, 1)
        if ps & c.uses:
            if c.vmem:
                n = max(n, 5)
            elif c.rdlane or c.mn.startswith("v_writelane"):
                n = max(n, 4)
            elif c.valu or c.mfma:
                n = max(n, 2)
            elif c.salu:
                n = max(n, 1)
        if ("x", 0) in p.defs or p.mn.startswith("v_cmpx"):
            n = max(n, 5)
    if p.mfma:
        big = {4: 8, 8: 12}[p.passes]
        if c.mfma:
            if p.defs & c.ab:
                n = max(n, big)
            if p.defs & c.srcc and not (p.defs == c.srcc and p.passes == c.passes):
                n = max(n, big - 2)
            if p.defs & c.defs and not (p.defs & c.srcc):
                n = max(n, big - 2)
        elif (c.valu or c.vmem or c.ds) and p.defs & (c.uses | c.defs):
            n = max(n, big)
        if c.valu and p.srcc & c.defs:
            n = max(n, {4: 3, 8: 7}[p.passes])
    if p.salu and ("m", 0) in p.defs and c.ldsdma:
        n = max(n, 1)
    if p.wide_store and p.wide_store & c.defs:
        n = max(n, 2)
    return n


WINDOW = 14


class Asm:
    def __init__(self):
        self.ins = []

    def __call__(self, text):
        for line in text.split("\n"):
            line = line.strip()
            if line:
                self._add(Ins(line))

    def _missing(self, hist, c):
        miss, dist = 0, 0
        for p in reversed(hist):
            if not p.real:
                continue
            miss = max(miss, need(p, c) - dist)
            dist += p.states
            if dist >= WINDOW:
                break
        return miss

    def _add(self, c):
        if c.real:
            k = len(self.ins)
            while k > 0 and self.ins[k - 1].mn not in ("s_branch", "s_endpgm", "s_setpc_b64") and len(self.ins) - k < 64:
                k -= 1
            miss = self._missing(self.ins[k:], c)
            if miss > 0:
                self.ins.append(Ins(f"s_nop {miss - 1}"))
        self.ins.append(c)

    def check_edges(self):
        labels = {i.label: n for n, i in enumerate(self.ins) if i.label}
        bad = []
        for n, b in enumerate(self.ins):
            if b.target is None:
                continue
            hist = self.ins[max(0, n - 40): n + 1]
            dist = 0
            for k in range(labels[b.target], len(self.ins)):
                c = self.ins[k]
                if not c.real:
                    continue
                m = self._missing(hist, c)
                if m > 0:
                    bad.append((k, m))
                    break
                hist = hist + [c]
                dist += c.states
                if dist >= WINDOW or c.mn in ("s_branch", "s_endpgm"):
                    break
        return bad

    def text(self):
        for _ in range(1000):
            bad = self.check_edges()
            if not bad:
                break
            k, m = bad[0]
            self.ins.insert(k, Ins(f"s_nop {m - 1}"))
        assert not bad
        out = []
        for i in self.ins:
            out.append(i.text if (i.label or i.directive) else "    " + i.text)
        return "\n".join(out) + "\n"
```

```python
import math
import os
import struct
import sys

sys.path.insert(0, os.path.dirname(os.path.abspath(__file__)))
from asmlib import Asm

NAME = "concat_heads__compressed_kv_cla__mha_block_cached__decode"

DEF = dict(
    chunk=1,
    nwait=15,
    kv="nt",
    wsh="",
    wpr="nt",
    rot=1,
    stag=1,
    blk0=2,
    cpf=1,
    sl_cnt=4, sl_p=1,
    trace=0, diag=0, kfirst=0,
    vfull=99,
    wtr=24,
    bwo_late=0,
    hmap=1,
    tlb=0,
    bar=0,
    nwv=None,
    stamps=0,
    skipA=0, nowq=0,
)

WS_QA, WS_PART, WS_PML, WS_YA = 0x0, 0x20000, 0x120000, 0x124000
WS_OB, WS_BML, WS_YB, WS_CLR_END = 0x180000, 0x1b0000, 0x1c0000, 0x200000
WS_STAMP = 0x300000
WS_SIZE = 0x400000
C_Q, C_P, C_Y = 0, 4, 8
FLAG = 128

WROW = 1056
L_MISC = 128 * WROW
L_QP, L_OA, L_RED, L_CX = L_MISC, L_MISC + 8192, L_MISC + 9216, L_MISC + 10240
HROW = 544
LDS_BYTES = L_MISC + 14336
CROW = 1040
CTILE = 32 * CROW

SCALE = struct.unpack("<I", struct.pack("<f", math.log2(math.e) / math.sqrt(128.0)))[0]
SPIN = 1 << 18

P_AX, P_CKV, P_AWQ, P_AWUK, P_AWUV, P_AWO, P_BX, P_K, P_V, P_BWQ, P_BWO, P_OUT, P_DBG, P_WS = range(36, 64, 2)
DPP_ID = "quad_perm:[0,1,2,3]"


def gen(**kw):
    o = dict(DEF)
    o.update(kw)
    A = Asm()
    chunk, nwait = o["chunk"], o["nwait"]
    uid = [0]

    def vr(b, n=4):
        return f"v[{b}:{b+n-1}]"

    def ar(b, n=4):
        return f"a[{b}:{b+n-1}]"

    def srd(s, ptr, size, add=None):
        if add is None:
            A(f"s_mov_b32 s{s}, s{ptr}\ns_mov_b32 s{s+1}, s{ptr+1}")
        else:
            A(f"s_add_u32 s{s}, s{ptr}, {add}\ns_addc_u32 s{s+1}, s{ptr+1}, 0")
        A(f"s_mov_b32 s{s+2}, {size:#x}\ns_mov_b32 s{s+3}, 0x20000")

    def stamp(k):
        if o["stamps"]:
            A(f"s_memrealtime s[{76+2*k}:{77+2*k}]\ns_waitcnt lgkmcnt(0)")

    def trace(base):
        if o["trace"]:
            A(f"s_memrealtime s[100:101]\ns_add_u32 m0, s27, {base}\ns_waitcnt lgkmcnt(0)\nv_writelane_b32 v59, s100, m0")

    def trace_out():
        if o["trace"]:
            A(f"s_mov_b64 exec, -1\ns_lshl_b32 s24, s2, 2\ns_add_u32 s24, s24, s3\ns_lshl_b32 s24, s24, 8\ns_add_u32 s24, s24, {WS_STAMP + 0x10000:#x}")
            A("v_lshlrev_b32 v1, 2, v0\nbuffer_store_dword v59, v1, s[12:15], s24 offen")

    def stamps_out():
        if o["stamps"]:
            A("s_lshl_b32 s24, s2, 2\ns_add_u32 s24, s24, s3\ns_lshl_b32 s24, s24, 6")
            A(f"s_add_u32 s24, s24, {WS_STAMP:#x}")
            A("s_mov_b64 exec, 1")
            for k in range(12):
                A(f"v_mov_b32 v1, s{76+2*k}")
                A(f"buffer_store_dword v1, off, s[12:15], s24 offset:{4*k}")
            A("s_getreg_b32 s25, hwreg(HW_REG_XCC_ID, 0, 4)\nv_mov_b32 v1, s25")
            A("buffer_store_dword v1, off, s[12:15], s24 offset:48")

    def signal(cnt, n):
        uid[0] += 1
        A("s_waitcnt vmcnt(0)\ns_barrier")
        A(f"s_cmp_lg_u32 s3, 0\ns_cbranch_scc1 L_sig{uid[0]}")
        A("s_mov_b64 exec, 1\nv_mov_b32 v1, 1")
        A(f"buffer_atomic_add v1, off, s[16:19], 0 offset:{cnt} sc0")
        A("s_waitcnt vmcnt(0)\nv_readfirstlane_b32 s24, v1")
        A(f"s_cmp_lg_u32 s24, {n-1}\ns_cbranch_scc1 L_sig{uid[0]}")
        A(f"buffer_store_dword v1, off, s[16:19], 0 offset:{FLAG+cnt} sc1")
        A(f"L_sig{uid[0]}:\ns_mov_b64 exec, -1")

    def poll_flag(cnt, v, done):
        uid[0] += 1
        u = uid[0]
        A(f"s_mov_b32 s24, {SPIN}\ns_mov_b64 exec, 1")
        A(f"L_aw{u}:")
        A(f"buffer_load_dword v{v}, off, s[16:19], 0 offset:{FLAG+cnt} sc1")
        A(f"s_waitcnt vmcnt(0)\nv_readfirstlane_b32 s25, v{v}")
        A(f"s_cmp_lg_u32 s25, 0\ns_cbranch_scc1 {done}")
        A(f"s_sleep {o['sl_cnt']}\ns_sub_u32 s24, s24, 1\ns_cmp_lg_u32 s24, 0\ns_cbranch_scc1 L_aw{u}")

    def await_flag(cnt):
        uid[0] += 1
        x = f"L_awx{uid[0]}"
        A(f"s_cmp_lg_u32 s3, 0\ns_cbranch_scc1 {x}")
        poll_flag(cnt, 1, x)
        A(f"{x}:\ns_mov_b64 exec, -1\ns_barrier")

    def code_prefetch(lo, hi):
        if not o["cpf"]:
            return
        uid[0] += 1
        A(f"s_getpc_b64 s[20:21]\nL_pc{uid[0]}:")
        A(f"s_sub_u32 s20, s20, L_pc{uid[0]}-{lo}\ns_subb_u32 s21, s21, 0")
        A(f"s_mov_b32 s22, {hi}-{lo}\ns_mov_b32 s23, 0x20000")
        A("v_lshl_add_u32 v3, v0, 2, s3\nv_lshlrev_b32 v3, 7, v3")
        A("buffer_load_dword v17, v3, s[20:23], 0 offen")

    MASK, SELE, SELO = 20, 24, 28
    WB = 128

    def make_masks(sel=True):
        A("v_and_b32 v3, 1, v0\nv_lshlrev_b32 v3, 4, v3\nv_mov_b32 v4, 0xffff\nv_lshlrev_b32 v4, v3, v4")
        A("v_bfe_u32 v3, v0, 1, 2")
        for i in range(4):
            A(f"v_cmp_eq_u32 vcc, {i}, v3\nv_cndmask_b32 v{MASK+i}, 0, v4, vcc")
        if sel:
            A("v_mov_b32 v3, 0x0c0c0c0c\ns_mov_b32 s24, 0x01000100\ns_mov_b32 s25, 0x03020302")
            for i in range(4):
                A(f"v_bfi_b32 v{SELE+i}, v{MASK+i}, s24, v3\nv_bfi_b32 v{SELO+i}, v{MASK+i}, s25, v3")

    def gemv(xs, accs, wait=None, after=None, pre=None):
        for j in range(32):
            sel = SELO if j & 1 else SELE
            if pre:
                pre(j)
            for p, (x, acc) in enumerate(zip(xs, accs)):
                bb = 8 if p == 0 else 4
                for i in range(4):
                    A(f"v_perm_b32 v{bb+i}, v{x+j//2}, v{x+j//2}, v{sel+i}")
                if p == 0 and wait:
                    wait(j)
                A(f"v_mfma_f32_16x16x32_bf16 {vr(acc)}, {vr(WB+4*j)}, {vr(bb)}, {'0' if j == 0 else vr(acc)}")
            if after:
                after(j)

    def q_reduce(accs, rd, dst, tmp):
        A("v_lshrrev_b32 v3, 4, v0\nv_lshlrev_b32 v3, 7, v3\nv_and_b32 v4, 7, v0\nv_lshl_add_u32 v3, v4, 2, v3")
        A("v_bfe_u32 v4, v0, 3, 1\nv_lshl_add_u32 v3, v4, 9, v3")
        A(f"s_lshl_b32 s24, s3, 11\ns_add_u32 s24, s24, {L_QP}\nv_add_u32 v3, s24, v3")
        for p, acc in enumerate(accs):
            for r in range(4):
                A(f"ds_write_b32 v3, v{acc+r} offset:{p*1024 + r*32}")
        A("s_waitcnt lgkmcnt(0)\ns_barrier")
        for w in range(4):
            A(f"ds_read_b128 {vr(tmp+8*w)}, v{rd} offset:{w*2048}")
            A(f"ds_read_b128 {vr(tmp+8*w+4)}, v{rd} offset:{w*2048+16}")
        for w in range(1, 4):
            A(f"s_waitcnt lgkmcnt({6-2*w})")
            for e in range(8):
                A(f"v_add_f32 v{tmp+e}, v{tmp+e}, v{tmp+8*w+e}")
        for i in range(4):
            A(f"v_cvt_pk_bf16_f32 v{dst+i}, v{tmp+2*i}, v{tmp+2*i+1}")

    def diag_sum(D, y, t):
        src = D + y
        for a in range(4):
            if a != y:
                A(f"v_add_f32_dpp v{t}, v{D+a}, v{src} quad_perm:[{a},{a},{a},{a}] row_mask:0xf bank_mask:0xf")
                src = t

    def quad_masks():
        for y in range(1, 4):
            A(f"s_mov_b32 s{62+2*y}, {0x11111111 << y:#x}\ns_mov_b32 s{63+2*y}, {0x11111111 << y:#x}")

    def wave_reduce(op, v, sdst):
        for c in ("row_ror:8", "row_ror:4", "row_ror:2", "row_ror:1"):
            A(f"{op}_dpp v{v}, v{v}, v{v} {c} row_mask:0xf bank_mask:0xf")
        A(f"{op}_dpp v{v}, v{v}, v{v} row_bcast:15 row_mask:0xa bank_mask:0xf")
        A(f"{op}_dpp v{v}, v{v}, v{v} row_bcast:31 row_mask:0xc bank_mask:0xf")
        A(f"v_readlane_b32 s{sdst}, v{v}, 63")

    def wo_stage(row, lim, tag):
        A(f"s_mov_b32 s70, 0\nL_wo{tag}:")
        A("s_and_b32 s24, s70, 3\ns_lshl_b32 s24, s24, 1\ns_lshr_b32 s25, s70, 2\ns_or_b32 s24, s24, s25")
        A("s_lshl_b32 s24, s24, 10\ns_add_u32 s24, s24, s33")
        A(f"s_mul_i32 s25, s70, {4*row}\ns_add_u32 m0, s25, s34")
        for r in range(4):
            A(f"s_waitcnt vmcnt({lim})")
            A(f"buffer_load_dwordx4 v2, s[8:11], s24 offen {o['wpr']} lds")
            if r < 3:
                A(f"s_add_u32 m0, m0, {row}\ns_add_u32 s24, s24, 8192")
        A(f"s_add_u32 s70, s70, 1\ns_cmp_lt_u32 s70, 8\ns_cbranch_scc1 L_wo{tag}")

    def wo_transpose(base, row, ntile, dst):
        A(f"v_lshrrev_b32 v3, 2, v0\nv_mul_u32_u24 v3, {row}, v3\nv_and_b32 v4, 3, v0\nv_lshl_add_u32 v3, v4, 3, v3")
        A(f"s_mul_i32 s24, s3, {32*ntile}\ns_add_u32 s24, s24, {base}\nv_add_u32 v3, s24, v3\nv_add_u32 v4, {64*row}, v3")
        for T in range(ntile):
            for i in range(4):
                for z in range(2):
                    A(f"ds_read_b64_tr_b16 {ar(dst+(T*4+i)*4+2*z, 2)}, v{3 if i < 2 else 4} offset:{(32*(i&1)+16*z)*row + T*32}")

    def bwo_stage(base, half, tag, lim=24):
        srd(8, P_BWO, 4 << 20)
        A(f"s_lshl_b32 s33, s26, 17\ns_lshl_b32 s24, s3, 15\ns_add_u32 s33, s33, s24\ns_add_u32 s33, s33, {half}")
        A(f"s_mul_i32 s34, s3, {32*HROW}\ns_add_u32 s34, s34, {base}")
        A("s_mov_b32 exec_hi, 0")
        wo_stage(HROW, lim, tag)
        A("s_mov_b64 exec, -1")

    def head_of(src):
        if o["hmap"]:
            A(f"s_and_b32 s26, {src}, 7\ns_lshl_b32 s26, s26, 2\ns_lshr_b32 s24, {src}, 3\ns_add_u32 s26, s26, s24")
        else:
            A(f"s_mov_b32 s26, {src}")

    def clear_inbox():
        for i in range(4):
            A(f"v_mov_b32 v{8+i}, -1")
        A(f"s_lshl_b32 s24, s74, 2\ns_add_u32 s24, s24, s3\ns_lshl_b32 s24, s24, 11\ns_add_u32 s24, s24, {WS_OB:#x}")
        A("buffer_store_dwordx4 v[8:11], v2, s[12:15], s24 offen sc1")
        A("buffer_store_dwordx4 v[8:11], v2, s[12:15], s24 offen offset:1024 sc1")

    A(f"{NAME}_kernel:")
    A("s_load_dwordx16 s[36:51], s[0:1], 0\ns_load_dwordx8 s[52:59], s[0:1], 64\ns_load_dwordx4 s[60:63], s[0:1], 96")
    A("s_cmp_ge_u32 s2, 256\ns_cbranch_scc1 L_end")
    A("v_lshrrev_b32 v1, 6, v0\nv_and_b32 v0, 63, v0\nv_readfirstlane_b32 s3, v1")
    A("v_lshlrev_b32 v2, 4, v0")
    A("s_cmp_lt_u32 s2, 32\ns_cbranch_scc1 L_W")
    A("s_cmp_ge_u32 s2, 224\ns_cbranch_scc1 L_C")

    RING, XR, BQ, SR = 64, 32, 32, 48
    A("L_B:")
    code_prefetch("L_B", "L_W")
    A("s_sub_u32 s24, s2, 32\ns_and_b32 s25, s24, 7\ns_lshr_b32 s24, s24, 3")
    A("s_mul_i32 s26, s24, 43\ns_lshr_b32 s26, s26, 8\ns_mul_i32 s27, s26, 6\ns_sub_u32 s27, s24, s27")
    A(f"s_and_b32 s75, s26, {1 if o['stag'] == 1 else 0}")
    if o["stag"] == 2:
        A("s_mov_b32 s75, 1")
    if o["hmap"]:
        A("s_lshl_b32 s25, s25, 2\ns_add_u32 s26, s26, s25")
    else:
        A("s_lshl_b32 s26, s26, 3\ns_add_u32 s26, s26, s25")
    A("s_cmp_ge_u32 s27, 3\ns_cselect_b32 s28, 1, 0\ns_mul_i32 s29, s28, 3\ns_sub_u32 s29, s27, s29")
    A("s_lshr_b32 s72, s3, 1\ns_lshl_b32 s24, s28, 1\ns_add_u32 s72, s72, s24")
    A("s_and_b32 s31, s3, 1\ns_lshl_b32 s24, s29, 1\ns_add_u32 s31, s31, s24")
    A("s_lshl_b32 s30, s72, 5\ns_add_u32 s30, s30, s26\ns_lshl_b32 s30, s30, 20")
    A("v_lshrrev_b32 v3, 4, v0\nv_and_b32 v4, 15, v0")
    A("v_lshlrev_b32 v5, 18, v3\nv_lshl_add_u32 v5, v4, 4, v5")
    A("v_lshrrev_b32 v6, 3, v4\nv_lshlrev_b32 v6, 10, v6\nv_lshl_add_u32 v6, v3, 6, v6")
    A("v_bfe_u32 v1, v0, 2, 2\nv_lshlrev_b32 v1, 8, v1\nv_lshl_add_u32 v1, v3, 6, v1")
    A("v_and_b32 v4, 3, v0\nv_lshl_add_u32 v1, v4, 4, v1")
    A(f"s_mul_i32 s35, s31, {chunk*1024}\ns_mov_b32 s32, s35")
    A("s_lshl_b32 s33, s28, 11\ns_lshl_b32 s25, s3, 8\ns_add_u32 s33, s33, s25")
    A("s_lshl_b32 s34, s3, 20\ns_lshl_b32 s25, s26, 8\ns_add_u32 s34, s34, s25")
    A(f"s_and_b32 s27, s27, {3 if o['rot'] else 0}")
    A("s_waitcnt lgkmcnt(0)")
    stamp(0)
    srd(8, P_BWQ, 0 if o["nowq"] else 4 << 20)
    srd(4, P_K, 1 << 20, add="s30")
    srd(20, P_BX, 4096)

    def sload(i, dst):
        A(f"buffer_load_dwordx4 {dst}, v1, s[4:7], s32 offen offset:{(i % chunk)*1024} {o['kv']}")
        if i % chunk == chunk - 1:
            A(f"s_add_u32 s32, s32, {6*chunk*1024}")

    def kgroup(gi, cond=None):
        if cond is not None:
            uid[0] += 1
            A(f"s_cmp_lg_u32 s75, {cond}\ns_cbranch_scc1 L_kg{uid[0]}")
        for i in range(8 * gi, 8 * gi + 8):
            sload(i, ar(4 * i) if i < 16 else vr(RING + 4 * (i - 16)))
        if cond is not None:
            A(f"L_kg{uid[0]}:")

    def wqgroup(q):
        A(f"s_add_u32 s24, s27, {q}\ns_and_b32 s24, s24, 3\ns_lshl_b32 s25, s24, 16\ns_add_u32 s25, s25, s34")
        A("s_lshl_b32 s24, s24, 4\ns_add_u32 s24, s24, s33")
        A(f"buffer_load_dwordx4 {vr(XR+4*q)}, v6, s[20:23], s24 offen")
        for j in range(8 * q, 8 * q + 8):
            A(f"buffer_load_dwordx4 {vr(WB+4*j)}, v5, s[8:11], s25 offen {o['wsh']}")
            if j & 7 != 7:
                A("s_add_u32 s25, s25, 8192")

    srd(12, P_WS, WS_SIZE)
    if o["tlb"]:
        srd(16, P_V, 1 << 20, add="s30")
        A(f"s_mov_b64 exec, 1\nbuffer_load_dword v17, off, s[16:19], s35 {o['kv']}")
        srd(16, P_DBG, 256)
        A(f"s_mov_b32 s24, {WS_OB - 0x1000:#x}\nbuffer_load_dword v17, off, s[12:15], s24")
        A(f"buffer_load_dword v17, off, s[16:19], 0 offset:{FLAG} sc1\ns_mov_b64 exec, -1")
    else:
        srd(16, P_DBG, 256)
    if o["diag"] == 1:
        A("s_waitcnt vmcnt(0)")
        stamp(6)
        kgroup(0)
        A("s_waitcnt vmcnt(7)")
        stamp(7)
        A("s_waitcnt vmcnt(0)")
        stamp(8)
        wqgroup(0)
        A("s_waitcnt vmcnt(8)")
        stamp(9)
        A("s_waitcnt vmcnt(7)")
        stamp(10)
        A("s_waitcnt vmcnt(0)")
        stamp(11)
        o["stamps"] = 0
    elif o["kfirst"]:
        kgroup(0)
        wqgroup(0)
    else:
        wqgroup(0)
        kgroup(0)
    kgroup(1, 1)
    stamp(6)
    make_masks()
    quad_masks()
    A("v_lshrrev_b32 v3, 4, v0\nv_lshlrev_b32 v7, 7, v3\nv_and_b32 v4, 3, v0\nv_lshl_add_u32 v7, v4, 5, v7")
    A(f"s_lshr_b32 s24, s3, 1\ns_lshl_b32 s24, s24, 9\ns_add_u32 s24, s24, {L_QP}\nv_add_u32 v60, s24, v7")
    for q in range(1, 4):
        wqgroup(q)
    stamp(7)
    A("s_waitcnt vmcnt(27)")
    stamp(8)
    kgroup(1, 0)
    kgroup(2)
    kgroup(3, 1)
    stamp(9)

    def qwait(j):
        if j & 7 == 0 and j:
            A(f"s_waitcnt vmcnt({16 + (3 - j // 8) * 9})")
    gemv([XR], [12], pre=qwait)
    stamp(10)
    kgroup(3, 0)
    stamp(11)
    if o["diag"] == 1:
        o["stamps"] = 1
    q_reduce([12], 60, 8, WB)
    for x in range(16):
        A(f"v_mov_b32 v{BQ+x}, 0")
    for x in range(4):
        for i in range(4):
            A(f"v_mov_b32_dpp v{BQ+4*x+i}, v{8+i} {DPP_ID} row_mask:0xf bank_mask:{1 << x:#x}")
    stamp(1)

    def kblock(src, S, stream):
        for j in range(16):
            x, y = j & 3, j >> 2
            D = 12 + 4 * (y & 1)
            if stream:
                A("s_waitcnt vmcnt(15)")
            A(f"v_mfma_f32_16x16x32_bf16 {vr(D)}, {src(j)}, {vr(BQ+4*x)}, {'0' if x == 0 else vr(D)}")
            if stream:
                if nwait < 15:
                    A(f"s_waitcnt vmcnt({nwait})")
                sload(j, src(j))
            if x == 3:
                if y == 0:
                    diag_sum(D, 0, S)
                else:
                    diag_sum(D, y, 3)
                    A(f"v_cndmask_b32 v{S}, v{S}, v3, s[{62+2*y}:{63+2*y}]")

    A("s_mov_b32 s27, 1")
    A("L_BK:")
    trace(0)
    A("s_cmp_lg_u32 s27, 10\ns_cbranch_scc1 L_BK_a")
    A(f"s_add_u32 s4, s{P_V}, s30\ns_addc_u32 s5, s{P_V+1}, 0\ns_mov_b32 s32, s35\nv_mov_b32 v1, v2")
    A(f"s_mov_b64 exec, 1\nbuffer_load_dword v61, off, s[16:19], 0 offset:{FLAG+C_Q} sc1\ns_mov_b64 exec, -1")
    A("L_BK_a:")
    if o["bar"] & 1:
        A("s_barrier")
    for k in range(1, 10):
        A(f"v_mov_b32 v{SR+k}, v{SR+k+1}")
    kblock(lambda j: vr(RING + 4 * j), SR + 10, True)
    A(f"s_cmp_lg_u32 s27, {o['blk0']}\ns_cbranch_scc1 L_BK_b")
    kblock(lambda j: ar(4 * j), SR, False)
    A("L_BK_b:")
    A("s_add_u32 s27, s27, 1\ns_cmp_lt_u32 s27, 11\ns_cbranch_scc1 L_BK")
    stamp(2)

    lg = int(math.log2(chunk))
    A("v_and_b32 v3, 3, v0\nv_bfe_u32 v4, v0, 2, 2\nv_lshl_add_u32 v3, v3, 2, v4\nv_add_u32 v3, 160, v3")
    A(f"v_lshrrev_b32 v3, {lg}, v3\nv_mul_u32_u24 v3, 6, v3\nv_add_u32 v3, s31, v3")
    A(f"v_mov_b32 v4, 0xff800000\nv_cmp_gt_u32 vcc, {1024 // chunk}, v3\nv_cndmask_b32 v{SR+10}, v4, v{SR+10}, vcc")
    A(f"v_max3_f32 v3, v{SR}, v{SR+1}, v{SR+2}")
    for k in range(3, 11, 2):
        A(f"v_max3_f32 v3, v3, v{SR+k}, v{SR+k+1}")
    wave_reduce("v_max_f32", 3, 24)
    A(f"s_mov_b32 s71, {SCALE:#x}\nv_mov_b32 v6, s71\nv_mul_f32 v6, s24, v6")
    for k in range(11):
        A(f"v_fma_f32 v{SR+k}, v{SR+k}, s71, -v6")
    for k in range(11):
        A(f"v_exp_f32 v{SR+k}, v{SR+k}")
    A(f"v_add_f32 v7, v{SR}, v{SR+1}")
    for k in range(2, 11):
        A(f"v_add_f32 v7, v7, v{SR+k}")
    for k in range(11):
        A(f"v_cvt_pk_bf16_f32 v{SR+k}, v{SR+k}, v{SR+k}")
    wave_reduce("v_add_f32", 7, 70)
    A("v_readfirstlane_b32 s25, v61")
    A("s_cmp_lg_u32 s25, 0\ns_cbranch_scc1 L_B_clr")
    poll_flag(C_Q, 61, "L_B_clr")
    A("L_B_clr:")
    A("s_lshl_b32 s24, s26, 2\ns_add_u32 s24, s24, s72")
    A(f"s_lshl_b32 s25, s24, 3\ns_add_u32 s25, s25, s31\ns_lshl_b32 s25, s25, 4\ns_add_u32 s25, s25, {WS_BML:#x}")
    A("s_mov_b64 exec, 1\nv_mov_b32 v7, s70")
    A("buffer_store_dwordx2 v[6:7], off, s[12:15], s25 sc1")
    A("s_mov_b64 exec, -1")
    A(f"s_mul_i32 s73, s24, 6\ns_add_u32 s73, s73, s31\ns_lshl_b32 s73, s73, 8\ns_add_u32 s73, s73, {WS_OB:#x}")
    A("v_lshrrev_b32 v3, 4, v0\nv_lshlrev_b32 v60, 6, v3\nv_and_b32 v4, 7, v0\nv_lshl_add_u32 v60, v4, 3, v60")
    for i in range(4):
        A(f"v_mov_b32 v{12+i}, 0")
    stamp(3)

    nlast = -(-(1024 // chunk) // 6) * chunk - 160
    A("s_mov_b32 s27, 0")
    A("L_BV:")
    trace(11)
    if o["bar"] & 2:
        A("s_barrier")
    nwv = nwait if o["nwv"] is None else o["nwv"]
    if nwv < 15:
        A(f"s_cmp_ge_u32 s27, {min(o['vfull'], 10)}\ns_cselect_b64 vcc, -1, 0")
    for j in range(16):
        x, y = j & 3, j >> 2
        if j == nlast:
            A("s_cmp_lg_u32 s27, 10\ns_cbranch_scc1 L_BV_a")
            stamp(4)
            A("s_mov_b32 exec_lo, 0x00ff00ff\ns_mov_b32 exec_hi, 0x00ff00ff")
            A("v_cvt_pk_bf16_f32 v4, v12, v13\nv_cvt_pk_bf16_f32 v5, v14, v15")
            A("buffer_store_dwordx2 v[4:5], v60, s[12:15], s73 offen sc1")
            stamp(5)
            trace_out()
            stamps_out()
            A("s_endpgm")
            A("L_BV_a:")
        for i in range(4):
            A(f"v_and_b32_dpp v{8+i}, v{SR}, v{MASK+i} row_newbcast:{4*x+y} row_mask:0xf bank_mask:0xf")
        A("s_waitcnt vmcnt(15)")
        A(f"v_mfma_f32_16x16x32_bf16 v[12:15], {vr(RING+4*j)}, v[8:11], v[12:15]")
        if nwv < 15:
            A(f"s_cbranch_vccnz L_BV_s{j}\ns_waitcnt vmcnt({nwv})\nL_BV_s{j}:")
        sload(j, vr(RING + 4 * j))
    for k in range(10):
        A(f"v_mov_b32 v{SR+k}, v{SR+k+1}")
    A("s_add_u32 s27, s27, 1\ns_branch L_BV")

    XA, XB = 32, 48
    A("L_W:")
    code_prefetch("L_W", "L_C")
    head_of("s2")
    A("s_mov_b32 s74, s2")
    A("v_lshrrev_b32 v3, 4, v0\nv_and_b32 v4, 15, v0")
    A("v_lshlrev_b32 v18, 18, v3\nv_lshl_add_u32 v18, v4, 4, v18")
    A("v_lshrrev_b32 v6, 3, v4\nv_lshlrev_b32 v6, 10, v6\nv_lshl_add_u32 v19, v3, 6, v6")
    A("v_bfe_u32 v1, v0, 2, 2\nv_lshlrev_b32 v64, 18, v1\nv_lshl_add_u32 v64, v3, 6, v64")
    A("v_and_b32 v4, 3, v0\nv_lshl_add_u32 v64, v4, 4, v64")
    A("v_lshlrev_b32 v65, 9, v1\nv_lshl_add_u32 v65, v3, 7, v65\nv_lshl_add_u32 v65, v4, 5, v65")
    A(f"v_add_u32 v65, {L_QP}, v65")
    A("v_lshlrev_b32 v66, 15, v1\nv_lshl_add_u32 v66, v3, 6, v66\nv_lshl_add_u32 v66, v4, 4, v66")
    A("s_lshl_b32 s35, s3, 20\ns_lshl_b32 s24, s26, 8\ns_add_u32 s35, s35, s24")
    A("s_waitcnt lgkmcnt(0)")
    stamp(0)
    srd(12, P_WS, WS_SIZE)
    clear_inbox()
    srd(20, P_AX, 4096)
    srd(4, P_AWQ, 4 << 20)
    srd(16, P_DBG, 256)
    if o["skipA"]:
        signal(C_Q, 64)
        A("s_branch L_W_bwo")
    A("s_lshl_b32 s24, s3, 8")
    for p in range(2):
        for i in range(4):
            A(f"buffer_load_dwordx4 {vr(XA+16*p+4*i)}, v19, s[20:23], s24 offen offset:{2048*p+16*i}")
    A("s_mov_b32 s32, s35")

    def wload(j, voff):
        A(f"buffer_load_dwordx4 {vr(WB+4*j)}, v{voff}, s[4:7], s32 offen {o['wpr']}")
        A("s_add_u32 s32, s32, 8192")
    for j in range(32):
        wload(j, 18)
    srd(4, P_AWUK, 4 << 20)
    A("s_mov_b32 s32, s35")
    make_masks()
    quad_masks()
    A("s_waitcnt vmcnt(32)")
    gemv([XA, XB], [12, 68], wait=lambda j: A("s_waitcnt vmcnt(31)"), after=lambda j: wload(j, 64))
    q_reduce([12, 68], 65, 8, 72)
    stamp(1)
    TQ = 72
    for j in range(32):
        y = j >> 3
        D = 12 if j & 1 else 68
        A(f"s_waitcnt vmcnt({31-j})")
        A(f"v_mfma_f32_16x16x32_bf16 {vr(D)}, {vr(WB+4*j)}, v[8:11], 0")
        if y == 0:
            diag_sum(D, 0, TQ + j)
        else:
            diag_sum(D, y, 3)
            A(f"v_cndmask_b32 v{TQ+(j&7)}, v{TQ+(j&7)}, v3, s[{62+2*y}:{63+2*y}]")
    A(f"s_mov_b32 s71, {SCALE:#x}")
    for e in range(8):
        A(f"v_mul_f32 v{TQ+e}, s71, v{TQ+e}")
    for i in range(4):
        A(f"v_cvt_pk_bf16_f32 v{4+i}, v{TQ+2*i}, v{TQ+2*i+1}")
    A(f"s_lshl_b32 s24, s26, 10\ns_lshl_b32 s25, s3, 8\ns_add_u32 s24, s24, s25\ns_add_u32 s24, s24, {WS_QA:#x}")
    A("buffer_store_dwordx4 v[4:7], v66, s[12:15], s24 offen sc1")
    signal(C_Q, 64)
    stamp(2)
    srd(4, P_AWUV, 4 << 20)
    srd(8, P_AWO, 4 << 20)
    A("s_lshl_b32 s33, s26, 17\ns_lshl_b32 s24, s3, 15\ns_add_u32 s33, s33, s24")
    A(f"s_mul_i32 s34, s3, {32*WROW}")
    wo_stage(WROW, o["wtr"], "A")
    A("s_mov_b32 s32, s35")
    for j in range(32):
        if o["wtr"] < 24:
            A(f"s_waitcnt vmcnt({o['wtr']})")
        wload(j, 18)
    A("s_waitcnt vmcnt(32)\ns_barrier")
    wo_transpose(0, WROW, 8, 0)
    A("s_waitcnt lgkmcnt(0)\ns_barrier")
    A("L_W_bwo:")
    if not o["bwo_late"]:
        bwo_stage(0, 0, "W", min(24, 2 * o["wtr"] + 1))
        A("s_waitcnt vmcnt(0)\ns_barrier")
        wo_transpose(0, HROW, 4, 128)
    A("s_waitcnt vmcnt(0) lgkmcnt(0)")
    if o["skipA"]:
        A("s_branch L_R")
    stamp(3)
    await_flag(C_P)
    stamp(4)
    PR = 72
    A(f"s_lshl_b32 s24, s26, 2\ns_add_u32 s24, s24, s3\ns_lshl_b32 s25, s24, 6\ns_add_u32 s25, s25, {WS_PML:#x}")
    A("v_and_b32 v3, 7, v0\nv_lshlrev_b32 v3, 3, v3")
    A("buffer_load_dwordx2 v[4:5], v3, s[12:15], s25 offen sc1")
    A(f"s_lshl_b32 s24, s24, 13\ns_add_u32 s24, s24, {WS_PART:#x}")
    for s in range(8):
        A(f"buffer_load_dwordx4 {vr(PR+4*s)}, v2, s[12:15], s24 offen offset:{(s & 3)*1024} sc1")
        if s == 3:
            A("s_add_u32 s24, s24, 4096")
    A("s_waitcnt vmcnt(8)")
    A("v_mov_b32 v6, v4")
    for c in ("row_ror:4", "row_ror:2", "row_ror:1"):
        A(f"v_max_f32_dpp v6, v6, v6 {c} row_mask:0xf bank_mask:0xf")
    A("v_sub_f32 v4, v4, v6\nv_exp_f32 v4, v4\nv_mul_f32 v5, v4, v5")
    for c in ("row_ror:4", "row_ror:2", "row_ror:1"):
        A(f"v_add_f32_dpp v5, v5, v5 {c} row_mask:0xf bank_mask:0xf")
    A("v_rcp_f32 v5, v5\nv_mul_f32 v4, v4, v5")
    CA = 104
    for s in range(8):
        A(f"v_readlane_b32 s24, v4, {s}")
        A(f"s_waitcnt vmcnt({7-s})")
        for i in range(4):
            A(f"v_lshlrev_b32 v5, 16, v{PR+4*s+i}\nv_and_b32 v6, 0xffff0000, v{PR+4*s+i}")
            if s == 0:
                A(f"v_mul_f32 v{CA+2*i}, s24, v5\nv_mul_f32 v{CA+2*i+1}, s24, v6")
            else:
                A(f"v_fmac_f32 v{CA+2*i}, s24, v5\nv_fmac_f32 v{CA+2*i+1}, s24, v6")
    for i in range(4):
        A(f"v_cvt_pk_bf16_f32 v{4+i}, v{CA+2*i}, v{CA+2*i+1}")
    A(f"s_lshl_b32 s24, s3, 10\ns_add_u32 s24, s24, {L_CX}\nv_add_u32 v3, s24, v2")
    A("ds_write_b128 v3, v[4:7]")
    A(f"s_lshl_b32 s24, s3, 8\ns_add_u32 s24, s24, {L_CX}\nv_add_u32 v3, s24, v19")
    A("s_waitcnt lgkmcnt(0)\ns_barrier")
    for p in range(2):
        for i in range(4):
            A(f"ds_read_b128 {vr(XA+16*p+4*i)}, v3 offset:{2048*p+16*i}")
    A("s_waitcnt lgkmcnt(0)")
    gemv([XA, XB], [12, 68])
    A("v_lshrrev_b32 v3, 4, v0\nv_lshlrev_b32 v3, 7, v3\nv_and_b32 v4, 7, v0\nv_lshl_add_u32 v3, v4, 4, v3")
    A("v_bfe_u32 v4, v0, 3, 1\nv_lshl_add_u32 v3, v4, 9, v3")
    A(f"s_lshl_b32 s24, s3, 11\ns_add_u32 s24, s24, {L_QP}\nv_add_u32 v3, s24, v3")
    A("ds_write_b128 v3, v[12:15]\nds_write_b128 v3, v[68:71] offset:1024")
    A("s_waitcnt lgkmcnt(0)\ns_barrier")
    A(f"v_and_b32 v5, 31, v0\ns_lshl_b32 s24, s3, 9\ns_add_u32 s24, s24, {L_QP}\nv_lshl_add_u32 v3, v5, 4, s24")
    for w in range(4):
        A(f"ds_read_b128 {vr(72+4*w)}, v3 offset:{w*2048}")
    A(f"s_lshl_b32 s24, s3, 8\ns_add_u32 s24, s24, {L_OA}\nv_lshl_add_u32 v5, v5, 3, s24")
    A("s_waitcnt lgkmcnt(0)")
    for w in range(1, 4):
        for r in range(4):
            A(f"v_add_f32 v{72+r}, v{72+r}, v{72+4*w+r}")
    A("v_cvt_pk_bf16_f32 v6, v72, v73\nv_cvt_pk_bf16_f32 v7, v74, v75")
    A("ds_write_b64 v5, v[6:7]")
    A(f"v_lshrrev_b32 v3, 4, v0\nv_and_b32 v4, 3, v0\nv_lshlrev_b32 v5, 8, v4\nv_lshl_add_u32 v5, v3, 4, v5\nv_add_u32 v5, {L_OA}, v5")
    A("s_waitcnt lgkmcnt(0)\ns_barrier")
    for i in range(4):
        A(f"ds_read_b128 {vr(XA+4*i)}, v5 offset:{64*i}")

    def merge_w(T):
        for r in range(4):
            A(f"v_mov_b32_dpp v{4+4*(T>>2)+r}, v{72+4*T+r} {DPP_ID} row_mask:{1 << (T & 3):#x} bank_mask:0xf")
    for T in range(8):
        D = 72 + 4 * T
        for i in range(4):
            if T == 0:
                A(f"s_waitcnt lgkmcnt({3-i})")
            A(f"v_mfma_f32_16x16x32_bf16 {vr(D)}, {vr(XA+4*i)}, {ar((T*4+i)*4)}, {'0' if i == 0 else vr(D)}")
        if T >= 2:
            merge_w(T - 2)
    merge_w(6)
    merge_w(7)
    A(f"s_lshl_b32 s24, s26, 13\ns_lshl_b32 s25, s3, 11\ns_add_u32 s24, s24, s25\ns_add_u32 s24, s24, {WS_YA:#x}")
    A("buffer_store_dwordx4 v[4:7], v2, s[12:15], s24 offen sc1")
    A("buffer_store_dwordx4 v[8:11], v2, s[12:15], s24 offen offset:1024 sc1")
    signal(C_Y, 32)
    stamp(5)

    def final_reduce(red, out_off):
        A("v_permlane32_swap_b32 v4, v6\nv_permlane32_swap_b32 v5, v7")
        A("v_add_f32 v4, v4, v6\nv_add_f32 v5, v5, v7")
        A("v_permlane16_swap_b32 v4, v5\nv_add_f32 v4, v4, v5")
        A("v_add_f32_dpp v4, v4, v4 row_ror:8 row_mask:0xf bank_mask:0xf")
        A(f"ds_write_b32 v26, v4 offset:{red}\ns_waitcnt lgkmcnt(0)\ns_barrier")
        uid[0] += 1
        A(f"s_cmp_lg_u32 s3, 0\ns_cbranch_scc1 L_fr{uid[0]}")
        A(f"ds_read_b128 v[4:7], v27 offset:{red}\ns_waitcnt lgkmcnt(0)")
        A("v_add_f32 v4, v4, v5\nv_add_f32 v6, v6, v7\nv_add_f32 v4, v4, v6\nv_cvt_pk_bf16_f32 v4, v4, v4")
        A(f"buffer_store_short v4, v28, s[20:23], 0 offen offset:{out_off}")
        A(f"L_fr{uid[0]}:")

    def poll_data(loads, lo, n, sleep):
        uid[0] += 1
        u = uid[0]
        A(f"s_mov_b32 s24, {SPIN}\ns_branch L_pd{u}_in")
        A(f"L_pd{u}:")
        if sleep:
            A(f"s_sleep {sleep}")
        A(f"L_pd{u}_in:")
        loads()
        A("s_waitcnt vmcnt(0)")
        A(f"v_max_u32 v3, v{lo}, v{lo+1}")
        for k in range(2, n, 2):
            A(f"v_max3_u32 v3, v3, v{lo+k}, v{lo+k+1}")
        A(f"v_cmp_eq_u32 vcc, -1, v3\ns_sub_u32 s24, s24, 1\ns_cmp_eq_u32 s24, 0\ns_cbranch_scc1 L_pd{u}_x")
        A(f"s_and_b64 exec, exec, vcc\ns_cbranch_scc1 L_pd{u}")
        A(f"L_pd{u}_x:\ns_mov_b64 exec, -1")

    WT, OA_, PD, PA = 32, 40, 72, 104
    A("L_R:")
    if o["skipA"]:
        await_flag(C_Q)
    srd(20, P_OUT, 8192)
    A("v_lshrrev_b32 v3, 4, v0\nv_and_b32 v4, 7, v0\nv_lshl_add_u32 v5, v3, 3, v4")
    A(f"v_lshlrev_b32 v27, 4, v5\nv_add_u32 v27, {L_RED}, v27\ns_lshl_b32 s24, s3, 2\nv_add_u32 v26, s24, v27")
    A("v_lshlrev_b32 v28, 11, v3\nv_lshl_add_u32 v28, v4, 1, v28\ns_lshl_b32 s24, s74, 4\nv_add_u32 v28, s24, v28")
    A("v_lshrrev_b32 v5, 3, v0\ns_lshl_b32 s24, s3, 3\nv_add_u32 v5, s24, v5\nv_lshlrev_b32 v5, 13, v5\nv_lshl_add_u32 v30, v4, 4, v5")
    A("v_and_b32 v5, 3, v0\nv_mul_u32_u24 v29, 1536, v5\nv_bfe_u32 v5, v0, 2, 2\nv_min_u32 v5, 2, v5")
    A("v_lshl_add_u32 v29, v5, 8, v29\nv_lshl_add_u32 v29, v3, 4, v29")
    A("v_bfe_u32 v5, v0, 3, 2\nv_min_u32 v6, 5, v4\nv_lshl_add_u32 v5, v5, 3, v6\nv_lshlrev_b32 v31, 4, v5")
    if o["bwo_late"]:
        A("s_lshr_b32 s29, s74, 5\ns_lshl_b32 s29, s29, 9")
        bwo_stage(0, "s29", "R")
        A("s_waitcnt vmcnt(0)\ns_barrier")
        A("v_mov_b32 v16, v4")
        wo_transpose(0, HROW, 4, 128)
        A("v_mov_b32 v4, v16")
    A(f"s_lshl_b32 s29, s26, 9\ns_add_u32 s29, s29, {WS_BML:#x}")
    poll_data(lambda: A("buffer_load_dwordx2 v[8:9], v31, s[12:15], s29 offen sc1"), 8, 2, 16)
    red8 = ("quad_perm:[1,0,3,2]", "quad_perm:[2,3,0,1]", "row_half_mirror")
    A("v_mov_b32 v6, v8")
    for c in red8:
        A(f"v_max_f32_dpp v6, v6, v6 {c} row_mask:0xf bank_mask:0xf")
    A("v_sub_f32 v8, v8, v6\nv_exp_f32 v8, v8\nv_cmp_gt_u32 vcc, 6, v4\nv_cndmask_b32 v8, 0, v8, vcc\nv_mul_f32 v9, v8, v9")
    for c in red8:
        A(f"v_add_f32_dpp v9, v9, v9 {c} row_mask:0xf bank_mask:0xf")
    A("v_rcp_f32 v9, v9\nv_mul_f32 v8, v8, v9")
    A("v_lshrrev_b32 v3, 4, v0\nv_cmp_gt_u32 vcc, 3, v3\nv_cndmask_b32 v5, 6, v3, vcc\nv_add_u32 v6, 3, v3")
    A("v_lshlrev_b32 v5, 2, v5\nv_lshlrev_b32 v6, 2, v6")
    for st in range(2):
        for r in range(4):
            A(f"ds_bpermute_b32 v{WT+4*st+r}, v{5+st}, v8 offset:{32*r}")
    A("s_waitcnt lgkmcnt(0)")
    stamp(6)
    if not o["skipA"]:
        await_flag(C_Y)
    stamp(7)
    A(f"s_lshl_b32 s30, s74, 7\ns_add_u32 s24, s30, {WS_YA:#x}")
    A("buffer_load_dwordx4 v[4:7], v30, s[12:15], s24 offen sc1\ns_waitcnt vmcnt(0)")
    final_reduce(0, 0)
    stamp(8)
    A(f"s_mul_i32 s29, s26, 6144\ns_add_u32 s29, s29, {WS_OB:#x}")
    A(f"s_add_u32 s30, s30, {WS_YB:#x}")
    A("s_lshl_b32 s31, s26, 13\ns_lshr_b32 s24, s74, 5\ns_lshl_b32 s24, s24, 12\ns_add_u32 s31, s31, s24")
    A(f"s_lshl_b32 s24, s3, 10\ns_add_u32 s31, s31, s24\ns_add_u32 s31, s31, {WS_YB:#x}")

    def p_loads():
        for st in range(2):
            for i in range(4):
                A(f"buffer_load_dwordx4 {vr(OA_+16*st+4*i)}, v29, s[12:15], s29 offen offset:{768*st+64*i} sc1")
    poll_data(p_loads, OA_, 32, o["sl_p"])
    stamp(9)

    def p_merge(T):
        for r in range(4):
            A(f"v_mul_f32 v{PA+4*T+r}, v{WT+r}, v{PD+8*T+r}")
        for r in range(4):
            A(f"v_fmac_f32 v{PA+4*T+r}, v{WT+4+r}, v{PD+8*T+4+r}")

    def p_swap(a, b):
        for r in range(4):
            A(f"v_permlane32_swap_b32 v{PA+4*a+r}, v{PA+4*b+r}")
        for r in range(4):
            A(f"v_add_f32 v{PA+4*a+r}, v{PA+4*a+r}, v{PA+4*b+r}")
    order = (0, 2, 1, 3)
    for n, T in enumerate(order):
        for st in range(2):
            D = PD + 8 * T + 4 * st
            for i in range(4):
                A(f"v_mfma_f32_16x16x32_bf16 {vr(D)}, {vr(OA_+16*st+4*i)}, {ar(128+(T*4+i)*4)}, {'0' if i == 0 else vr(D)}")
        if n >= 1:
            p_merge(order[n - 1])
        if n == 2:
            p_swap(0, 2)
    p_merge(3)
    p_swap(1, 3)
    for r in range(4):
        A(f"v_permlane16_swap_b32 v{PA+r}, v{PA+4+r}")
    for r in range(4):
        A(f"v_add_f32 v{8+r}, v{PA+r}, v{PA+4+r}")
    A("buffer_store_dwordx4 v[8:11], v2, s[12:15], s31 offen sc1")
    stamp(10)
    poll_data(lambda: A("buffer_load_dwordx4 v[4:7], v30, s[12:15], s30 offen sc1"), 4, 4, 0)
    final_reduce(512, 1024)
    stamp(11)
    stamps_out()
    A("L_end:")
    A("s_endpgm")

    ST, SS, PP, TR, ACC = 32, 64, 80, 96, 128
    A("L_C:")
    code_prefetch("L_R", "L_last")
    A("s_sub_u32 s72, s2, 224\ns_add_u32 s74, s72, 32")
    head_of("s72")
    A("s_lshl_b32 s30, s72, 19")
    A("s_waitcnt lgkmcnt(0)")
    stamp(0)
    srd(12, P_WS, WS_SIZE)
    clear_inbox()
    srd(4, P_CKV, 1 << 19, add="s30")
    srd(16, P_DBG, 256)
    if not o["bwo_late"]:
        bwo_stage(2 * CTILE, 512, "C")
    A(f"s_lshl_b32 s32, s3, 13\ns_mul_i32 s34, s3, {8*CROW}")

    def c_dma():
        A("s_add_u32 m0, s33, s34")
        for r in range(8):
            A(f"buffer_load_dwordx4 v2, s[4:7], s32 offen {o['wpr']} lds")
            if r < 7:
                A(f"s_add_u32 s32, s32, 1024\ns_add_u32 m0, m0, {CROW}")
        A(f"s_add_u32 s32, s32, {32768 - 7*1024}")
    if not o["skipA"]:
        for t in range(2):
            A(f"s_mov_b32 s33, {t*CTILE}")
            c_dma()
    signal(C_Q, 64)
    if not o["bwo_late"]:
        wo_transpose(2 * CTILE, HROW, 4, 128)
        A("s_waitcnt lgkmcnt(0)\ns_barrier")
    if o["skipA"]:
        A("s_branch L_R")
    A(f"s_mov_b32 s33, {2*CTILE}")
    c_dma()
    A("v_and_b32 v3, 31, v0\nv_lshrrev_b32 v4, 5, v0")
    A(f"v_mul_u32_u24 v18, {CROW}, v3\nv_lshl_add_u32 v18, v4, 4, v18\nv_add_u32 v18, {3*CTILE}, v18")
    A("v_and_b32 v5, 16, v0\nv_and_b32 v6, 3, v0\nv_lshl_add_u32 v5, v6, 2, v5\nv_bfe_u32 v7, v0, 2, 2\nv_add_u32 v5, v5, v7")
    A(f"v_mul_u32_u24 v19, {CROW}, v5\nv_lshl_add_u32 v19, v4, 4, v19")
    A(f"v_lshl_add_u32 v5, v7, 2, v4\nv_mul_u32_u24 v20, {CROW}, v5\nv_lshl_add_u32 v20, v6, 3, v20")
    A("v_bfe_u32 v5, v0, 4, 1\nv_lshl_add_u32 v20, v5, 5, v20\ns_lshl_b32 s24, s3, 8\nv_add_u32 v20, s24, v20")
    await_flag(C_Q)
    stamp(1)
    A(f"s_lshr_b32 s28, s72, 3\ns_lshl_b32 s24, s28, 15\ns_lshl_b32 s25, s3, 13\ns_add_u32 s24, s24, s25\ns_add_u32 s24, s24, {WS_QA:#x}")
    for r in range(8):
        A(f"buffer_load_dwordx4 {vr(ST+4*r)}, v2, s[12:15], s24 offen offset:{(r & 3)*1024} sc1")
        if r == 3:
            A("s_add_u32 s24, s24, 4096")
    A(f"s_add_u32 s24, s34, {3*CTILE}\nv_add_u32 v3, s24, v2")
    for r in range(8):
        A(f"s_waitcnt vmcnt({7-r})\nds_write_b128 v3, {vr(ST+4*r)} offset:{r*CROW}")
    A("s_waitcnt lgkmcnt(0)\ns_barrier")
    for k in range(32):
        A(f"ds_read_b128 {ar(4*k)}, v18 offset:{32*k}")
    for r in range(64):
        A(f"v_mov_b32 v{ACC+r}, 0")
    A("v_mov_b32 v22, 0xff800000\nv_mov_b32 v23, 0")
    A(f"s_mov_b32 s27, 0\ns_mov_b32 s33, {3*CTILE}\ns_mov_b32 s35, 0")
    A("s_waitcnt lgkmcnt(0)")
    stamp(2)
    A("L_CT:")
    A("s_waitcnt vmcnt(16)\ns_barrier")
    c_dma()
    A("v_add_u32 v24, s35, v19\nv_add_u32 v25, s35, v20")
    A(f"s_mov_b32 s33, s35\ns_add_u32 s35, s35, {CTILE}\ns_cmp_eq_u32 s35, {4*CTILE}\ns_cselect_b32 s35, 0, s35")
    reads = [("q", k) for k in range(32)] + [("t", k) for k in range(16)]

    def c_read(n):
        kind, k = reads[n]
        if kind == "q":
            A(f"ds_read_b128 {vr(ST+4*(k & 7))}, v24 offset:{32*k}")
        else:
            ct, ks, z = k >> 2, (k >> 1) & 1, k & 1
            A(f"ds_read_b64_tr_b16 {vr(TR+2*k, 2)}, v25 offset:{(16*ks+2*z)*CROW + 64*ct}")
    for n in range(7):
        c_read(n)
    issued = 7
    for k in range(32):
        A(f"s_waitcnt lgkmcnt({issued-k-1})")
        A(f"v_mfma_f32_32x32x16_bf16 {vr(SS,16)}, {vr(ST+4*(k & 7))}, {ar(4*k)}, {'0' if k == 0 else vr(SS,16)}")
        for _ in range(1 if issued < 32 else 2):
            c_read(issued)
            issued += 1
    while issued < len(reads):
        c_read(issued)
        issued += 1
    A(f"v_max3_f32 v3, v{SS}, v{SS+1}, v22")
    for r in range(2, 16, 2):
        A(f"v_max3_f32 v3, v3, v{SS+r}, v{SS+r+1}")
    A("v_mov_b32 v4, v3\nv_permlane32_swap_b32 v3, v4\nv_max_f32 v3, v3, v4")
    A("v_sub_f32 v4, v22, v3\nv_exp_f32 v4, v4\nv_mov_b32 v22, v3")
    for r in range(16):
        A(f"v_sub_f32 v{SS+r}, v{SS+r}, v3")
    for r in range(16):
        A(f"v_exp_f32 v{SS+r}, v{SS+r}")
    for r in range(0, 64, 2):
        A(f"v_pk_mul_f32 {vr(ACC+r,2)}, {vr(ACC+r,2)}, v[4:5] op_sel_hi:[1,0]")
    A(f"v_fma_f32 v23, v23, v4, v{SS}")
    for r in range(1, 16):
        A(f"v_add_f32 v23, v23, v{SS+r}")
    for i in range(8):
        A(f"v_cvt_pk_bf16_f32 v{PP+i}, v{SS+2*i}, v{SS+2*i+1}")
    A("s_waitcnt lgkmcnt(0)")
    for ks in range(2):
        for ct in range(4):
            A(f"v_mfma_f32_32x32x16_bf16 {vr(ACC+16*ct,16)}, {vr(TR+8*ct+4*ks)}, {vr(PP+4*ks)}, {vr(ACC+16*ct,16)}")
    A("s_add_u32 s27, s27, 1\ns_cmp_lt_u32 s27, 16\ns_cbranch_scc1 L_CT")
    stamp(3)
    A("s_waitcnt vmcnt(0)\ns_barrier")
    A("v_mov_b32 v4, v23\nv_permlane32_swap_b32 v23, v4\nv_add_f32 v23, v23, v4")
    A("v_and_b32 v3, 31, v0\nv_lshlrev_b32 v5, 8, v3")
    A(f"s_lshl_b32 s24, s72, 3\ns_add_u32 s24, s24, {WS_PML:#x}")
    A("s_cmp_lg_u32 s3, 0\ns_cbranch_scc1 L_C_ml")
    A("buffer_store_dwordx2 v[22:23], v5, s[12:15], s24 offen sc1")
    A("L_C_ml:")
    TROW = 272
    A(f"v_lshrrev_b32 v4, 5, v0\nv_mul_u32_u24 v3, {TROW}, v3\nv_lshl_add_u32 v3, v4, 3, v3")
    A(f"s_mul_i32 s24, s3, {32*TROW}\nv_add_u32 v3, s24, v3")
    for ct in range(4):
        for q in range(4):
            r = ACC + 16 * ct + 4 * q
            d = ST + 2 * ((ct * 4 + q) & 7)
            A(f"v_cvt_pk_bf16_f32 v{d}, v{r}, v{r+1}\nv_cvt_pk_bf16_f32 v{d+1}, v{r+2}, v{r+3}")
            A(f"ds_write_b64 v3, {vr(d,2)} offset:{64*ct+16*q}")
    A(f"v_lshrrev_b32 v4, 4, v0\nv_and_b32 v5, 15, v0\nv_mul_u32_u24 v3, {TROW}, v4\nv_lshl_add_u32 v3, v5, 4, v3\nv_add_u32 v3, s24, v3")
    A("v_lshlrev_b32 v4, 15, v4\nv_lshl_add_u32 v4, v5, 4, v4")
    A("s_waitcnt lgkmcnt(0)")
    for k in range(8):
        A(f"ds_read_b128 {vr(SS+4*k)}, v3 offset:{4*k*TROW}")
    A(f"s_lshl_b32 s24, s72, 10\ns_lshl_b32 s25, s3, 8\ns_add_u32 s24, s24, s25\ns_add_u32 s24, s24, {WS_PART:#x}")
    for k in range(8):
        A(f"s_waitcnt lgkmcnt({7-k})")
        A(f"buffer_store_dwordx4 {vr(SS+4*k)}, v4, s[12:15], s24 offen sc1")
        A("s_add_u32 s24, s24, 0x20000")
    signal(C_P, 32)
    stamp(4)

    A("s_branch L_R")
    A("L_last:")
    A("s_endpgm")

    ref = open(os.path.join(os.path.dirname(os.path.abspath(__file__)), "..", NAME + ".s.ref")).read().splitlines()
    head = [l for l in ref if l.startswith(";") and "@launch" not in l]
    head.append(f"; @launch grid=(256,1,1) block=(256,1,1) lds={LDS_BYTES}")
    pre = f'.amdgcn_target "amdgcn-amd-amdhsa--gfx950"\n.text\n.globl {NAME}_kernel\n.p2align 8\n.type {NAME}_kernel,@function\n'
    post = f""".section .rodata,"a"
.p2align 6
.amdhsa_kernel {NAME}_kernel
  .amdhsa_next_free_vgpr 448
  .amdhsa_next_free_sgpr 102
  .amdhsa_accum_offset 256
  .amdhsa_group_segment_fixed_size 0
  .amdhsa_kernarg_size 112
  .amdhsa_user_sgpr_count 2
  .amdhsa_user_sgpr_kernarg_segment_ptr 1
  .amdhsa_system_sgpr_workgroup_id_x 1
  .amdhsa_float_denorm_mode_32 3
.end_amdhsa_kernel
"""
    return "\n".join(head) + "\n" + pre + A.text() + post


if __name__ == "__main__":
    kw = {}
    out = None
    for a in sys.argv[1:]:
        if "=" in a:
            k, v = a.split("=", 1)
            kw[k] = int(v) if v.lstrip("-").isdigit() else v
        else:
            out = a
    s = gen(**kw)
    if out:
        open(out, "w").write(s)
    else:
        sys.stdout.write(s)
```

```python
import sys, math
from hb import *
from hb import _hip

def gen(depth=8, chunk=1, seqb=1, seqh=1, stag=0, flags="nt", nwg=192, order="kv", xbits=None, xst=0, lst=0, xmask=255):
    per_head = nwg // 32
    W = per_head * seqb * seqh
    nchunks = -(-(1024 // chunk) // W)
    nl = nchunks * chunk
    nseq = seqb * seqh
    L = []
    A = L.append
    A("; @launch grid=(256,1,1) block=(256,1,1) lds=82944")
    A('.amdgcn_target "amdgcn-amd-amdhsa--gfx950"\n.text\n.globl mb_kernel\n.p2align 8\n.type mb_kernel,@function\nmb_kernel:')
    A("s_memrealtime s[20:21]\ns_load_dwordx4 s[4:7], s[0:1], 0\ns_load_dwordx2 s[16:17], s[0:1], 16")
    A(f"s_cmp_ge_u32 s2, {nwg}\ns_cbranch_scc1 L_end")
    A(f"s_and_b32 s3, s2, 7\ns_bitcmp0_b32 {xmask}, s3\ns_cbranch_scc1 L_end")
    A("v_lshrrev_b32 v1, 6, v0\ns_nop 0\nv_readfirstlane_b32 s3, v1\nv_and_b32 v0, 63, v0\nv_lshlrev_b32 v1, 4, v0\nv_mov_b32 v2, 0")
    A("s_lshl_b32 s40, s2, 2\ns_add_u32 s40, s40, s3")
    A("s_and_b32 s42, s2, 7\ns_lshr_b32 s43, s2, 3\ns_lshl_b32 s43, s43, 2\ns_add_u32 s43, s43, s3")
    A(f"s_mul_hi_u32 s44, s43, {-(-(1 << 32) // W)}\ns_mul_i32 s45, s44, {W}\ns_sub_u32 s45, s43, s45")
    gb = 4 // seqb
    A(f"s_and_b32 s46, s44, {gb-1}\ns_mul_i32 s46, s46, {seqb}")
    A(f"s_lshr_b32 s47, s44, {int(math.log2(gb))}\ns_mul_i32 s47, s47, {seqh}\ns_lshl_b32 s48, s42, 2\ns_add_u32 s47, s47, s48")
    A("s_lshl_b32 s46, s46, 5\ns_add_u32 s46, s46, s47")
    if xbits is not None:
        rest = [b for b in range(7) if b not in xbits]
        A("s_mov_b32 s46, 0")
        for n, b in enumerate(xbits):
            A(f"s_bfe_u32 s47, s42, {n | (1 << 16)}\ns_lshl_b32 s47, s47, {b}\ns_or_b32 s46, s46, s47")
        for n, b in enumerate(rest):
            A(f"s_bfe_u32 s47, s44, {n | (1 << 16)}\ns_lshl_b32 s47, s47, {b}\ns_or_b32 s46, s46, s47")
    cstride = chunk * 1024 * W
    span = cstride * nchunks
    A(f"s_mul_i32 s49, s45, {chunk*1024}")
    A(f"s_mul_i32 s31, s46, {stag}\ns_mov_b32 s33, {-(-(1<<32)//nchunks)}\ns_mul_hi_u32 s32, s31, s33\ns_mul_i32 s32, s32, {nchunks}\ns_sub_u32 s31, s31, s32")
    if xst:
        A(f"s_lshl_b32 s47, s42, 2\ns_lshr_b32 s47, 0x7d28f5b0, s47\ns_and_b32 s47, s47, 15\ns_mul_i32 s31, s47, {xst}")
    if lst:
        A(f"s_mul_i32 s47, s46, 0x9e37\ns_lshr_b32 s47, s47, 5\ns_and_b32 s47, s47, 15\ns_mul_i32 s31, s47, {lst}")
    A(f"s_mul_i32 s31, s31, {cstride}")
    A("s_waitcnt lgkmcnt(0)\ns_mov_b32 s24, s20\ns_mov_b32 s10, 0x100000\ns_mov_b32 s11, 0x20000")
    A("s_mov_b32 s50, 0\ns_mov_b32 s51, 0")
    def setsrd():
        if order == "kv":
            A(f"s_cmp_ge_u32 s50, {nseq}\ns_cselect_b64 s[12:13], s[6:7], s[4:5]\ns_and_b32 s52, s50, {nseq-1}")
        else:
            A("s_bitcmp1_b32 s50, 0\ns_cselect_b64 s[12:13], s[6:7], s[4:5]\ns_lshr_b32 s52, s50, 1")
        A(f"s_and_b32 s53, s52, {seqb-1}\ns_lshl_b32 s53, s53, 5\ns_lshr_b32 s52, s52, {int(math.log2(seqb))}\ns_add_u32 s52, s52, s53\ns_add_u32 s52, s52, s46")
        A("s_and_b32 s52, s52, 127\ns_lshl_b32 s52, s52, 20\ns_add_u32 s8, s12, s52\ns_addc_u32 s9, s13, 0")
        A(f"s_cmp_ge_u32 s50, {2*nseq}\ns_cselect_b32 s10, 0, s10")
    setsrd()
    uid = [0]
    def load(slot, i):
        A("s_add_u32 s26, s49, s31")
        A(f"buffer_load_dwordx4 v[{4+4*slot}:{7+4*slot}], v1, s[8:11], s26 offen offset:{(i % chunk)*1024} {flags}")
        if i % chunk == chunk - 1:
            uid[0] += 1
            A(f"s_add_u32 s31, s31, {cstride}\ns_cmp_ge_u32 s31, {span}\ns_cselect_b32 s35, {span}, 0\ns_sub_u32 s31, s31, s35")
            A(f"s_add_u32 s51, s51, 1\ns_cmp_lt_u32 s51, {nchunks}\ns_cbranch_scc1 L_n{uid[0]}")
            A("s_mov_b32 s51, 0\ns_add_u32 s50, s50, 1")
            setsrd()
            A(f"L_n{uid[0]}:")
    U = depth * chunk // math.gcd(depth, chunk)
    for i in range(depth):
        load(i, i)
    iters = -(-(2 * nseq * nl) // U)
    A(f"s_mov_b32 s22, {iters}\nL_k:")
    for i in range(U):
        A(f"s_waitcnt vmcnt({depth-1})")
        A(f"v_xor_b32 v2, v2, v{4+4*(i % depth)}")
        load(i % depth, i + depth)
    A("s_sub_u32 s22, s22, 1\ns_cmp_lg_u32 s22, 0\ns_cbranch_scc1 L_k")
    A("s_waitcnt vmcnt(0)\ns_memrealtime s[20:21]\ns_waitcnt lgkmcnt(0)")
    r = 4 + 4 * depth
    A(f"v_mov_b32 v{r}, s24\nv_mov_b32 v{r+1}, 0\nv_mov_b32 v{r+2}, s20\nv_mov_b32 v{r+3}, v2")
    A("s_lshl_b32 s40, s40, 4\nv_mov_b32 v3, s40\nv_cmp_eq_u32 vcc, 0, v0\ns_and_saveexec_b64 s[28:29], vcc")
    A(f"global_store_dwordx4 v3, v[{r}:{r+3}], s[16:17]\nL_end:\ns_endpgm")
    A(f""".section .rodata,"a"
.p2align 6
.amdhsa_kernel mb_kernel
  .amdhsa_next_free_vgpr {r+4}
  .amdhsa_next_free_sgpr 64
  .amdhsa_accum_offset {r+4}
  .amdhsa_group_segment_fixed_size 0
  .amdhsa_kernarg_size 24
  .amdhsa_user_sgpr_count 2
  .amdhsa_user_sgpr_kernarg_segment_ptr 1
  .amdhsa_system_sgpr_workgroup_id_x 1
.end_amdhsa_kernel""")
    return "\n".join(L) + "\n"

def main():
    T = 128 << 20
    cfgs = eval(open(sys.argv[1]).read())
    cos = [assemble(gen(**c), "mb_kernel", 3, f"mb5_{i}") for i, c in enumerate(cfgs)]
    if "--asm-only" in sys.argv:
        print("ok"); sys.exit()
    ks = [AsmKernel(co, "mb_kernel") for co in cos]
    st = DeviceBuffer(1 << 20); rf = ReadFlush()
    keep = []
    NA = int(sys.argv[2]) if len(sys.argv) > 2 else 8
    tab = np.zeros((len(cfgs), NA, 2))
    for a in range(NA):
        keep.append([DeviceBuffer.handed(x) for x in (4096, 16 << 20, 4 << 20, 4 << 20, (1 + 3 * a) << 21)])
        K = DeviceBuffer.handed(T); V = DeviceBuffer.handed(T)
        keep.append([K, V, DeviceBuffer.handed(512 << 20)])
        memset(K, 3); memset(V, 5)
        ka = struct.pack("<3Q", K.ptr, V.ptr, st.ptr)
        res = [[] for _ in ks]
        for rep in range(9):
            for i, k in enumerate(ks):
                n = cfgs[i].get("nwg", 192)
                rf(); memset(st, 0)
                k.launch((256, 1, 1), (256, 1, 1), ka, 82944)
                sync()
                s = read(st, np.uint32, n * 16).reshape(n * 4, 4).astype(np.int64)
                s = s[s[:, 0] != 0]; d = ((s[:, 2] - s[:, 0].min()) & 0xffffffff) / 100.
                res[i].append((d.max(), d.mean()))
        for i in range(len(ks)):
            tab[i, a] = np.median(np.array(res[i][1:]), 0)
    np.set_printoptions(linewidth=200, precision=1, suppress=True)
    for i, c in enumerate(cfgs):
        print(f"{str(c):70s} max {tab[i,:,0]} avg {tab[i,:,0].mean():.2f} | mean {tab[i,:,1]} avg {tab[i,:,1].mean():.2f}")

if __name__ == '__main__':
    main()
```

```python
import math
import os
import struct
import sys

sys.path.insert(0, os.path.dirname(os.path.abspath(__file__)))
from asmlib import Asm

NAME = "concat_heads__compressed_kv_cla__mha_block_cached__decode"

DEF = dict(
    chunk=1,
    nbank=1,
    nw0=15,
    nwait=15,
    kfull=99,
    nwv=15,
    vfull=99,
    bar=3,
    kv="nt",
    wpr="nt",
    wtr=24,
    xcc=3,
    xi_it=8,
    pf='bqkouvc',
    pf2='', pf2_it=5, cgm=1, obp='', h_fin=0, rpol='sc1', ypol='sc1', opol='', hlp=2, h_lq=6, h_cw=17, h_th=36, h_sl=4, h_it=1, h_u=2, hg=2, cpol='', rot=0, fr2=1, cil=1, y16=1, obc=0,
    cbw=1, ctl=0, clin=0, pw=0, spc=63, clr_at=0, sl_ml=64,
    pdep=6,
    w1='', w2='nt', w3='nt',
    hmap=(0, 2, 3),
    lead=16,
    cpf=1,
    sl_cnt=4, sl_p=0,
    stamps=0, trace=0, diag=0, drop='', probe=None,
)

WS_QA, WS_PART, WS_PML, WS_YA, WS_QB = 0x0, 0x20000, 0x120000, 0x124000, 0x164000
WS_OB, WS_BML, WS_XI, WS_YB, WS_CLR_END = 0x180000, 0x1b0000, 0x1b6000, 0x1b7000, 0x1f7000
WS_STAMP = 0x300000
WS_SIZE = 0x400000
WS_FLAG = 0x170000
C_Q, C_P, C_Y, C_QB = 0, 4, 8, 128

WROW = 1056
L_MISC = 128 * WROW
L_QP, L_OA, L_RED, L_CX = L_MISC, L_MISC + 8192, L_MISC + 9216, L_MISC + 10240
HROW = 544
LDS_BYTES = L_MISC + 14336
CROW = WROW
CTILE = 32 * CROW

SCALE = struct.unpack("<I", struct.pack("<f", math.log2(math.e) / math.sqrt(128.0)))[0]
SPIN = 1 << 18

P_AX, P_CKV, P_AWQ, P_AWUK, P_AWUV, P_AWO, P_BX, P_K, P_V, P_BWQ, P_BWO, P_OUT, P_DBG, P_WS = range(36, 64, 2)
DPP_ID = "quad_perm:[0,1,2,3]"


def gen(**kw):
    o = dict(DEF)
    o.update(kw)
    A = Asm()
    chunk, nwait = o["chunk"], o["nwait"]
    G = o["hg"]
    NS, HN = 8 // G, 32 // G
    LNS = int(math.log2(NS))
    uid = [0]
    role = ['B']

    def vr(b, n=4):
        return f"v[{b}:{b+n-1}]"

    def ar(b, n=4):
        return f"a[{b}:{b+n-1}]"

    def srd(s, ptr, size, add=None):
        if add is None:
            A(f"s_mov_b32 s{s}, s{ptr}\ns_mov_b32 s{s+1}, s{ptr+1}")
        else:
            A(f"s_add_u32 s{s}, s{ptr}, {add}\ns_addc_u32 s{s+1}, s{ptr+1}, 0")
        A(f"s_mov_b32 s{s+2}, {size:#x}\ns_mov_b32 s{s+3}, 0x20000")

    def dstamp(d, k):
        if o["diag"] == d:
            stamp(k, True)

    def stamp(k, force=False):
        if o["stamps"] and (force or not (o["diag"] and 6 <= k <= 10 and role[0] != "B")):
            A(f"s_memrealtime s[{76+2*k}:{77+2*k}]\ns_waitcnt lgkmcnt(0)")

    def trace(base):
        if o["trace"]:
            A(f"s_memrealtime s[100:101]\ns_add_u32 m0, s27, {base}\ns_waitcnt lgkmcnt(0)\nv_writelane_b32 v59, s100, m0")

    def trace_out():
        if o["trace"]:
            A(f"s_mov_b64 exec, -1\ns_lshl_b32 s24, s2, 2\ns_add_u32 s24, s24, s3\ns_lshl_b32 s24, s24, 8\ns_add_u32 s24, s24, {WS_STAMP + 0x10000:#x}")
            A("v_lshlrev_b32 v1, 2, v0\nbuffer_store_dword v59, v1, s[12:15], s24 offen")

    def probe_out():
        ka, ra, kb, rb, mult = o["probe"].split(",")
        sreg = lambda k: 100 if k == "e" else 76 + 2 * int(k)
        uid[0] += 1
        u = uid[0]
        A(f"s_cmp_lg_u32 s3, 0\ns_cbranch_scc1 L_pr{u}")
        A("s_mov_b64 exec, 1")
        for k, rs, off, neg in ((ka, ra, 16, False), (kb, rb, 20, True)):
            if role[0] == "B":
                if "B" not in rs:
                    continue
                A(f"s_not_b32 s24, s{sreg(k)}" if neg else f"s_mov_b32 s24, s{sreg(k)}")
            else:
                A(f"s_not_b32 s24, s{sreg(k)}" if neg else f"s_mov_b32 s24, s{sreg(k)}")
                A("s_cmp_lt_u32 s74, 32")
                A(f"s_cselect_b32 s24, {'s24' if 'W' in rs else 0}, {'s24' if 'C' in rs else 0}")
            A(f"v_mov_b32 v1, s24\nbuffer_atomic_umax v1, off, s[16:19], 0 offset:{off}\ns_waitcnt vmcnt(0)")
        A("v_mov_b32 v1, 1\nbuffer_atomic_add v1, off, s[16:19], 0 offset:24 sc0\ns_waitcnt vmcnt(0)")
        A(f"v_readfirstlane_b32 s24, v1\ns_cmp_lg_u32 s24, 255\ns_cbranch_scc1 L_pr{u}")
        A("buffer_load_dwordx2 v[4:5], off, s[16:19], 0 offset:16 sc1\ns_waitcnt vmcnt(0)")
        A("v_readfirstlane_b32 s24, v4\nv_readfirstlane_b32 s25, v5\ns_not_b32 s25, s25\ns_sub_u32 s24, s24, s25\ns_min_u32 s24, s24, 20000")
        A("v_mov_b32 v1, s24\nbuffer_store_dword v1, off, s[16:19], 0 offset:28")
        A(f"s_mul_i32 s24, s24, {mult}\ns_memrealtime s[28:29]\ns_waitcnt lgkmcnt(0)")
        A(f"L_pr{u}_w:\ns_memrealtime s[30:31]\ns_waitcnt lgkmcnt(0)\ns_sub_u32 s25, s30, s28\ns_cmp_lt_u32 s25, s24\ns_cbranch_scc1 L_pr{u}_w")
        A(f"L_pr{u}:")

    def stamps_out():
        if o["probe"]:
            probe_out()
        elif o["stamps"]:
            A("s_lshl_b32 s24, s2, 2\ns_add_u32 s24, s24, s3\ns_lshl_b32 s24, s24, 6")
            A(f"s_add_u32 s24, s24, {WS_STAMP:#x}")
            A("s_mov_b64 exec, 1")
            for k in range(12):
                A(f"v_mov_b32 v1, s{76+2*k}")
                A(f"buffer_store_dword v1, off, s[12:15], s24 offset:{4*k}")
            A("s_getreg_b32 s25, hwreg(HW_REG_XCC_ID, 0, 4)\nv_mov_b32 v1, s25")
            A("buffer_store_dword v1, off, s[12:15], s24 offset:48")
            A("s_getreg_b32 s25, hwreg(HW_REG_HW_ID)\nv_mov_b32 v1, s25")
            A("buffer_store_dword v1, off, s[12:15], s24 offset:52")

    def signal(cnt, n, also=None):
        uid[0] += 1
        u = uid[0]
        A("s_waitcnt vmcnt(0)\ns_barrier")
        if cnt == C_Q:
            dstamp(1, 9)
        A(f"s_cmp_lg_u32 s3, 0\ns_cbranch_scc1 L_sig{u}")
        A("s_mov_b64 exec, 1\nv_mov_b32 v3, 1")
        if also is not None:
            A(f"v_mov_b32 v4, 1\nbuffer_atomic_add v4, off, s[16:19], 0 offset:{also}")
        A(f"buffer_atomic_add v3, off, s[16:19], 0 offset:{cnt} sc0")
        A("s_waitcnt vmcnt(0)\nv_readfirstlane_b32 s24, v3\ns_mov_b64 exec, -1")
        if cnt == C_Q:
            dstamp(1, 10)
        A(f"s_and_b32 s24, s24, {n-1}\ns_cmp_lg_u32 s24, {n-1}\ns_cbranch_scc1 L_sig{u}")
        A(f"v_lshlrev_b32 v4, 7, v0\nv_mov_b32 v3, 1\ns_mov_b32 s24, {WS_FLAG:#x}")
        A(f"buffer_store_dword v3, v4, s[12:15], s24 offen offset:{cnt} sc1")
        A(f"L_sig{u}:")

    def poll_word(load, v, val, done, sleep, cmp="eq"):
        uid[0] += 1
        u = uid[0]
        A(f"s_mov_b32 s24, {SPIN}\ns_mov_b64 exec, 1")
        A(f"L_aw{u}:")
        A(load)
        A(f"s_waitcnt vmcnt(0)\nv_readfirstlane_b32 s25, v{v}")
        A(f"s_cmp_{cmp}_u32 s25, {val}\ns_cbranch_scc1 {done}")
        A(f"s_sleep {sleep}\ns_sub_u32 s24, s24, 1\ns_cmp_lg_u32 s24, 0\ns_cbranch_scc1 L_aw{u}")

    def await_flag(cnt):
        uid[0] += 1
        x = f"L_awx{uid[0]}"
        A(f"s_cmp_lg_u32 s3, 0\ns_cbranch_scc1 {x}")
        poll_word(f"buffer_load_dword v1, off, s[12:15], s73 offset:{cnt} sc1", 1, 1, x, o["sl_cnt"])
        A(f"{x}:\ns_mov_b64 exec, -1\ns_barrier")

    def code_prefetch(lo, hi, back=True, sr=20):
        if not o["cpf"]:
            return
        uid[0] += 1
        A(f"s_getpc_b64 s[{sr}:{sr+1}]\nL_pc{uid[0]}:")
        if back:
            A(f"s_sub_u32 s{sr}, s{sr}, L_pc{uid[0]}-{lo}\ns_subb_u32 s{sr+1}, s{sr+1}, 0")
        else:
            A(f"s_add_u32 s{sr}, s{sr}, {lo}-L_pc{uid[0]}\ns_addc_u32 s{sr+1}, s{sr+1}, 0")
        A(f"s_mov_b32 s{sr+2}, {hi}-{lo}\ns_mov_b32 s{sr+3}, 0x20000")
        A("v_lshl_add_u32 v3, v0, 2, s3\nv_lshlrev_b32 v3, 7, v3")
        A(f"buffer_load_dword v17, v3, s[{sr}:{sr+3}], 0 offen")

    MASK, SELE, SELO = 20, 24, 28
    WB = 128

    def make_masks(sel=True):
        A("v_and_b32 v3, 1, v0\nv_lshlrev_b32 v3, 4, v3\nv_mov_b32 v4, 0xffff\nv_lshlrev_b32 v4, v3, v4")
        A("v_bfe_u32 v3, v0, 1, 2")
        for i in range(4):
            A(f"v_cmp_eq_u32 vcc, {i}, v3\nv_cndmask_b32 v{MASK+i}, 0, v4, vcc")
        if sel:
            A("v_mov_b32 v3, 0x0c0c0c0c\ns_mov_b32 s24, 0x01000100\ns_mov_b32 s25, 0x03020302")
            for i in range(4):
                A(f"v_bfi_b32 v{SELE+i}, v{MASK+i}, s24, v3\nv_bfi_b32 v{SELO+i}, v{MASK+i}, s25, v3")

    def gemv(xs, accs, wait=None, after=None, pre=None):
        for j in range(32):
            sel = SELO if j & 1 else SELE
            if pre:
                pre(j)
            for p, x in enumerate(xs):
                for i in range(4):
                    A(f"v_perm_b32 v{(8, 4)[p]+i}, v{x+j//2}, v{x+j//2}, v{sel+i}")
            if wait:
                wait(j)
            for p, acc in enumerate(accs):
                A(f"v_mfma_f32_16x16x32_bf16 {vr(acc)}, {vr(WB+4*j)}, {vr((8, 4)[p])}, {'0' if j == 0 else vr(acc)}")
            if after:
                after(j)

    def q_reduce(accs, rd, dst, tmp):
        A("v_lshrrev_b32 v3, 4, v0\nv_lshlrev_b32 v3, 7, v3\nv_and_b32 v4, 7, v0\nv_lshl_add_u32 v3, v4, 2, v3")
        A("v_bfe_u32 v4, v0, 3, 1\nv_lshl_add_u32 v3, v4, 9, v3")
        A(f"s_lshl_b32 s24, s3, 11\ns_add_u32 s24, s24, {L_QP}\nv_add_u32 v3, s24, v3")
        for p, acc in enumerate(accs):
            for r in range(4):
                A(f"ds_write_b32 v3, v{acc+r} offset:{p*1024 + r*32}")
        A("s_waitcnt lgkmcnt(0)\ns_barrier")
        for w in range(4):
            A(f"ds_read_b128 {vr(tmp+8*w)}, v{rd} offset:{w*2048}")
            A(f"ds_read_b128 {vr(tmp+8*w+4)}, v{rd} offset:{w*2048+16}")
        for w in range(1, 4):
            A(f"s_waitcnt lgkmcnt({6-2*w})")
            for e in range(8):
                A(f"v_add_f32 v{tmp+e}, v{tmp+e}, v{tmp+8*w+e}")
        for i in range(4):
            A(f"v_cvt_pk_bf16_f32 v{dst+i}, v{tmp+2*i}, v{tmp+2*i+1}")

    def diag_sum(D, y, t):
        src = D + y
        for a in range(4):
            if a != y:
                A(f"v_add_f32_dpp v{t}, v{D+a}, v{src} quad_perm:[{a},{a},{a},{a}] row_mask:0xf bank_mask:0xf")
                src = t

    def quad_masks():
        for y in range(1, 4):
            A(f"s_mov_b32 s{62+2*y}, {0x11111111 << y:#x}\ns_mov_b32 s{63+2*y}, {0x11111111 << y:#x}")

    def wave_reduce(op, v, sdst):
        for c in ("row_ror:8", "row_ror:4", "row_ror:2", "row_ror:1"):
            A(f"{op}_dpp v{v}, v{v}, v{v} {c} row_mask:0xf bank_mask:0xf")
        A(f"{op}_dpp v{v}, v{v}, v{v} row_bcast:15 row_mask:0xa bank_mask:0xf")
        A(f"{op}_dpp v{v}, v{v}, v{v} row_bcast:31 row_mask:0xc bank_mask:0xf")
        A(f"v_readlane_b32 s{sdst}, v{v}, 63")

    def wo_stage(row, lim, tag, twice):
        A(f"s_mov_b32 s70, 0\nL_wo{tag}:")
        if twice:
            A("s_and_b32 s24, s70, 1\ns_lshl_b32 s24, s24, 4\ns_and_b32 s25, s70, 4\ns_lshl_b32 s25, s25, 1\ns_or_b32 s24, s24, s25")
            A("s_bfe_u32 s25, s70, 0x10001\ns_or_b32 s24, s24, s25")
        else:
            A("s_and_b32 s24, s70, 3\ns_lshl_b32 s24, s24, 1\ns_lshr_b32 s25, s70, 2\ns_or_b32 s24, s24, s25")
        A("s_lshl_b32 s24, s24, 10\ns_add_u32 s24, s24, s33")
        A(f"s_mul_i32 s25, s70, {4*row}\ns_add_u32 m0, s25, s34")
        for r in range(4):
            A(f"s_waitcnt vmcnt({lim})")
            A(f"buffer_load_dwordx4 v2, s[8:11], s24 offen {o['wpr']} lds")
            if r < 3:
                A(f"s_add_u32 m0, m0, {row}\ns_add_u32 s24, s24, {2048 if twice else 8192}")
        A(f"s_add_u32 s70, s70, 1\ns_cmp_lt_u32 s70, 8\ns_cbranch_scc1 L_wo{tag}")

    def wo_transpose(base, row, ntile, dst):
        A(f"v_lshrrev_b32 v3, 2, v0\nv_mul_u32_u24 v3, {row}, v3\nv_and_b32 v4, 3, v0\nv_lshl_add_u32 v3, v4, 3, v3")
        A(f"s_mul_i32 s24, s3, {32*ntile}\ns_add_u32 s24, s24, {base}\nv_add_u32 v3, s24, v3\nv_add_u32 v4, {64*row}, v3")
        for T in range(ntile):
            for i in range(4):
                for z in range(2):
                    A(f"ds_read_b64_tr_b16 {ar(dst+(T*4+i)*4+2*z, 2)}, v{3 if i < 2 else 4} offset:{(32*(i&1)+16*z)*row + T*32}")

    def bwo_stage(base, half, tag, lim=24):
        srd(8, P_BWO, 4 << 20)
        A(f"s_lshl_b32 s33, s26, 17\ns_lshl_b32 s24, s3, 15\ns_add_u32 s33, s33, s24\ns_add_u32 s33, s33, {half}")
        A(f"s_mul_i32 s34, s3, {32*HROW}\ns_add_u32 s34, s34, {base}")
        A("s_mov_b32 exec_hi, 0")
        wo_stage(HROW, lim, tag, True)
        A("s_mov_b64 exec, -1")

    def head_bits(x, l):
        hm = o["hmap"]
        if isinstance(hm, (int, str)):
            hm = tuple(int(c) for c in str(hm).zfill(3))
        rest = [b for b in range(5) if b not in hm]
        tx = sum(sum(((v >> n) & 1) << b for n, b in enumerate(hm)) << (8 * v) for v in range(8))
        tl = sum(sum(((v >> n) & 1) << b for n, b in enumerate(rest)) << (8 * v) for v in range(4))
        A(f"s_mov_b32 s70, {tx & 0xffffffff:#x}\ns_mov_b32 s71, {tx >> 32:#x}\ns_lshl_b32 {x}, {x}, 3\ns_lshr_b64 s[70:71], s[70:71], {x}")
        A(f"s_lshl_b32 {l}, {l}, 3\ns_lshr_b32 {l}, {tl:#x}, {l}\ns_or_b32 s26, {l}, s70\ns_and_b32 s26, s26, 31")
        return tl

    def publish_xcc(slot):
        if not o["xcc"]:
            return
        uid[0] += 1
        A(f"s_cmp_lg_u32 s3, 0\ns_cbranch_scc1 L_xi{uid[0]}")
        A(f"s_getreg_b32 s25, hwreg(HW_REG_XCC_ID, 0, 4)\ns_lshl_b32 s24, s26, 7\ns_add_u32 s24, s24, {WS_XI:#x}")
        A(f"s_mov_b64 exec, 1\nv_mov_b32 v3, s25\nbuffer_store_dword v3, off, s[12:15], s24 offset:{4*slot} sc1\ns_mov_b64 exec, -1")
        A(f"L_xi{uid[0]}:")

    A(f"{NAME}_kernel:")
    if o["probe"]:
        A("s_memrealtime s[100:101]")
    elif o["stamps"]:
        A("s_memrealtime s[94:95]")
    A("s_load_dwordx16 s[36:51], s[0:1], 0\ns_load_dwordx8 s[52:59], s[0:1], 64\ns_load_dwordx4 s[60:63], s[0:1], 96")
    A("s_cmp_ge_u32 s2, 256\ns_cbranch_scc1 L_end")
    if o["rot"]:
        A(f"s_add_u32 s2, s2, {o['rot']}\ns_and_b32 s2, s2, 255")
    A("v_lshrrev_b32 v1, 6, v0\nv_and_b32 v0, 63, v0\nv_readfirstlane_b32 s3, v1")
    A("v_lshlrev_b32 v2, 4, v0")
    A("s_cmp_lt_u32 s2, 64\ns_cbranch_scc1 L_A")

    RING, BQ, SR = 64, 32, 48
    NB = o["nbank"]
    A("L_B:")
    code_prefetch("L_B", "L_A")
    A("s_sub_u32 s24, s2, 64\ns_and_b32 s25, s24, 7\ns_lshr_b32 s24, s24, 3")
    A("s_mul_i32 s26, s24, 43\ns_lshr_b32 s26, s26, 8\ns_mul_i32 s27, s26, 6\ns_sub_u32 s27, s24, s27")
    if o["pw"]:
        A("s_mul_i32 s74, s3, 24\ns_add_u32 s74, s74, s24")
    else:
        A("s_lshl_b32 s74, s24, 2\ns_add_u32 s74, s74, s3")
    tl = head_bits("s25", "s26")
    if o["pf"]:
        A(f"v_lshrrev_b32 v3, 4, v0\nv_lshlrev_b32 v4, 3, v3\nv_mov_b32 v6, {tl:#x}\nv_lshrrev_b32 v4, v4, v6\nv_or_b32 v4, s70, v4\nv_and_b32 v4, 31, v4")
        if o["pw"]:
            A("v_and_b32 v6, 1, v0\nv_lshlrev_b32 v6, 7, v6\nv_lshl_add_u32 v24, v4, 8, v6\nv_bfe_u32 v6, v0, 1, 3\nv_lshl_add_u32 v24, v6, 13, v24")
            A("v_and_b32 v6, 15, v0\nv_lshlrev_b32 v6, 7, v6\nv_lshl_add_u32 v25, v4, 17, v6")
            A("s_and_b32 s25, s2, 7\ns_lshl_b32 s25, s25, 10\nv_and_b32 v6, 7, v0\nv_lshl_add_u32 v26, v6, 7, s25\nv_lshrrev_b32 v6, 3, v0\nv_lshl_add_u32 v26, v6, 13, v26")
        else:
            A("v_and_b32 v6, 0xf0, v2\nv_lshl_add_u32 v24, v4, 8, v6\nv_lshl_add_u32 v25, v4, 17, v6")
            A(f"s_and_b32 s25, s2, {NS-1}\ns_lshl_b32 s25, s25, 10\nv_add_u32 v26, s25, v2")
            if G > 1:
                A(f"s_bfe_u32 s25, s2, {LNS | ((3 - LNS) << 16):#x}\ns_lshl_b32 s25, s25, {21 + LNS}\nv_add_u32 v26, s25, v26")
    A("s_cmp_ge_u32 s27, 3\ns_cselect_b32 s28, 1, 0\ns_mul_i32 s29, s28, 3\ns_sub_u32 s29, s27, s29")
    A("s_lshr_b32 s72, s3, 1\ns_lshl_b32 s24, s28, 1\ns_add_u32 s72, s72, s24")
    A("s_and_b32 s31, s3, 1\ns_lshl_b32 s24, s29, 1\ns_add_u32 s31, s31, s24")
    A("s_lshl_b32 s30, s72, 5\ns_add_u32 s30, s30, s26\ns_lshl_b32 s30, s30, 20")
    A("v_lshrrev_b32 v3, 4, v0\nv_and_b32 v4, 3, v0\nv_lshlrev_b32 v5, 6, v3\nv_lshl_add_u32 v5, v4, 4, v5")
    A("v_bfe_u32 v1, v0, 2, 2\nv_lshl_add_u32 v1, v1, 8, v5")
    if 'l' in o['drop']:
        A("v_mov_b32 v1, v2")
    A(f"s_mul_i32 s35, s31, {chunk*1024}\ns_mov_b32 s32, s35")
    A("s_mov_b32 s6, 0x100000\ns_mov_b32 s7, 0x20000")
    A("s_waitcnt lgkmcnt(0)")
    stamp(0)
    A(f"s_add_u32 s4, s{P_K}, s30\ns_addc_u32 s5, s{P_K+1}, 0")
    PF = dict(b=(P_BWQ, 24, 13, 512), q=(P_AWQ, 24, 13, 512), k=(P_AWUK, 24, 13, 512), u=(P_AWUV, 24, 13, 512),
              o=(P_BWO, 25, 8, 512), v=(P_AWO, 25, 8, 512), c=(P_CKV, 26, 10 + LNS, 2048))
    def l2_prefetch(order, dep):
        for ch in order:
            ptr, vb, sh, cnt = PF[ch]
            srd(8, ptr, cnt * 8192)
            if o["pw"]:
                sh, cnt = sh + 3, cnt // 8
                A(f"s_cmp_ge_u32 s74, {cnt}\ns_cbranch_scc1 L_pg{ch}")
            A(f"L_pf{ch}:")
            if ch == "c" and o["clin"]:
                A("s_and_b32 s24, s74, 3\ns_lshl_b32 s24, s24, 22\ns_lshr_b32 s25, s74, 2\ns_lshl_b32 s25, s25, 13\ns_add_u32 s24, s24, s25")
            else:
                A(f"s_lshl_b32 s24, s74, {sh}")
            A(f"s_waitcnt vmcnt({dep})")
            if o["pw"]:
                A(f"buffer_load_dword v28, v{vb}, s[8:11], s24 offen")
            else:
                A(f"buffer_load_dwordx4 v[28:31], v{vb}, s[8:11], s24 offen")
            A(f"s_add_u32 s74, s74, 96\ns_cmp_lt_u32 s74, {cnt}\ns_cbranch_scc1 L_pf{ch}")
            A(f"L_pg{ch}:\ns_sub_u32 s74, s74, {cnt}")
            if o["trace"] == 2:
                A(f"s_memrealtime s[100:101]\ns_waitcnt lgkmcnt(0)\nv_writelane_b32 v59, s100, {32 + order.index(ch)}")
    l2_prefetch(o["pf"], o["pdep"])
    stamp(8)

    def sload(i, dst):
        A(f"buffer_load_dwordx4 {dst}, v1, s[4:7], s32 offen offset:{(i % chunk)*1024} {o['kv']}")
        if i % chunk == chunk - 1:
            A(f"s_add_u32 s32, s32, {6*chunk*1024}")

    def bank(k):
        return (lambda j: ar(64 * k + 4 * j)) if k < 4 else (lambda j: vr(128 + 64 * (k - 4) + 4 * j))

    def park(lo, hi):
        for i in range(lo, hi):
            if i > o["nw0"] or o["pf"]:
                A(f"s_waitcnt vmcnt({o['nw0']})")
            sload(i, bank(i // 16)(i % 16) if i < 16 * NB else vr(RING + 4 * (i - 16 * NB)))
            if o["trace"] == 2 and i % 4 == 3:
                A(f"s_memrealtime s[100:101]\ns_waitcnt lgkmcnt(0)\nv_writelane_b32 v59, s100, {40 + i // 4}")

    n0 = min(o["nw0"] + 1, 16 * NB)
    park(0, n0)
    srd(12, P_WS, WS_SIZE)
    srd(16, P_DBG, 256)
    make_masks(sel=False)
    quad_masks()
    for x in range(16):
        A(f"v_mov_b32 v{BQ+x}, 0")
    A("s_lshl_b32 s33, s26, 2\ns_add_u32 s33, s33, s72")
    A(f"s_lshl_b32 s34, s33, 8\ns_add_u32 s34, s34, {WS_QB:#x}")
    A(f"s_mul_i32 s73, s33, 6\ns_add_u32 s73, s73, s31\ns_lshl_b32 s73, s73, 8\ns_add_u32 s73, s73, {WS_OB:#x}")
    park(n0, 16 * NB)
    stamp(6)
    A(f"s_mov_b64 exec, 1\nbuffer_load_dword v61, off, s[16:19], 0 offset:{C_QB} sc1\ns_mov_b64 exec, -1")
    park(16 * NB, 16 * NB + 8)
    A("s_waitcnt vmcnt(8)\nv_readfirstlane_b32 s25, v61")
    A("s_cmp_ge_u32 s25, 32\ns_cbranch_scc1 L_B_q")
    poll_word(f"buffer_load_dword v61, off, s[16:19], 0 offset:{C_QB} sc1", 61, 32, "L_B_q", 16, "ge")
    A("L_B_q:\ns_mov_b64 exec, -1")
    stamp(7)
    A("buffer_load_dwordx4 v[8:11], v5, s[12:15], s34 offen sc1")
    park(16 * NB + 8, 16 * NB + 16)
    A("s_waitcnt vmcnt(8)")
    for x in range(4):
        for i in range(4):
            A(f"v_mov_b32_dpp v{BQ+4*x+i}, v{8+i} {DPP_ID} row_mask:0xf bank_mask:{1 << x:#x}")
    stamp(1)

    def throttle(n, tag):
        if n < 15:
            A(f"s_cbranch_vccnz {tag}\ns_waitcnt vmcnt({n})\n{tag}:")

    def kblock(src, S, stream):
        for j in range(16):
            x, y = j & 3, j >> 2
            D = 12 + 4 * (y & 1)
            if stream:
                A("s_waitcnt vmcnt(15)")
            A(f"v_mfma_f32_16x16x32_bf16 {vr(D)}, {src(j)}, {vr(BQ+4*x)}, {'0' if x == 0 else vr(D)}")
            if stream:
                throttle(nwait, f"L_BK_s{j}")
                sload(j, src(j))
            if x == 3:
                if y == 0:
                    diag_sum(D, 0, S)
                else:
                    diag_sum(D, y, 3)
                    A(f"v_cndmask_b32 v{S}, v{S}, v3, s[{62+2*y}:{63+2*y}]")

    A(f"s_mov_b32 s27, {NB}")
    A("L_BK:")
    trace(0)
    if o["pf2"]:
        A(f"s_cmp_lg_u32 s27, {o['pf2_it']}\ns_cbranch_scc1 L_BK_p")
        l2_prefetch(o["pf2"], 15)
        A("L_BK_p:")
    A("s_cmp_lg_u32 s27, 10\ns_cbranch_scc1 L_BK_a")
    A(f"s_add_u32 s4, s{P_V}, s30\ns_addc_u32 s5, s{P_V+1}, 0\ns_mov_b32 s32, s35\nv_mov_b32 v1, v2")
    A("L_BK_a:")
    if o["bar"] & 1:
        A("s_barrier")
    if nwait < 15:
        A(f"s_cmp_ge_u32 s27, {o['kfull']}\ns_cselect_b64 vcc, -1, 0")
    if o["xcc"]:
        A(f"s_cmp_lg_u32 s27, {o['xi_it']}\ns_cbranch_scc1 L_BV_x0")
        A(f"s_lshl_b32 s24, s26, 7\ns_add_u32 s24, s24, {WS_XI:#x}")
        A("s_mov_b64 exec, 1\nbuffer_load_dwordx2 v[62:63], off, s[12:15], s24 sc1\ns_mov_b64 exec, -1")
        A("L_BV_x0:")
        A(f"s_cmp_lg_u32 s27, {o['xi_it']+1}\ns_cbranch_scc1 L_BV_x1")
        A("s_getreg_b32 s75, hwreg(HW_REG_XCC_ID, 0, 4)\nv_readfirstlane_b32 s24, v62\nv_readfirstlane_b32 s25, v63")
        A("s_xor_b32 s24, s24, s75\ns_xor_b32 s25, s25, s75\ns_or_b32 s75, s24, s25")
        if o["obc"]:
            for i in range(4):
                A(f"v_mov_b32 v{28+i}, -1")
            A("s_mov_b64 exec, 0xffff\ns_cbranch_scc1 L_BK_cf")
            A("buffer_store_dwordx4 v[28:31], v2, s[12:15], s73 offen\ns_branch L_BK_cd\nL_BK_cf:")
            A("buffer_store_dwordx4 v[28:31], v2, s[12:15], s73 offen sc1\nL_BK_cd:\ns_mov_b64 exec, -1")
        A("L_BV_x1:")
    for k in range(NB, 10):
        A(f"v_mov_b32 v{SR+k}, v{SR+k+1}")
    kblock(lambda j: vr(RING + 4 * j), SR + 10, True)
    assert 2 * NB <= 11
    for k in range(NB):
        A(f"s_cmp_lg_u32 s27, {NB+k}\ns_cbranch_scc1 L_BK_b{k}")
        kblock(bank(k), SR + k, False)
        A(f"L_BK_b{k}:")
    A("s_add_u32 s27, s27, 1\ns_cmp_lt_u32 s27, 11\ns_cbranch_scc1 L_BK")
    stamp(2)

    lg = int(math.log2(chunk))
    A("v_and_b32 v3, 3, v0\nv_bfe_u32 v4, v0, 2, 2\nv_lshl_add_u32 v3, v3, 2, v4\nv_add_u32 v3, 160, v3")
    A(f"v_lshrrev_b32 v3, {lg}, v3\nv_mul_u32_u24 v3, 6, v3\nv_add_u32 v3, s31, v3")
    A(f"v_mov_b32 v4, 0xff800000\nv_cmp_gt_u32 vcc, {1024 // chunk}, v3\nv_cndmask_b32 v{SR+10}, v4, v{SR+10}, vcc")
    A(f"v_max3_f32 v3, v{SR}, v{SR+1}, v{SR+2}")
    for k in range(3, 11, 2):
        A(f"v_max3_f32 v3, v3, v{SR+k}, v{SR+k+1}")
    wave_reduce("v_max_f32", 3, 24)
    A(f"s_mov_b32 s71, {SCALE:#x}\nv_mov_b32 v6, s71\nv_mul_f32 v6, s24, v6")
    for k in range(11):
        A(f"v_fma_f32 v{SR+k}, v{SR+k}, s71, -v6")
    for k in range(11):
        A(f"v_exp_f32 v{SR+k}, v{SR+k}")
    A(f"v_add_f32 v7, v{SR}, v{SR+1}")
    for k in range(2, 11):
        A(f"v_add_f32 v7, v7, v{SR+k}")
    for k in range(11):
        A(f"v_cvt_pk_bf16_f32 v{SR+k}, v{SR+k}, v{SR+k}")
    wave_reduce("v_add_f32", 7, 70)
    A(f"s_lshl_b32 s34, s2, 7\ns_add_u32 s34, s34, {WS_BML - 64*128:#x}\ns_lshl_b32 s25, s3, 4\ns_add_u32 s25, s25, s34")
    A("s_mov_b64 exec, 1\nv_mov_b32 v7, s70")
    if o["xcc"] & 2:
        A("s_cmp_eq_u32 s75, 0\ns_cbranch_scc0 L_B_mlf")
        A("buffer_store_dwordx2 v[6:7], off, s[12:15], s25\ns_branch L_B_mld\nL_B_mlf:")
    if 'b' not in o['drop']:
        A("buffer_store_dwordx2 v[6:7], off, s[12:15], s25 sc1")
    A("L_B_mld:")
    A("s_mov_b64 exec, -1")
    A("v_lshrrev_b32 v3, 4, v0\nv_lshlrev_b32 v60, 6, v3\nv_and_b32 v4, 7, v0\nv_lshl_add_u32 v60, v4, 3, v60")
    for i in range(4):
        A(f"v_mov_b32 v{12+i}, 0")
    stamp(3)

    nlast = -(-(1024 // chunk) // 6) * chunk - 160
    A("s_mov_b32 s27, 0")
    A("L_BV:")
    trace(11)
    if o["bar"] & 2:
        A("s_barrier")
    nwv = o["nwv"]
    if o["hlp"]:
        A(f"s_cmp_ge_u32 s27, {o['h_it']}\ns_cselect_b32 s71, s3, 4")
        if o["h_fin"]:
            assert 4 * o["h_fin"] + o["h_lq"] + o["h_u"] > 43
            A(f"s_lshl_b32 s24, s27, 2\ns_add_u32 s24, s24, s3\ns_cmp_gt_u32 s24, {4*o['h_fin']}\ns_cselect_b32 s71, 4, s71")
    if nwv < 15:
        A(f"s_cmp_ge_u32 s27, {min(o['vfull'], 10)}\ns_cselect_b64 vcc, -1, 0")
    for j in range(16):
        x, y = j & 3, j >> 2
        if j == nlast:
            A("s_cmp_lg_u32 s27, 10\ns_cbranch_scc1 L_BV_a")
            stamp(4)
            A("s_mov_b32 exec_lo, 0x00ff00ff\ns_mov_b32 exec_hi, 0x00ff00ff")
            if o["xcc"]:
                A("s_cmp_eq_u32 s75, 0")
            A("v_cvt_pk_bf16_f32 v4, v12, v13\nv_cvt_pk_bf16_f32 v5, v14, v15")
            if o["xcc"]:
                A("s_cbranch_scc0 L_BV_far")
                A(f"buffer_store_dwordx2 v[4:5], v60, s[12:15], s73 offen {o['obp']}")
                A("s_branch L_BV_done\nL_BV_far:")
            A("buffer_store_dwordx2 v[4:5], v60, s[12:15], s73 offen sc1")
            A("L_BV_done:")
            stamp(5)
            trace_out()
            stamps_out()
            A("s_endpgm")
            A("L_BV_a:")
        if o["hlp"] and x == 0:
            A(f"s_cmp_lg_u32 s71, {y}\ns_cbranch_scc1 L_BV_p{y}")
            A(f"s_lshl_b32 s24, s27, 2\ns_add_u32 s24, s24, {y}\ns_mov_b64 exec, 1\nv_mov_b32 v63, s24")
            if o["h_fin"] and y == 0:
                A(f"s_cmp_eq_u32 s27, {o['h_fin']}\ns_cbranch_scc1 L_BV_q{y}")
            A(f"s_cmp_eq_u32 s75, 0\ns_cbranch_scc0 L_BV_q{y}")
            A(f"buffer_store_dword v63, off, s[12:15], s34 offset:64\ns_branch L_BV_r{y}\nL_BV_q{y}:")
            A(f"buffer_store_dword v63, off, s[12:15], s34 offset:64 sc1\nL_BV_r{y}:\ns_mov_b64 exec, -1")
            A(f"L_BV_p{y}:")
        for i in range(4):
            A(f"v_and_b32_dpp v{8+i}, v{SR}, v{MASK+i} row_newbcast:{4*x+y} row_mask:0xf bank_mask:0xf")
        A("s_waitcnt vmcnt(15)")
        A(f"v_mfma_f32_16x16x32_bf16 v[12:15], {vr(RING+4*j)}, v[8:11], v[12:15]")
        throttle(nwv, f"L_BV_s{j}")
        sload(j, vr(RING + 4 * j))
    for k in range(10):
        A(f"v_mov_b32 v{SR+k}, v{SR+k+1}")
    A("s_add_u32 s27, s27, 1\ns_branch L_BV")

    XA, XB = 32, 48
    A("L_A:")
    role[0] = "A"
    code_prefetch("L_A", "L_A2")
    A("s_mov_b32 s74, s2\ns_and_b32 s72, s2, 31")
    A("s_and_b32 s25, s72, 7\ns_lshr_b32 s26, s72, 3")
    head_bits("s25", "s26")
    A("v_lshrrev_b32 v3, 4, v0\nv_and_b32 v4, 15, v0")
    A("v_lshlrev_b32 v18, 18, v3\nv_lshl_add_u32 v18, v4, 4, v18")
    A("v_lshrrev_b32 v6, 3, v4\nv_lshlrev_b32 v6, 10, v6\nv_lshl_add_u32 v19, v3, 6, v6")
    A("v_bfe_u32 v1, v0, 2, 2\nv_lshlrev_b32 v64, 18, v1\nv_lshl_add_u32 v64, v3, 6, v64")
    A("v_and_b32 v4, 3, v0\nv_lshl_add_u32 v64, v4, 4, v64")
    A("v_lshlrev_b32 v65, 9, v1\nv_lshl_add_u32 v65, v3, 7, v65\nv_lshl_add_u32 v65, v4, 5, v65")
    A(f"v_add_u32 v65, {L_QP}, v65")
    A("v_lshlrev_b32 v66, 15, v1\nv_lshl_add_u32 v66, v3, 6, v66\nv_lshl_add_u32 v66, v4, 4, v66")
    A("v_and_b32 v4, 15, v0\nv_lshlrev_b32 v67, 10, v3\nv_lshl_add_u32 v67, v4, 4, v67")
    A("s_lshl_b32 s35, s3, 20\ns_lshl_b32 s24, s26, 8\ns_add_u32 s35, s35, s24")
    A("s_waitcnt lgkmcnt(0)")
    stamp(0)
    A("s_cmp_lt_u32 s74, 32")
    A(f"s_cselect_b64 s[4:5], s[{P_AWQ}:{P_AWQ+1}], s[{P_BWQ}:{P_BWQ+1}]\ns_mov_b32 s6, 0x400000\ns_mov_b32 s7, 0x20000")
    A(f"s_cselect_b64 s[20:21], s[{P_AX}:{P_AX+1}], s[{P_BX}:{P_BX+1}]\ns_mov_b32 s22, 4096\ns_mov_b32 s23, 0x20000")
    A("s_cselect_b32 s75, 0x400000, 0")
    A("s_lshl_b32 s24, s3, 8\ns_mov_b32 s32, s35")
    A("buffer_load_dwordx4 v[12:15], v67, s[20:23], s24 offen")

    def wload(j, voff, pol=o["wpr"]):
        A(f"buffer_load_dwordx4 {vr(WB+4*j)}, v{voff}, s[4:7], s32 offen {pol}")
        A("s_add_u32 s32, s32, 8192")
    LEAD = o["lead"]
    for j in range(LEAD):
        wload(j, 18, o["w1"])
    srd(12, P_WS, WS_SIZE)
    srd(16, P_DBG, 256)
    make_masks()
    quad_masks()
    A(f"s_lshl_b32 s24, s3, 8\ns_add_u32 s24, s24, {L_CX}\nv_add_u32 v3, s24, v67\nv_add_u32 v4, s24, v19")
    A(f"s_waitcnt vmcnt({LEAD})\nds_write_b128 v3, v[12:15]\ns_waitcnt lgkmcnt(0)")
    for p in range(2):
        for i in range(4):
            A(f"ds_read_b128 {vr(XA+16*p+4*i)}, v4 offset:{2048*p+16*i}")
    A("s_waitcnt lgkmcnt(0)")
    dstamp(1, 7)

    for i in range(4):
        A(f"v_mov_b32 v{76+i}, -1")
    clr_lo = WS_BML if o["obc"] else WS_OB
    clr_hi = WS_YB + (0x20000 if o["y16"] else 0x40000)
    nclr = -(-(clr_hi - clr_lo) // 0x20000)
    A(f"s_lshl_b32 s71, s72, 2\ns_add_u32 s71, s71, s3\ns_lshl_b32 s71, s71, 10\ns_add_u32 s71, s71, {clr_lo:#x}")
    A(f"s_cmp_lt_u32 s74, 32\ns_cselect_b32 s71, {WS_SIZE:#x}, s71")

    def clear(i):
        if 'c' not in o['drop'] and i < nclr:
            A(f"s_cmp_ge_u32 s71, {clr_hi:#x}\ns_cselect_b32 s71, {WS_SIZE:#x}, s71")
            A("buffer_store_dwordx4 v[76:79], v2, s[12:15], s71 offen sc1\ns_add_u32 s71, s71, 0x20000")

    def s1_after(j):
        if o["clr_at"] and j % o["clr_at"] == 0 and j // o["clr_at"] < 4:
            clear(j // o["clr_at"])
        if j + LEAD == 32:
            A(f"s_lshl_b32 s73, s74, 7\ns_add_u32 s73, s73, {WS_FLAG:#x}")
            A("s_cmp_lg_u32 s3, 0\ns_cbranch_scc1 L_A_nofl")
            A("s_mov_b64 exec, 1\nbuffer_store_dwordx4 v[76:79], off, s[12:15], s73 sc1\ns_mov_b64 exec, -1")
            A("L_A_nofl:")
            if not o["clr_at"]:
                for i in range(4):
                    clear(i)
            code_prefetch("L_A2", "L_last", back=False)
            A(f"s_mov_b32 s4, s{P_AWUK}\ns_mov_b32 s5, s{P_AWUK+1}\ns_mov_b32 s6, s75\ns_mov_b32 s32, s35")
        if j + LEAD < 32:
            wload(j + LEAD, 18, o["w2"])
        else:
            wload(j + LEAD - 32, 64, o["w3"])
    gemv([XA, XB], [12, 68], wait=lambda j: A(f"s_waitcnt vmcnt({LEAD-1})"), after=s1_after)
    dstamp(1, 8)
    q_reduce([12, 68], 65, 8, 72)
    stamp(1)
    A("s_cmp_ge_u32 s74, 32\ns_cbranch_scc1 L_C")
    A("L_A2:")
    TQ = 72
    for j in range(LEAD, 32):
        wload(j, 64, o["w3"])
    DQ, TT = 80, 112
    for y in range(4):
        for e in range(8):
            j = 8 * y + e
            A(f"s_waitcnt vmcnt({31-j})")
            A(f"v_mfma_f32_16x16x32_bf16 {vr(DQ+4*e)}, {vr(WB+4*j)}, v[8:11], 0")
        t = TQ if y == 0 else TT
        for n, a in enumerate(a for a in range(4) if a != y):
            for e in range(8):
                src = DQ + 4 * e + y if n == 0 else t + e
                A(f"v_add_f32_dpp v{t+e}, v{DQ+4*e+a}, v{src} quad_perm:[{a},{a},{a},{a}] row_mask:0xf bank_mask:0xf")
        if y:
            for e in range(8):
                A(f"v_cndmask_b32 v{TQ+e}, v{TQ+e}, v{TT+e}, s[{62+2*y}:{63+2*y}]")
    A(f"s_mov_b32 s71, {SCALE:#x}")
    for e in range(8):
        A(f"v_mul_f32 v{TQ+e}, s71, v{TQ+e}")
    for i in range(4):
        A(f"v_cvt_pk_bf16_f32 v{4+i}, v{TQ+2*i}, v{TQ+2*i+1}")
    A(f"s_lshl_b32 s24, s26, 10\ns_lshl_b32 s25, s3, 8\ns_add_u32 s24, s24, s25\ns_add_u32 s24, s24, {WS_QA:#x}")
    if 'q' not in o['drop']:
        A("buffer_store_dwordx4 v[4:7], v66, s[12:15], s24 offen sc1")
    bwo_stage(0, 0, "W")
    dstamp(2, 6)
    signal(C_Q, 64)
    stamp(2)
    wo_transpose(0, HROW, 4, 128)
    srd(4, P_AWUV, 4 << 20)
    srd(8, P_AWO, 4 << 20)
    A("s_mov_b32 s32, s35")
    for j in range(32):
        wload(j, 18)
    dstamp(2, 7)
    A("s_lshl_b32 s33, s26, 17\ns_lshl_b32 s24, s3, 15\ns_add_u32 s33, s33, s24")
    A(f"s_mul_i32 s34, s3, {32*WROW}")
    A("s_waitcnt lgkmcnt(0)\ns_barrier")
    dstamp(2, 8)
    wo_stage(WROW, 24, "A", False)
    dstamp(2, 9)
    A("s_waitcnt vmcnt(0)\ns_barrier")
    dstamp(2, 10)
    wo_transpose(0, WROW, 8, 0)
    A("s_waitcnt lgkmcnt(0)")
    stamp(3)
    if o["xcc"]:
        await_flag(C_Q)
        publish_xcc(0)
    await_flag(C_P)
    stamp(4)
    PR = 72
    A(f"s_lshl_b32 s24, s3, {8+LNS}\ns_lshl_b32 s25, s26, 3\ns_add_u32 s25, s25, s24\ns_add_u32 s25, s25, {WS_PML:#x}")
    A("s_lshl_b32 s24, s26, 2\ns_add_u32 s24, s24, s3")
    A(f"v_and_b32 v3, {NS-1}, v0\nv_lshlrev_b32 v3, 8, v3")
    A("buffer_load_dwordx2 v[4:5], v3, s[12:15], s25 offen sc1")
    A(f"s_lshl_b32 s24, s24, {10+LNS}\ns_add_u32 s24, s24, {WS_PART:#x}")
    for s in range(NS):
        A(f"buffer_load_dwordx4 {vr(PR+4*s)}, v2, s[12:15], s24 offen offset:{(s & 3)*1024} sc1")
        if s == 3:
            A("s_add_u32 s24, s24, 4096")
    A(f"s_waitcnt vmcnt({NS})")
    A("v_mov_b32 v6, v4")
    rors = ("row_ror:4", "row_ror:2", "row_ror:1")[3 - LNS:]
    for c in rors:
        A(f"v_max_f32_dpp v6, v6, v6 {c} row_mask:0xf bank_mask:0xf")
    A("v_sub_f32 v4, v4, v6\nv_exp_f32 v4, v4\nv_mul_f32 v5, v4, v5")
    for c in rors:
        A(f"v_add_f32_dpp v5, v5, v5 {c} row_mask:0xf bank_mask:0xf")
    A("v_rcp_f32 v5, v5\nv_mul_f32 v4, v4, v5")
    CA = 104
    for s in range(NS):
        A(f"v_readlane_b32 s24, v4, {s}")
        A(f"s_waitcnt vmcnt({NS-1-s})")
        for i in range(4):
            A(f"v_lshlrev_b32 v5, 16, v{PR+4*s+i}\nv_and_b32 v6, 0xffff0000, v{PR+4*s+i}")
            if s == 0:
                A(f"v_mul_f32 v{CA+2*i}, s24, v5\nv_mul_f32 v{CA+2*i+1}, s24, v6")
            else:
                A(f"v_fmac_f32 v{CA+2*i}, s24, v5\nv_fmac_f32 v{CA+2*i+1}, s24, v6")
    for i in range(4):
        A(f"v_cvt_pk_bf16_f32 v{4+i}, v{CA+2*i}, v{CA+2*i+1}")
    A(f"s_lshl_b32 s24, s3, 10\ns_add_u32 s24, s24, {L_CX}\nv_add_u32 v3, s24, v2")
    A("ds_write_b128 v3, v[4:7]")
    A(f"s_lshl_b32 s24, s3, 8\ns_add_u32 s24, s24, {L_CX}\nv_add_u32 v3, s24, v19")
    A("s_waitcnt lgkmcnt(0)\ns_barrier")
    for p in range(2):
        for i in range(4):
            A(f"ds_read_b128 {vr(XA+16*p+4*i)}, v3 offset:{2048*p+16*i}")
    A("s_waitcnt lgkmcnt(0)")
    gemv([XA, XB], [12, 68])
    A("v_lshrrev_b32 v3, 4, v0\nv_lshlrev_b32 v3, 7, v3\nv_and_b32 v4, 7, v0\nv_lshl_add_u32 v3, v4, 4, v3")
    A("v_bfe_u32 v4, v0, 3, 1\nv_lshl_add_u32 v3, v4, 9, v3")
    A(f"s_lshl_b32 s24, s3, 11\ns_add_u32 s24, s24, {L_QP}\nv_add_u32 v3, s24, v3")
    A("ds_write_b128 v3, v[12:15]\nds_write_b128 v3, v[68:71] offset:1024")
    A("s_waitcnt lgkmcnt(0)\ns_barrier")
    A(f"v_and_b32 v5, 31, v0\ns_lshl_b32 s24, s3, 9\ns_add_u32 s24, s24, {L_QP}\nv_lshl_add_u32 v3, v5, 4, s24")
    for w in range(4):
        A(f"ds_read_b128 {vr(72+4*w)}, v3 offset:{w*2048}")
    A(f"s_lshl_b32 s24, s3, 8\ns_add_u32 s24, s24, {L_OA}\nv_lshl_add_u32 v5, v5, 3, s24")
    A("s_waitcnt lgkmcnt(0)")
    for w in range(1, 4):
        for r in range(4):
            A(f"v_add_f32 v{72+r}, v{72+r}, v{72+4*w+r}")
    A("v_cvt_pk_bf16_f32 v6, v72, v73\nv_cvt_pk_bf16_f32 v7, v74, v75")
    A("ds_write_b64 v5, v[6:7]")
    A(f"v_lshrrev_b32 v3, 4, v0\nv_and_b32 v4, 3, v0\nv_lshlrev_b32 v5, 8, v4\nv_lshl_add_u32 v5, v3, 4, v5\nv_add_u32 v5, {L_OA}, v5")
    A("s_waitcnt lgkmcnt(0)\ns_barrier")
    for i in range(4):
        A(f"ds_read_b128 {vr(XA+4*i)}, v5 offset:{64*i}")

    def merge_w(T):
        for r in range(4):
            A(f"v_mov_b32_dpp v{4+4*(T>>2)+r}, v{72+4*T+r} {DPP_ID} row_mask:{1 << (T & 3):#x} bank_mask:0xf")
    for T in range(8):
        D = 72 + 4 * T
        for i in range(4):
            if T == 0:
                A(f"s_waitcnt lgkmcnt({3-i})")
            A(f"v_mfma_f32_16x16x32_bf16 {vr(D)}, {vr(XA+4*i)}, {ar((T*4+i)*4)}, {'0' if i == 0 else vr(D)}")
        if T >= 2:
            merge_w(T - 2)
    merge_w(6)
    merge_w(7)
    Y = 1 if o["y16"] else 0
    A(f"s_lshl_b32 s24, s26, {13-Y}\ns_lshl_b32 s25, s3, {11-Y}\ns_add_u32 s24, s24, s25\ns_add_u32 s24, s24, {WS_YA:#x}")
    if Y:
        A("v_lshlrev_b32 v3, 3, v0")
        for i in range(4):
            A(f"v_cvt_pk_bf16_f32 v{4+i}, v{4+2*i}, v{5+2*i}")
        A("buffer_store_dwordx2 v[4:5], v3, s[12:15], s24 offen sc1")
        A("buffer_store_dwordx2 v[6:7], v3, s[12:15], s24 offen offset:512 sc1")
    elif 'y' not in o['drop']:
        A("buffer_store_dwordx4 v[4:7], v2, s[12:15], s24 offen sc1")
        A("buffer_store_dwordx4 v[8:11], v2, s[12:15], s24 offen offset:1024 sc1")
    signal(C_Y, 32)
    stamp(5)

    def final_reduce(red, out_off):
        A("v_permlane32_swap_b32 v4, v6\nv_permlane32_swap_b32 v5, v7")
        A("v_add_f32 v4, v4, v6\nv_add_f32 v5, v5, v7")
        A("v_permlane16_swap_b32 v4, v5\nv_add_f32 v4, v4, v5")
        A("v_add_f32_dpp v4, v4, v4 row_ror:8 row_mask:0xf bank_mask:0xf")
        if o["fr2"]:
            A("v_add_f32_dpp v4, v4, v4 row_ror:4 row_mask:0xf bank_mask:0xf")
            A("v_add_f32_dpp v4, v4, v4 row_ror:2 row_mask:0xf bank_mask:0xf")
            A("v_cvt_pk_bf16_f32 v4, v4, v4\ns_mov_b32 exec_lo, 0x00030003\ns_mov_b32 exec_hi, 0x00030003")
            A(f"buffer_store_short v4, v28, s[20:23], 0 offen offset:{out_off} {o['opol']}\ns_mov_b64 exec, -1")
            return
        A(f"ds_write_b32 v26, v4 offset:{red}\ns_waitcnt lgkmcnt(0)\ns_barrier")
        uid[0] += 1
        A(f"s_cmp_lg_u32 s3, 0\ns_cbranch_scc1 L_fr{uid[0]}")
        A(f"ds_read_b128 v[4:7], v27 offset:{red}\ns_waitcnt lgkmcnt(0)")
        A("v_add_f32 v4, v4, v5\nv_add_f32 v6, v6, v7\nv_add_f32 v4, v4, v6\nv_cvt_pk_bf16_f32 v4, v4, v4")
        A(f"buffer_store_short v4, v28, s[20:23], 0 offen offset:{out_off} {o['opol']}")
        A(f"L_fr{uid[0]}:")

    def poll_data(loads, lo, n, sleep):
        uid[0] += 1
        u = uid[0]
        A(f"s_mov_b32 s24, {SPIN}\ns_branch L_pd{u}_in")
        A(f"L_pd{u}:")
        if sleep:
            A(f"s_sleep {sleep}")
        A(f"L_pd{u}_in:")
        loads()
        A("s_waitcnt vmcnt(0)")
        A(f"v_max_u32 v3, v{lo}, v{lo+1}")
        for k in range(2, n, 2):
            A(f"v_max3_u32 v3, v3, v{lo+k}, v{lo+k+1}")
        A(f"v_cmp_eq_u32 vcc, -1, v3\ns_sub_u32 s24, s24, 1\ns_cmp_eq_u32 s24, 0\ns_cbranch_scc1 L_pd{u}_x")
        A(f"s_and_b64 exec, exec, vcc\ns_cbranch_scc1 L_pd{u}")
        A(f"L_pd{u}_x:\ns_mov_b64 exec, -1")

    WT, OX, OA_, PD = 32, 40, 48, 64
    A("L_R:")
    srd(20, P_OUT, 8192)
    make_masks(sel=False)
    A("v_lshrrev_b32 v3, 4, v0\nv_and_b32 v4, 7, v0\nv_lshl_add_u32 v5, v3, 3, v4")
    A(f"v_lshlrev_b32 v27, 4, v5\nv_add_u32 v27, {L_RED}, v27\ns_lshl_b32 s24, s3, 2\nv_add_u32 v26, s24, v27")
    A(f"s_lshl_b32 s24, s3, 8\ns_add_u32 s24, s24, {L_OA}\nv_lshl_add_u32 v24, v5, 3, s24")
    if o["cgm"]:
        A("s_and_b32 s30, s74, 7\ns_lshl_b32 s30, s30, 3\ns_lshr_b32 s24, s74, 3\ns_or_b32 s30, s30, s24")
    else:
        A("s_mov_b32 s30, s74")
    A("v_lshlrev_b32 v28, 11, v3\nv_lshl_add_u32 v28, v4, 1, v28\ns_lshl_b32 s24, s30, 4\nv_add_u32 v28, s24, v28")
    A(f"v_lshrrev_b32 v5, 3, v0\ns_lshl_b32 s24, s3, 3\nv_add_u32 v5, s24, v5\nv_lshlrev_b32 v5, {13-Y}, v5\nv_lshl_add_u32 v30, v4, {4-Y}, v5")
    if o["fr2"]:
        A("v_and_b32 v6, 1, v0\ns_lshl_b32 s24, s3, 1\nv_add_u32 v6, s24, v6")
        A(f"v_lshrrev_b32 v5, 1, v0\nv_lshlrev_b32 v5, {13-Y}, v5\nv_lshl_add_u32 v30, v6, {4-Y}, v5")
        A("v_lshlrev_b32 v28, 11, v3\nv_lshl_add_u32 v28, v6, 1, v28\ns_lshl_b32 s24, s30, 4\nv_add_u32 v28, s24, v28")
    A("v_lshlrev_b32 v80, 3, v0")

    def y_load(so, pol):
        if Y:
            A(f"buffer_load_dwordx2 v[8:9], v30, s[12:15], {so} offen {pol}")
        else:
            A(f"buffer_load_dwordx4 v[4:7], v30, s[12:15], {so} offen {pol}")

    def y_unpack():
        if Y:
            A("v_lshlrev_b32 v4, 16, v8\nv_lshlrev_b32 v6, 16, v9\nv_and_b32 v5, 0xffff0000, v8\nv_and_b32 v7, 0xffff0000, v9")
    A(f"v_and_b32 v5, 3, v0\nv_lshlrev_b32 v25, 8, v5\nv_lshl_add_u32 v25, v3, 4, v25\nv_add_u32 v25, {L_OA}, v25")
    A("v_and_b32 v29, 0x1ff, v2")
    A("v_min_u32 v6, 5, v4\nv_lshrrev_b32 v5, 1, v6\nv_lshlrev_b32 v31, 10, v5\nv_and_b32 v6, 1, v6\nv_lshl_add_u32 v31, v6, 4, v31")
    stamp(6)
    await_flag(C_Y)
    stamp(7)
    A(f"s_lshl_b32 s30, s30, {7-Y}\ns_add_u32 s24, s30, {WS_YA:#x}")
    y_load("s24", "sc1")
    A("s_waitcnt vmcnt(0)")
    y_unpack()
    final_reduce(0, 0)
    stamp(8)
    A("s_lshl_b32 s33, s26, 2\ns_add_u32 s33, s33, s3")
    A(f"s_and_b32 s35, s72, 7\ns_lshl_b32 s35, s35, 7\ns_add_u32 s35, s35, {WS_BML:#x}")
    A("s_lshr_b32 s34, s72, 3\ns_mul_i32 s34, s34, 6\ns_lshr_b32 s24, s3, 1\ns_mul_i32 s24, s24, 3\ns_add_u32 s24, s24, s34")
    A("s_lshl_b32 s29, s24, 10\ns_add_u32 s29, s29, s35\ns_and_b32 s24, s3, 1\ns_lshl_b32 s24, s24, 5\ns_add_u32 s29, s29, s24")
    poll_data(lambda: A("buffer_load_dwordx2 v[8:9], v31, s[12:15], s29 offen sc1"), 8, 2, o['sl_ml'])
    red8 = ("quad_perm:[1,0,3,2]", "quad_perm:[2,3,0,1]", "row_half_mirror")
    A("v_mov_b32 v6, v8")
    for c in red8:
        A(f"v_max_f32_dpp v6, v6, v6 {c} row_mask:0xf bank_mask:0xf")
    A("v_sub_f32 v8, v8, v6\nv_exp_f32 v8, v8\nv_and_b32 v4, 7, v0\nv_cmp_gt_u32 vcc, 6, v4\nv_cndmask_b32 v8, 0, v8, vcc\nv_mul_f32 v9, v8, v9")
    for c in red8:
        A(f"v_add_f32_dpp v9, v9, v9 {c} row_mask:0xf bank_mask:0xf")
    A("v_rcp_f32 v9, v9\nv_mul_f32 v8, v8, v9\nv_cvt_pk_bf16_f32 v8, v8, v8")
    A("v_lshrrev_b32 v5, 4, v0\nv_lshlrev_b32 v5, 2, v5")
    A("ds_bpermute_b32 v6, v5, v8\nds_bpermute_b32 v7, v5, v8 offset:16\ns_waitcnt lgkmcnt(0)")
    for st in range(2):
        for i in range(4):
            A(f"v_and_b32 v{WT+4*st+i}, v{6+st}, v{MASK+i}")
    A(f"s_mul_i32 s29, s33, 1536\ns_add_u32 s29, s29, {WS_OB:#x}")
    A(f"s_add_u32 s30, s30, {WS_YB:#x}")
    A(f"s_lshl_b32 s31, s26, {13-Y}\ns_lshr_b32 s24, s74, 5\ns_lshl_b32 s24, s24, {12-Y}\ns_add_u32 s31, s31, s24")
    A(f"s_lshl_b32 s24, s3, {10-Y}\ns_add_u32 s31, s31, s24\ns_add_u32 s31, s31, {WS_YB:#x}")

    if o["hlp"]:
        assert chunk == 1 and o["xcc"]
        A("s_cmp_lg_u32 s3, 0\ns_cbranch_scc1 L_H_x")
        A("s_lshr_b32 s24, s74, 5\ns_mul_i32 s25, s24, 3\ns_add_u32 s34, s34, s25")
        A("s_lshl_b32 s24, s24, 6\ns_add_u32 s24, s24, s26\ns_lshl_b32 s24, s24, 20")
        srd(4, P_V, 1 << 20, add="s24")
        A("s_add_u32 s8, s4, 0x2000000\ns_addc_u32 s9, s5, 0\ns_mov_b32 s10, s6\ns_mov_b32 s11, 0x20000")
        A("v_lshrrev_b32 v3, 4, v0\nv_mul_u32_u24 v16, 6144, v3\nv_and_b32 v3, 15, v0\nv_lshl_add_u32 v16, v3, 7, v16")
        A("v_lshlrev_b32 v17, 10, v0\nv_mov_b32 v18, 0")
        U = o["h_u"]
        NX = (27, 28, 32)
        A(f"s_mov_b32 s27, 43\ns_mov_b32 s28, 43\ns_mov_b32 s32, 43\ns_mov_b32 s75, {SPIN}")
        A("L_H:")
        A("s_sub_u32 s75, s75, 1\ns_cmp_eq_u32 s75, 0\ns_cbranch_scc1 L_H_x")
        A("s_mov_b64 exec, 0xffffff\nbuffer_load_dword v18, v17, s[12:15], s35 offen offset:64 sc1\ns_mov_b64 exec, -1")
        A("s_waitcnt vmcnt(0)\nv_max_i32 v19, 0, v18")
        A("v_add_u32_dpp v3, v19, v19 row_ror:8 row_mask:0xf bank_mask:0xf")
        for c in ("row_ror:4", "row_ror:2", "row_ror:1"):
            A(f"v_add_u32_dpp v3, v3, v3 {c} row_mask:0xf bank_mask:0xf")
        A("v_readlane_b32 s70, v3, 0\nv_readlane_b32 s24, v3, 16\ns_add_u32 s70, s70, s24")
        for t in range(3):
            A(f"s_add_u32 s24, s34, {t}\nv_readlane_b32 s24, v19, s24")
            A(f"s_sub_u32 s25, 43, s{NX[t]}\ns_mul_i32 s25, s25, {o['h_cw']}\ns_mul_i32 s{64+t}, s24, 24\ns_add_u32 s{64+t}, s{64+t}, s25")
            A(f"s_add_u32 s24, s24, {o['h_lq'] + U}\ns_cmp_gt_u32 s24, s{NX[t]}\ns_cselect_b32 s{64+t}, 0xffff, s{64+t}")
        A("s_min_u32 s71, s64, s65\ns_min_u32 s71, s71, s66\ns_cmp_eq_u32 s71, 0xffff\ns_cbranch_scc1 L_H_x")
        A(f"s_add_u32 s24, s71, {o['h_th']}\ns_cmp_lt_i32 s24, s70\ns_cbranch_scc1 L_H_go")
        A(f"s_sleep {o['h_sl']}\ns_branch L_H")
        A("L_H_go:")
        for t in range(3):
            if t < 2:
                A(f"s_cmp_lg_u32 s71, s{64+t}\ns_cbranch_scc1 L_H_n{t}")
            A(f"s_sub_u32 s{NX[t]}, s{NX[t]}, {U}\ns_mul_i32 s24, s{NX[t]}, {4*6144}\ns_add_u32 s24, s24, {2048*t}")
            if t < 2:
                A(f"s_branch L_H_ld\nL_H_n{t}:")
        A("L_H_ld:")
        for k in range(U):
            A("buffer_load_dword v5, v16, s[4:7], s24 offen\nbuffer_load_dword v5, v16, s[8:11], s24 offen")
            if k + 1 < U:
                A(f"s_add_u32 s24, s24, {4*6144}")
        A("s_branch L_H")
        A("L_H_x:")

    def p_loads():
        A(f"buffer_load_dwordx4 {vr(OX)}, v2, s[12:15], s29 offen sc1")
        A(f"buffer_load_dwordx4 {vr(OX+4)}, v29, s[12:15], s29 offen offset:1024 sc1")
    poll_data(p_loads, OX, 8, o["sl_p"])
    stamp(9)
    A(f"v_mfma_f32_16x16x32_bf16 v[12:15], {vr(OX)}, {vr(WT)}, 0")
    A(f"v_mfma_f32_16x16x32_bf16 v[12:15], {vr(OX+4)}, {vr(WT+4)}, v[12:15]")
    A("v_cvt_pk_bf16_f32 v4, v12, v13\nv_cvt_pk_bf16_f32 v5, v14, v15")
    A("ds_write_b64 v24, v[4:5]\ns_waitcnt lgkmcnt(0)\ns_barrier")
    for i in range(4):
        A(f"ds_read_b128 {vr(OA_+4*i)}, v25 offset:{64*i}")

    def p_merge(T):
        for r in range(4):
            A(f"v_mov_b32_dpp v{8+r}, v{PD+4*T+r} {DPP_ID} row_mask:{1 << T:#x} bank_mask:0xf")
    for i in range(4):
        A(f"s_waitcnt lgkmcnt({3-i})")
        for T in range(4):
            D = PD + 4 * T
            A(f"v_mfma_f32_16x16x32_bf16 {vr(D)}, {vr(OA_+4*i)}, {ar(128+(T*4+i)*4)}, {'0' if i == 0 else vr(D)}")
    if Y:
        for T in range(4):
            A(f"v_cvt_pk_bf16_f32 v{PD+4*T}, v{PD+4*T}, v{PD+4*T+1}\nv_cvt_pk_bf16_f32 v{PD+4*T+1}, v{PD+4*T+2}, v{PD+4*T+3}")
        for T in range(1, 4):
            for r in range(2):
                A(f"v_mov_b32_dpp v{PD+r}, v{PD+4*T+r} {DPP_ID} row_mask:{1 << T:#x} bank_mask:0xf")
        A(f"buffer_store_dwordx2 {vr(PD, 2)}, v80, s[12:15], s31 offen {o['ypol']}")
    else:
        for T in range(4):
            p_merge(T)
        A(f"buffer_store_dwordx4 v[8:11], v2, s[12:15], s31 offen {o['ypol']}")
    stamp(10)
    poll_data(lambda: y_load("s30", o["rpol"]), 8 if Y else 4, 2 if Y else 4, 0)
    y_unpack()
    final_reduce(512, 1024)
    stamp(11)
    stamps_out()
    A("L_end:")
    A("s_endpgm")

    ST, SS, PP, TR, ACC = 32, 64, 72, 192, 128
    A("L_C:")
    A("s_cmp_lg_u32 s3, 0\ns_cbranch_scc1 L_C_q")
    A("v_lshrrev_b32 v3, 4, v0\nv_and_b32 v4, 3, v0\nv_lshlrev_b32 v5, 6, v3\nv_lshl_add_u32 v5, v4, 4, v5")
    A("v_bfe_u32 v4, v0, 2, 2\nv_lshl_add_u32 v5, v4, 8, v5")
    A(f"s_lshl_b32 s24, s26, 10\ns_add_u32 s24, s24, {WS_QB:#x}")
    A("buffer_store_dwordx4 v[8:11], v5, s[12:15], s24 offen sc1")
    A("L_C_q:")
    if o["cbw"]:
        bwo_stage(0, 512, "C")
    signal(C_Q, 64, also=C_QB)
    stamp(5)
    if not o["cbw"]:
        bwo_stage(0, 512, "C")
        A("s_waitcnt vmcnt(0)\ns_barrier")
    wo_transpose(0, HROW, 4, 128)
    LG = int(math.log2(G))
    RS = 1024 * NS
    NR = 8 if G == 1 else 16
    cpol = o["wpr"] if G == 1 else o["cpol"]
    A(f"s_and_b32 s70, s72, {NS-1}\ns_lshr_b32 s71, s72, {3+LG}")
    if G > 1:
        A(f"s_bfe_u32 s24, s72, {LNS | ((3 - LNS) << 16):#x}\ns_lshl_b32 s24, s24, {LNS-1}\ns_add_u32 s71, s71, s24")
        A(f"s_bfe_u32 s75, s72, {3 | (LG << 16):#x}")
    A("s_lshl_b32 s30, s71, 22")
    srd(4, P_CKV, 0 if 'k' in o['drop'] else 1 << 22, add="s30")
    A(f"s_mul_i32 s32, s3, {NR*RS}\ns_lshl_b32 s24, s70, 10\ns_add_u32 s32, s32, s24\ns_mul_i32 s34, s3, {NR*CROW}")

    def c_row(r, pol):
        A(f"buffer_load_dwordx4 v2, s[4:7], s32 offen {pol} lds")
        A(f"s_add_u32 m0, m0, {CROW}\ns_add_u32 s32, s32, {RS if r < NR - 1 else (3*NR + 1)*RS}")

    A("s_waitcnt lgkmcnt(0)\ns_barrier")
    dstamp(2, 6)
    for t in range(3 if G == 1 else 1):
        A(f"s_add_u32 m0, s34, {t*CTILE}")
        for r in range(NR):
            c_row(r, o["w1"])
    A("s_lshr_b32 s28, s3, 1\ns_and_b32 s29, s3, 1")
    A(f"v_and_b32 v3, 15, v0\nv_lshrrev_b32 v4, 4, v0\nv_mul_u32_u24 v19, {CROW}, v3\nv_lshl_add_u32 v19, v4, 4, v19")
    A(f"v_lshrrev_b32 v5, 2, v0\nv_mul_u32_u24 v20, {CROW}, v5\nv_and_b32 v5, 3, v0\nv_lshl_add_u32 v20, v5, 3, v20")
    A("s_lshl_b32 s24, s29, 9\nv_add_u32 v20, s24, v20")
    if G == 1:
        A(f"s_mul_i32 s24, s28, {16*CROW}\ns_add_u32 s24, s24, {3*CTILE}\nv_add_u32 v18, s24, v19")
    else:
        A(f"v_and_b32 v3, {HN-1}, v0\nv_mul_u32_u24 v18, {CROW}, v3\nv_lshl_add_u32 v18, v4, 4, v18\nv_add_u32 v18, {3*CTILE}, v18")
        A(f"s_mul_i32 s24, s28, {CTILE}\nv_add_u32 v19, s24, v19\nv_add_u32 v20, s24, v20")
    for r in range(64):
        A(f"v_mov_b32 v{ACC+r}, 0")
    A("v_mov_b32 v22, 0xff800000\nv_mov_b32 v23, 0")
    await_flag(C_Q)
    stamp(2)
    NQ = HN // 4
    A(f"s_lshl_b32 s24, s71, 15\ns_mul_i32 s25, s3, {NQ*1024}\ns_add_u32 s24, s24, s25\ns_add_u32 s24, s24, {WS_QA:#x}")
    if G > 1:
        A(f"s_mul_i32 s25, s75, {HN*1024}\ns_add_u32 s24, s24, s25")
    for r in range(NQ):
        A(f"buffer_load_dwordx4 {vr(ST+4*r)}, v2, s[12:15], s24 offen offset:{(r & 3)*1024} sc1")
        if r == 3:
            A("s_add_u32 s24, s24, 4096")
    A(f"s_mul_i32 s24, s3, {NQ*CROW}\ns_add_u32 s24, s24, {3*CTILE}\nv_add_u32 v3, s24, v2")
    for r in range(NQ):
        A(f"s_waitcnt vmcnt({NQ-1-r})\nds_write_b128 v3, {vr(ST+4*r)} offset:{r*CROW}")
    A("s_waitcnt lgkmcnt(0)\ns_barrier")
    for k in range(16):
        A(f"ds_read_b128 {ar(4*k)}, v18 offset:{64*k}")
    publish_xcc(1)
    STEP = CTILE if G == 1 else 2 * CTILE
    A(f"s_mov_b32 s27, 0\ns_mov_b32 s33, {4*CTILE - STEP}\ns_mov_b32 s35, 0")
    A("s_waitcnt lgkmcnt(0)")
    dstamp(2, 10)
    A("L_CT:")
    A(f"s_waitcnt vmcnt({16 if G == 1 else 0})\ns_barrier")
    A("v_add_u32 v24, s35, v19\nv_add_u32 v25, s35, v20")

    def qk_read(n):
        A(f"ds_read_b128 {vr(ST+4*(n & 7))}, v24 offset:{64*(n >> 1) + 16*CROW*(n & 1)}")
    for n in range(7):
        qk_read(n)
    A("s_add_u32 m0, s33, s34")
    A(f"s_mov_b32 s33, s35\ns_add_u32 s35, s35, {STEP}\ns_cmp_eq_u32 s35, {4*CTILE}\ns_cselect_b32 s35, 0, s35")
    trs = [f"ds_read_b64_tr_b16 {vr(TR+4*ct+2*z, 2)}, v25 offset:{16*z*CROW + 32*ct}" for ct in range(16) for z in range(2)]
    for n in range(32):
        D = SS + 4 * (n & 1)
        A("s_waitcnt lgkmcnt(6)")
        A(f"v_mfma_f32_16x16x32_bf16 {vr(D)}, {vr(ST+4*(n & 7))}, {ar(4*(n >> 1))}, {'0' if n < 2 else vr(D)}")
        if n + 7 < 32:
            qk_read(n + 7)
        else:
            A(trs.pop(0))
        if n % (32 // NR) == 0:
            c_row(n // (32 // NR), cpol)
    for _ in range(7):
        A(trs.pop(0))
    sm = [f"v_max3_f32 v3, v{SS}, v{SS+1}, v22"]
    sm += [f"v_max3_f32 v3, v3, v{SS+r}, v{SS+r+1}" for r in range(2, 8, 2)]
    sm += ["v_mov_b32 v4, v3", "v_permlane32_swap_b32 v3, v4", "v_max_f32 v3, v3, v4"]
    sm += ["v_mov_b32 v4, v3", "v_permlane16_swap_b32 v3, v4", "v_max_f32 v3, v3, v4"]
    sm += ["v_sub_f32 v4, v22, v3", "v_exp_f32 v4, v4", "v_mov_b32 v22, v3"]
    sm += [f"v_sub_f32 v{SS+r}, v{SS+r}, v3" for r in range(8)]
    sm += [f"v_exp_f32 v{SS+r}, v{SS+r}" for r in range(8)]
    sm += [f"v_cvt_pk_bf16_f32 v{PP+i}, v{SS+2*i}, v{SS+2*i+1}" for i in range(4)]
    for n, ins in enumerate(sm):
        A(ins)
        if trs and n >= 4:
            A(trs.pop(0))
    assert not trs
    ls = [f"v_fma_f32 v23, v23, v4, v{SS}"] + [f"v_add_f32 v23, v23, v{SS+r}" for r in range(1, 8)]

    def rescale(ct):
        for r in range(0, 4, 2):
            A(f"v_pk_mul_f32 {vr(ACC+4*ct+r,2)}, {vr(ACC+4*ct+r,2)}, v[4:5] op_sel_hi:[1,0]")
    rescale(0)
    rescale(1)
    A("s_waitcnt lgkmcnt(0)")
    for ct in range(16):
        A(f"v_mfma_f32_16x16x32_bf16 {vr(ACC+4*ct)}, {vr(TR+4*ct)}, {vr(PP)}, {vr(ACC+4*ct)}")
        if ct + 2 < 16:
            rescale(ct + 2)
    for ins in ls:
        A(ins)
    A(f"s_add_u32 s27, s27, 1\ns_cmp_lt_u32 s27, {32 if G == 4 else 16}\ns_cbranch_scc1 L_CT")
    stamp(3)
    A("s_waitcnt vmcnt(0)\ns_barrier")
    A("v_mov_b32 v4, v23\nv_permlane32_swap_b32 v23, v4\nv_add_f32 v23, v23, v4")
    A("v_mov_b32 v4, v23\nv_permlane16_swap_b32 v23, v4\nv_add_f32 v23, v23, v4")
    if G == 1:
        A("v_and_b32 v3, 15, v0\nv_lshlrev_b32 v5, 3, v3")
        A(f"s_lshl_b32 s24, s72, 8\ns_lshl_b32 s25, s28, 7\ns_add_u32 s24, s24, s25\ns_add_u32 s24, s24, {WS_PML:#x}")
        A("s_cmp_lg_u32 s29, 0\ns_cbranch_scc1 L_C_ml")
        if 'm' not in o['drop']:
            A("s_mov_b64 exec, 0xffff\nbuffer_store_dwordx2 v[22:23], v5, s[12:15], s24 offen sc1\ns_mov_b64 exec, -1")
        A("L_C_ml:")
        TROW = 528
        A(f"v_lshrrev_b32 v4, 4, v0\nv_mul_u32_u24 v3, {TROW}, v3\nv_lshl_add_u32 v3, v4, 3, v3")
        A(f"s_mul_i32 s24, s3, {16*TROW}\nv_add_u32 v3, s24, v3")
        for ct in range(16):
            r = ACC + 4 * ct
            d = ST + 2 * (ct & 7)
            A(f"v_cvt_pk_bf16_f32 v{d}, v{r}, v{r+1}\nv_cvt_pk_bf16_f32 v{d+1}, v{r+2}, v{r+3}")
            A(f"ds_write_b64 v3, {vr(d,2)} offset:{32*ct}")
        A(f"v_lshrrev_b32 v4, 5, v0\nv_and_b32 v5, 31, v0\nv_mul_u32_u24 v3, {TROW}, v4\nv_lshl_add_u32 v3, v5, 4, v3\nv_add_u32 v3, s24, v3")
        A("v_lshlrev_b32 v4, 15, v4\nv_lshl_add_u32 v4, v5, 4, v4")
        A("s_waitcnt lgkmcnt(0)")
        for k in range(8):
            A(f"ds_read_b128 {vr(SS+4*k)}, v3 offset:{2*k*TROW}")
        A("s_lshl_b32 s24, s72, 10\ns_lshl_b32 s25, s29, 9\ns_add_u32 s24, s24, s25\ns_lshl_b32 s25, s28, 19\ns_add_u32 s24, s24, s25")
        A(f"s_add_u32 s24, s24, {WS_PART:#x}")
        for k in range(8):
            A(f"s_waitcnt lgkmcnt({7-k})")
            if o["spc"] < 63:
                A(f"s_waitcnt vmcnt({o['spc']})")
            if 'p' not in o['drop']:
                A(f"buffer_store_dwordx4 {vr(SS+4*k)}, v4, s[12:15], s24 offen sc1")
            A("s_add_u32 s24, s24, 0x10000")
    else:
        XM, XA_, XT = 0, 4096, 40960
        A(f"s_lshl_b32 s24, s3, 9\nv_lshl_add_u32 v3, v0, 3, s24\nds_write_b64 v3, v[22:23] offset:{XM}")
        A("v_xor_b32 v3, 0x400, v3\ns_waitcnt lgkmcnt(0)\ns_barrier")
        A(f"ds_read_b64 v[6:7], v3 offset:{XM}\ns_waitcnt lgkmcnt(0)")
        A("v_max_f32 v3, v22, v6\nv_sub_f32 v4, v22, v3\nv_sub_f32 v6, v6, v3\nv_exp_f32 v4, v4\nv_exp_f32 v6, v6")
        A("v_mov_b32 v22, v3\nv_mul_f32 v23, v23, v4\nv_fmac_f32 v23, v7, v6")
        A(f"v_and_b32 v3, 15, v0\nv_lshlrev_b32 v5, 3, v3")
        A(f"s_lshl_b32 s24, s71, {LNS}\ns_add_u32 s31, s24, s70\ns_lshl_b32 s24, s31, 8\ns_mul_i32 s25, s75, {HN*8}\ns_add_u32 s24, s24, s25\ns_add_u32 s24, s24, {WS_PML:#x}")
        A("s_cmp_lg_u32 s3, 0\ns_cbranch_scc1 L_C_ml")
        if 'm' not in o['drop']:
            A(f"s_mov_b64 exec, {(1 << HN) - 1:#x}\nbuffer_store_dwordx2 v[22:23], v5, s[12:15], s24 offen sc1\ns_mov_b64 exec, -1")
        A("L_C_ml:")
        for r in range(0, 64, 2):
            A(f"v_pk_mul_f32 {vr(ACC+r,2)}, {vr(ACC+r,2)}, v[4:5] op_sel_hi:[1,0]")
        A(f"s_lshl_b32 s24, s3, 13\ns_add_u32 s24, s24, {XA_}\nv_add_u32 v6, s24, v2")
        A(f"s_xor_b32 s24, s3, 2\ns_lshl_b32 s24, s24, 13\ns_add_u32 s24, s24, {XA_}\nv_add_u32 v7, s24, v2")
        A("s_cmp_lg_u32 s28, 0\ns_cbranch_scc1 L_C_x1")
        for k in range(8):
            A(f"ds_write_b128 v6, {vr(ACC+32+4*k)} offset:{1024*k}")
        A("s_branch L_C_x2\nL_C_x1:")
        for k in range(8):
            A(f"ds_write_b128 v6, {vr(ACC+4*k)} offset:{1024*k}")
        A("s_waitcnt lgkmcnt(0)")
        for r in range(32):
            A(f"v_mov_b32 v{ACC+r}, v{ACC+32+r}")
        A("L_C_x2:\ns_waitcnt lgkmcnt(0)\ns_barrier")
        for k in range(8):
            A(f"ds_read_b128 {vr(TR+4*k)}, v7 offset:{1024*k}")
        TROW = 272
        A(f"v_lshrrev_b32 v4, 4, v0\nv_mul_u32_u24 v3, {TROW}, v3\nv_lshl_add_u32 v3, v4, 3, v3")
        A(f"s_mul_i32 s24, s3, {16*TROW}\ns_add_u32 s24, s24, {XT}\nv_add_u32 v3, s24, v3")
        for k in range(8):
            r = ACC + 4 * k
            d = ST + 2 * k
            A(f"s_waitcnt lgkmcnt(7)")
            for e in range(4):
                A(f"v_add_f32 v{r+e}, v{r+e}, v{TR+4*k+e}")
            A(f"v_cvt_pk_bf16_f32 v{d}, v{r}, v{r+1}\nv_cvt_pk_bf16_f32 v{d+1}, v{r+2}, v{r+3}")
            A(f"ds_write_b64 v3, {vr(d,2)} offset:{32*k}")
        A(f"v_and_b32 v5, 15, v0\nv_mul_u32_u24 v3, {TROW}, v4\nv_lshl_add_u32 v3, v5, 4, v3\nv_add_u32 v3, s24, v3")
        A(f"v_lshlrev_b32 v4, {12+LNS}, v4\nv_lshl_add_u32 v4, v5, 4, v4")
        A("s_waitcnt lgkmcnt(0)")
        for k in range(NQ):
            A(f"ds_read_b128 {vr(SS+4*k)}, v3 offset:{4*k*TROW}")
        A(f"s_lshl_b32 s24, s31, 10\ns_lshl_b32 s25, s29, 9\ns_add_u32 s24, s24, s25\ns_lshl_b32 s25, s28, 8\ns_add_u32 s24, s24, s25")
        A(f"s_mul_i32 s25, s75, {HN << (12+LNS)}\ns_add_u32 s24, s24, s25\ns_add_u32 s24, s24, {WS_PART:#x}")
        for k in range(NQ):
            A(f"s_waitcnt lgkmcnt({NQ-1-k})")
            if 'p' not in o['drop']:
                A(f"buffer_store_dwordx4 {vr(SS+4*k)}, v4, s[12:15], s24 offen sc1")
            A(f"s_add_u32 s24, s24, {4 << (12+LNS)}")
    signal(C_P, 32)
    stamp(4)
    A("s_branch L_R")
    A("L_last:")
    A("s_endpgm")

    ref = open(os.path.join(os.path.dirname(os.path.abspath(__file__)), "..", NAME + ".s.ref")).read().splitlines()
    head = [l for l in ref if l.startswith(";") and "@launch" not in l]
    head.append(f"; @launch grid=(256,1,1) block=(256,1,1) lds={LDS_BYTES}")
    pre = f'.amdgcn_target "amdgcn-amd-amdhsa--gfx950"\n.text\n.globl {NAME}_kernel\n.p2align 8\n.type {NAME}_kernel,@function\n'
    post = f""".section .rodata,"a"
.p2align 6
.amdhsa_kernel {NAME}_kernel
  .amdhsa_next_free_vgpr 512
  .amdhsa_next_free_sgpr 102
  .amdhsa_accum_offset 256
  .amdhsa_group_segment_fixed_size 0
  .amdhsa_kernarg_size 112
  .amdhsa_user_sgpr_count 2
  .amdhsa_user_sgpr_kernarg_segment_ptr 1
  .amdhsa_system_sgpr_workgroup_id_x 1
  .amdhsa_float_denorm_mode_32 3
.end_amdhsa_kernel
"""
    return "\n".join(head) + "\n" + pre + A.text() + post


if __name__ == "__main__":
    kw = {}
    out = None
    for a in sys.argv[1:]:
        if "=" in a:
            k, v = a.split("=", 1)
            kw[k] = int(v) if v.lstrip("-").isdigit() else v
        else:
            out = a
    s = gen(**kw)
    if out:
        open(out, "w").write(s)
    else:
        sys.stdout.write(s)
```

```python
import math
import os
import struct
import sys

sys.path.insert(0, os.path.dirname(os.path.abspath(__file__)))
from asmlib import Asm

NAME = "concat_heads__compressed_kv_cla__mha_block_cached__decode"

DEF = dict(
    chunk=1,
    nbank=1,
    qa=16, qb=28,
    pf="bqkouvc",
    fast=3, pdep=6,
    xi_it=7, dfr=13,
    hlp=1, h_lq=6, h_u=2, h_cw=17, h_th=36, h_sl=4, h_it=1,
    lead=12, hg=2, cpf=2, xw=1, eb=1,
    sl_cnt=4, sl_ml=64,
    stamps=0, trace=0, drop="", probe=None, vpad=0,
)

WS_QA, WS_PART, WS_PML, WS_YA, WS_QB, WS_FLAG = 0x0, 0x20000, 0x120000, 0x124000, 0x164000, 0x170000
WS_OB, WS_BML, WS_XI, WS_ELA, WS_EL, WS_YB, WS_CLR_END = 0x180000, 0x1b0000, 0x1b6000, 0x1b6400, 0x1b6800, 0x1b7800, 0x1bf800
WS_STAMP = 0x300000
WS_SIZE = 0x400000
C_Q, C_P, C_QB = 0, 4, 128

WROW = 1056
OROW = 320
L_MISC = 128 * WROW
L_QP, L_OA, L_CX = L_MISC, L_MISC + 8192, L_MISC + 10240
LDS_BYTES = L_MISC + 14336
CROW = WROW
CTILE = 32 * CROW

SCALE = struct.unpack("<I", struct.pack("<f", math.log2(math.e) / math.sqrt(128.0)))[0]
SPIN = 1 << 18

P_AX, P_CKV, P_AWQ, P_AWUK, P_AWUV, P_AWO, P_BX, P_K, P_V, P_BWQ, P_BWO, P_OUT, P_DBG, P_WS = range(36, 64, 2)
DPP_ID = "quad_perm:[0,1,2,3]"


def gen(**kw):
    o = dict(DEF)
    o.update(kw)
    A = Asm()
    chunk = o["chunk"]
    G = o["hg"]
    NS, HN = 8 // G, 32 // G
    LNS = int(math.log2(NS))
    uid = [0]
    role = ['B']

    def vr(b, n=4):
        return f"v[{b}:{b+n-1}]"

    def ar(b, n=4):
        return f"a[{b}:{b+n-1}]"

    def srd(s, ptr, size, add=None):
        if add is None:
            A(f"s_mov_b32 s{s}, s{ptr}\ns_mov_b32 s{s+1}, s{ptr+1}")
        else:
            A(f"s_add_u32 s{s}, s{ptr}, {add}\ns_addc_u32 s{s+1}, s{ptr+1}, 0")
        A(f"s_mov_b32 s{s+2}, {size:#x}\ns_mov_b32 s{s+3}, 0x20000")

    def stamp(k):
        if o["probe"] and str(k) not in (o["probe"].split(",")[0].lstrip("m"), o["probe"].split(",")[2]):
            return
        if o["stamps"]:
            A(f"s_memrealtime s[{76+2*k}:{77+2*k}]\ns_waitcnt lgkmcnt(0)")

    def trace(base):
        if o["trace"]:
            A(f"s_memrealtime s[100:101]\ns_add_u32 m0, s27, {base}\ns_waitcnt lgkmcnt(0)\nv_writelane_b32 v59, s100, m0")

    def trace_out():
        if o["trace"]:
            A(f"s_mov_b64 exec, -1\ns_lshl_b32 s24, s2, 2\ns_add_u32 s24, s24, s3\ns_lshl_b32 s24, s24, 8\ns_add_u32 s24, s24, {WS_STAMP + 0x10000:#x}")
            A("v_lshlrev_b32 v1, 2, v0\nbuffer_store_dword v59, v1, s[12:15], s24 offen")

    def probe_out():
        ka, ra, kb, rb, mult = o["probe"].split(",")
        mean = ka.startswith("m")
        ka = ka.lstrip("m")
        sreg = lambda k: 100 if k == "e" else 76 + 2 * int(k)
        uid[0] += 1
        u = uid[0]
        A(f"s_cmp_lg_u32 s3, 0\ns_cbranch_scc1 L_pr{u}")
        A("s_mov_b64 exec, 1")
        for k, rs, off, neg in ((ka, ra, 16, False), (kb, rb, 20, True)):
            if role[0] == "B":
                if "B" not in rs:
                    continue
                A(f"s_not_b32 s24, s{sreg(k)}" if neg else f"s_mov_b32 s24, s{sreg(k)}")
                if mean and not neg:
                    A("s_sub_u32 s24, s24, s100")
            else:
                A(f"s_not_b32 s24, s{sreg(k)}" if neg else f"s_mov_b32 s24, s{sreg(k)}")
                A("s_cmp_lt_u32 s74, 32")
                A(f"s_cselect_b32 s24, {'s24' if 'W' in rs else 0}, {'s24' if 'C' in rs else 0}")
            dig = [int(c) for c in rs if c.isdigit()]
            if dig:
                A(f"s_and_b32 s25, s2, 7\ns_bitcmp1_b32 {sum(1 << d for d in dig)}, s25\ns_cselect_b32 s24, s24, 0")
            A(f"v_mov_b32 v1, s24\nbuffer_atomic_{'add' if mean and not neg else 'umax'} v1, off, s[16:19], 0 offset:{off}\ns_waitcnt vmcnt(0)")
        A("v_mov_b32 v1, 1\nbuffer_atomic_add v1, off, s[16:19], 0 offset:24 sc0\ns_waitcnt vmcnt(0)")
        A(f"v_readfirstlane_b32 s24, v1\ns_cmp_lg_u32 s24, 255\ns_cbranch_scc1 L_pr{u}")
        A("buffer_load_dwordx2 v[4:5], off, s[16:19], 0 offset:16 sc1\ns_waitcnt vmcnt(0)")
        A("v_readfirstlane_b32 s24, v4\nv_readfirstlane_b32 s25, v5\ns_not_b32 s25, s25")
        A("s_mul_i32 s24, s24, 341\ns_lshr_b32 s24, s24, 16" if mean else "s_sub_u32 s24, s24, s25")
        A("s_min_u32 s24, s24, 20000")
        A("v_mov_b32 v1, s24\nbuffer_store_dword v1, off, s[16:19], 0 offset:28")
        if mult.startswith("T"):
            T, m = (mult[1:].split("x") + ["0"])[:2]
            A(f"s_mov_b32 s28, s25\ns_mul_i32 s24, s24, {m}\ns_add_u32 s24, s24, {T}")
        else:
            A(f"s_mul_i32 s24, s24, {mult}\ns_memrealtime s[28:29]\ns_waitcnt lgkmcnt(0)")
        A(f"L_pr{u}_w:\ns_memrealtime s[30:31]\ns_waitcnt lgkmcnt(0)\ns_sub_u32 s25, s30, s28\ns_cmp_lt_u32 s25, s24\ns_cbranch_scc1 L_pr{u}_w")
        A(f"L_pr{u}:")

    def stamps_out():
        if o["probe"]:
            probe_out()
        elif o["stamps"]:
            A("s_lshl_b32 s24, s2, 2\ns_add_u32 s24, s24, s3\ns_lshl_b32 s24, s24, 6")
            A(f"s_add_u32 s24, s24, {WS_STAMP:#x}")
            A("s_mov_b64 exec, 1")
            for k in range(12):
                A(f"v_mov_b32 v1, s{76+2*k}")
                A(f"buffer_store_dword v1, off, s[12:15], s24 offset:{4*k}")
            A("s_getreg_b32 s25, hwreg(HW_REG_XCC_ID, 0, 4)\nv_mov_b32 v1, s25")
            A("buffer_store_dword v1, off, s[12:15], s24 offset:48")
            A("s_getreg_b32 s25, hwreg(HW_REG_HW_ID)\nv_mov_b32 v1, s25")
            A("buffer_store_dword v1, off, s[12:15], s24 offset:52")

    def signal(cnt, n, also=None, only_w=False):
        uid[0] += 1
        u = uid[0]
        A("s_waitcnt vmcnt(0)\ns_barrier")
        A(f"s_cmp_lg_u32 s3, 0\ns_cbranch_scc1 L_sig{u}")
        A("s_mov_b64 exec, 1\nv_mov_b32 v3, 1")
        if also is not None:
            A(f"v_mov_b32 v4, 1\nbuffer_atomic_add v4, off, s[16:19], 0 offset:{also}")
        A(f"buffer_atomic_add v3, off, s[16:19], 0 offset:{cnt} sc0")
        A("s_waitcnt vmcnt(0)\nv_readfirstlane_b32 s24, v3\ns_mov_b64 exec, -1")
        A(f"s_and_b32 s24, s24, {n-1}\ns_cmp_lg_u32 s24, {n-1}\ns_cbranch_scc1 L_sig{u}")
        A(f"v_lshlrev_b32 v4, 7, v0\nv_mov_b32 v3, 1\ns_mov_b32 s24, {WS_FLAG:#x}")
        if only_w:
            A("s_mov_b32 exec_hi, 0")
        A(f"buffer_store_dword v3, v4, s[12:15], s24 offen offset:{cnt} sc1")
        if only_w:
            A("s_mov_b64 exec, -1")
        A(f"L_sig{u}:")

    def poll_word(load, v, val, done, sleep, cmp="eq"):
        uid[0] += 1
        u = uid[0]
        A(f"s_mov_b32 s24, {SPIN}\ns_mov_b64 exec, 1")
        A(f"L_aw{u}:")
        A(load)
        A(f"s_waitcnt vmcnt(0)\nv_readfirstlane_b32 s25, v{v}")
        A(f"s_cmp_{cmp}_u32 s25, {val}\ns_cbranch_scc1 {done}")
        A(f"s_sleep {sleep}\ns_sub_u32 s24, s24, 1\ns_cmp_lg_u32 s24, 0\ns_cbranch_scc1 L_aw{u}")

    def await_flag(cnt):
        uid[0] += 1
        x = f"L_awx{uid[0]}"
        A(f"s_cmp_lg_u32 s3, 0\ns_cbranch_scc1 {x}")
        poll_word(f"buffer_load_dword v1, off, s[12:15], s73 offset:{cnt} sc1", 1, 1, x, o["sl_cnt"])
        A(f"{x}:\ns_mov_b64 exec, -1\ns_barrier")

    def code_prefetch(lo, hi, back=True):
        if not o["cpf"]:
            return
        uid[0] += 1
        A(f"s_getpc_b64 s[24:25]\nL_pc{uid[0]}:")
        if back:
            A(f"s_sub_u32 s24, s24, L_pc{uid[0]}-{lo}\ns_subb_u32 s25, s25, 0")
        else:
            A(f"s_add_u32 s24, s24, {lo}-L_pc{uid[0]}\ns_addc_u32 s25, s25, 0")
        A(f"v_lshl_add_u32 v16, v0, 2, s3\nv_lshlrev_b32 v16, 7, v16\nv_min_u32 v16, {hi}-{lo}-4, v16")
        A("v_mov_b32 v17, s25\nv_add_co_u32 v16, vcc, s24, v16\nv_addc_co_u32 v17, vcc, 0, v17, vcc")
        A("global_load_dword v17, v[16:17], off")

    MASK, SELE, SELO = 20, 24, 28
    WB = 128

    def make_masks(sel=True):
        A("v_and_b32 v3, 1, v0\nv_lshlrev_b32 v3, 4, v3\nv_mov_b32 v4, 0xffff\nv_lshlrev_b32 v4, v3, v4")
        A("v_bfe_u32 v3, v0, 1, 2")
        for i in range(4):
            A(f"v_cmp_eq_u32 vcc, {i}, v3\nv_cndmask_b32 v{MASK+i}, 0, v4, vcc")
        if sel:
            A("v_mov_b32 v3, 0x0c0c0c0c\ns_mov_b32 s24, 0x01000100\ns_mov_b32 s25, 0x03020302")
            for i in range(4):
                A(f"v_bfi_b32 v{SELE+i}, v{MASK+i}, s24, v3\nv_bfi_b32 v{SELO+i}, v{MASK+i}, s25, v3")

    def gemv(xs, accs, wait=None, after=None):
        for j in range(32):
            sel = SELO if j & 1 else SELE
            for p, x in enumerate(xs):
                for i in range(4):
                    A(f"v_perm_b32 v{(8, 4)[p]+i}, v{x+j//2}, v{x+j//2}, v{sel+i}")
            if wait:
                wait(j)
            for p, acc in enumerate(accs):
                A(f"v_mfma_f32_16x16x32_bf16 {vr(acc)}, {vr(WB+4*j)}, {vr((8, 4)[p])}, {'0' if j == 0 else vr(acc)}")
            if after:
                after(j)

    def q_reduce(accs, rd, dst, tmp):
        A("v_lshrrev_b32 v3, 4, v0\nv_lshlrev_b32 v3, 7, v3\nv_and_b32 v4, 7, v0\nv_lshl_add_u32 v3, v4, 2, v3")
        A("v_bfe_u32 v4, v0, 3, 1\nv_lshl_add_u32 v3, v4, 9, v3")
        A(f"s_lshl_b32 s24, s3, 11\ns_add_u32 s24, s24, {L_QP}\nv_add_u32 v3, s24, v3")
        for p, acc in enumerate(accs):
            for r in range(4):
                A(f"ds_write_b32 v3, v{acc+r} offset:{p*1024 + r*32}")
        A("s_waitcnt lgkmcnt(0)\ns_barrier")
        for w in range(4):
            A(f"ds_read_b128 {vr(tmp+8*w)}, v{rd} offset:{w*2048}")
            A(f"ds_read_b128 {vr(tmp+8*w+4)}, v{rd} offset:{w*2048+16}")
        for w in range(1, 4):
            A(f"s_waitcnt lgkmcnt({6-2*w})")
            for e in range(8):
                A(f"v_add_f32 v{tmp+e}, v{tmp+e}, v{tmp+8*w+e}")
        for i in range(4):
            A(f"v_cvt_pk_bf16_f32 v{dst+i}, v{tmp+2*i}, v{tmp+2*i+1}")

    def diag_sum(D, y, t):
        src = D + y
        for a in range(4):
            if a != y:
                A(f"v_add_f32_dpp v{t}, v{D+a}, v{src} quad_perm:[{a},{a},{a},{a}] row_mask:0xf bank_mask:0xf")
                src = t

    def quad_masks():
        for y in range(1, 4):
            A(f"s_mov_b32 s{62+2*y}, {0x11111111 << y:#x}\ns_mov_b32 s{63+2*y}, {0x11111111 << y:#x}")

    def wave_reduce(op, v, sdst):
        for c in ("row_ror:8", "row_ror:4", "row_ror:2", "row_ror:1"):
            A(f"{op}_dpp v{v}, v{v}, v{v} {c} row_mask:0xf bank_mask:0xf")
        A(f"{op}_dpp v{v}, v{v}, v{v} row_bcast:15 row_mask:0xa bank_mask:0xf")
        A(f"{op}_dpp v{v}, v{v}, v{v} row_bcast:31 row_mask:0xc bank_mask:0xf")
        A(f"v_readlane_b32 s{sdst}, v{v}, 63")

    def wo_stage():
        A("s_mov_b32 s70, 0\nL_woA:")
        A("s_and_b32 s24, s70, 3\ns_lshl_b32 s24, s24, 1\ns_lshr_b32 s25, s70, 2\ns_or_b32 s24, s24, s25")
        A("s_lshl_b32 s24, s24, 10\ns_add_u32 s24, s24, s33")
        A(f"s_mul_i32 s25, s70, {4*WROW}\ns_add_u32 m0, s25, s34")
        for r in range(4):
            A("s_waitcnt vmcnt(24)")
            A("buffer_load_dwordx4 v2, s[8:11], s24 offen nt lds")
            if r < 3:
                A(f"s_add_u32 m0, m0, {WROW}\ns_add_u32 s24, s24, 8192")
        A("s_add_u32 s70, s70, 1\ns_cmp_lt_u32 s70, 8\ns_cbranch_scc1 L_woA")

    def wo_transpose():
        A(f"v_lshrrev_b32 v3, 2, v0\nv_mul_u32_u24 v3, {WROW}, v3\nv_and_b32 v4, 3, v0\nv_lshl_add_u32 v3, v4, 3, v3")
        A(f"s_lshl_b32 s24, s3, 8\nv_add_u32 v3, s24, v3\nv_add_u32 v4, {64*WROW}, v3")
        for T in range(8):
            for i in range(4):
                for z in range(2):
                    A(f"ds_read_b64_tr_b16 {ar((T*4+i)*4+2*z, 2)}, v{3 if i < 2 else 4} offset:{(32*(i&1)+16*z)*WROW + T*32}")

    def wave_head(dst):
        A(f"s_and_b32 s24, s3, 1\ns_lshl_b32 s24, s24, 1\ns_and_b32 {dst}, s3, 2\ns_lshl_b32 {dst}, {dst}, 3\ns_or_b32 {dst}, {dst}, s24")
        A(f"s_and_b32 s24, s26, 13\ns_or_b32 {dst}, {dst}, s24")

    def bwo_stage():
        srd(8, P_BWO, 4 << 20)
        wave_head("s25")
        A("s_lshl_b32 s25, s25, 17\ns_lshr_b32 s24, s74, 3\ns_lshl_b32 s24, s24, 7\ns_add_u32 s24, s24, s25")
        A("v_lshrrev_b32 v3, 4, v0\nv_lshlrev_b32 v3, 15, v3\nv_and_b32 v4, 8, v0\nv_lshl_add_u32 v3, v4, 10, v3\nv_and_b32 v4, 0x70, v2\nv_add_u32 v3, v3, v4")
        A(f"s_mul_i32 m0, s3, {16*WROW}")
        rows = [16 * (g & 1) + (g >> 1) + 2 * r for g in range(4) for r in range(4)]
        for k, row in enumerate(rows):
            A("buffer_load_dwordx4 v3, s[8:11], s24 offen nt lds")
            if k < 15:
                A(f"s_add_u32 m0, m0, {WROW}\ns_add_u32 s24, s24, {(rows[k+1] - row) * 1024}")

    def bwo_transpose():
        A(f"v_lshrrev_b32 v3, 2, v0\nv_mul_u32_u24 v3, {WROW}, v3\nv_and_b32 v4, 3, v0\nv_lshl_add_u32 v3, v4, 3, v3")
        A("s_lshl_b32 s24, s3, 5\nv_add_u32 v3, s24, v3")
        for hq in range(4):
            for i in range(4):
                for z in range(2):
                    A(f"ds_read_b64_tr_b16 {ar(128+(hq*4+i)*4+2*z, 2)}, v3 offset:{16*hq*WROW + 128*(2*i+z)}")

    def head_of():
        A("s_and_b32 s25, s26, 1\ns_lshl_b32 s25, s25, 1\ns_and_b32 s26, s26, 2\ns_lshl_b32 s26, s26, 3\ns_or_b32 s26, s26, s25\ns_or_b32 s26, s26, s70")

    def publish_xcc():
        uid[0] += 1
        A(f"s_cmp_lg_u32 s3, 0\ns_cbranch_scc1 L_xi{uid[0]}")
        A("s_and_b32 s24, s74, 7\ns_lshl_b32 s24, s24, 5\ns_lshr_b32 s25, s74, 3\ns_add_u32 s24, s24, s25\ns_lshl_b32 s24, s24, 2")
        A(f"s_add_u32 s24, s24, {WS_XI:#x}\ns_getreg_b32 s25, hwreg(HW_REG_XCC_ID, 0, 4)")
        A("s_mov_b64 exec, 1\nv_mov_b32 v3, s25\nbuffer_store_dword v3, off, s[12:15], s24 sc1\ns_mov_b64 exec, -1")
        A(f"L_xi{uid[0]}:")

    def near_far(store):
        uid[0] += 1
        A(f"s_cbranch_scc1 L_far{uid[0]}\n{store}\ns_branch L_near{uid[0]}\nL_far{uid[0]}:\n{store} sc1\nL_near{uid[0]}:")

    ONE, FX, FD = 84, 128, 92

    def finish_setup():
        srd(20, P_OUT, 8192)
        A("v_and_b32 v3, 3, v0\nv_lshlrev_b32 v80, 4, v3\nv_bfe_u32 v4, v0, 2, 1\nv_lshl_add_u32 v80, v4, 3, v80")
        A("v_lshrrev_b32 v5, 3, v0\nv_lshl_add_u32 v80, v5, 6, v80")
        A("v_lshlrev_b32 v82, 11, v3\nv_lshl_add_u32 v82, v4, 3, v82\nv_lshrrev_b32 v3, 4, v0\nv_lshl_add_u32 v82, v3, 4, v82")
        A("v_and_b32 v5, 1, v5\nv_lshl_add_u32 v82, v5, 6, v82")
        A("v_and_b32 v81, 0xf0, v2\nv_lshl_add_u32 v81, v3, 12, v81")
        A("v_cmp_eq_u32 vcc, 0, v5\nv_mov_b32 v3, 0x3f803f80\nv_cndmask_b32 v4, 0, v3, vcc\nv_xor_b32 v5, v3, v4")
        for i in range(4):
            A(f"v_and_b32 v{ONE+i}, v4, v{MASK+i}\nv_and_b32 v{ONE+4+i}, v5, v{MASK+i}")

    def elect(so):
        A(f"s_mov_b64 exec, 1\nv_mov_b32 v83, 64\nbuffer_atomic_add v83, off, s[12:15], {so} sc0\ns_mov_b64 exec, -1")

    def finish(base, out):
        uid[0] += 1
        u = uid[0]
        A(f"s_mov_b32 s25, {SPIN}\nL_fi{u}:\ns_mov_b32 s24, {base}")
        for k in range(8):
            for cb in range(2):
                A(f"buffer_load_dwordx4 {vr(FX+8*k+4*cb)}, v81, s[12:15], s24 offen offset:{256*cb} sc1")
            if k < 7:
                A("s_add_u32 s24, s24, 0x4000")
        for n in range(16):
            A(f"s_waitcnt vmcnt({15-n})")
            A(f"v_mfma_f32_16x16x32_bf16 {vr(FD)}, {vr(FX+4*n)}, {vr(ONE+4*(n & 1))}, {vr(FD) if n else 0}")
        A(f"v_cmp_u_f32 vcc, v{FD}, v{FD+1}\nv_cmp_u_f32 s[68:69], v{FD+2}, v{FD+3}")
        A(f"v_cvt_pk_bf16_f32 v4, v{FD}, v{FD+1}\nv_cvt_pk_bf16_f32 v5, v{FD+2}, v{FD+3}")
        A(f"s_or_b64 vcc, vcc, s[68:69]\ns_cbranch_scc0 L_fi{u}_x")
        A(f"v_max_u32 v3, v{FX}, v{FX+1}")
        for k in range(2, 64, 2):
            A(f"v_max3_u32 v3, v3, v{FX+k}, v{FX+k+1}")
        A(f"v_cmp_eq_u32 vcc, -1, v3\ns_sub_u32 s25, s25, 1\ns_cmp_eq_u32 s25, 0\ns_cbranch_scc1 L_fi{u}_x")
        A(f"s_cmp_lg_u64 vcc, 0\ns_cbranch_scc1 L_fi{u}")
        A(f"L_fi{u}_x:\nbuffer_store_dwordx2 v[4:5], v82, s[20:23], {out} offen")

    def poll_data(loads, lo, n, sleep):
        uid[0] += 1
        u = uid[0]
        A(f"s_mov_b32 s24, {SPIN}")
        if sleep:
            A(f"s_branch L_pd{u}_in\nL_pd{u}:\ns_sleep {sleep}\nL_pd{u}_in:")
        else:
            A(f"L_pd{u}:")
        loads()
        A("s_waitcnt vmcnt(0)")
        A(f"v_max_u32 v3, v{lo}, v{lo+1}")
        for k in range(2, n, 2):
            A(f"v_max3_u32 v3, v3, v{lo+k}, v{lo+k+1}")
        A(f"v_cmp_eq_u32 vcc, -1, v3\ns_sub_u32 s24, s24, 1\ns_cmp_eq_u32 s24, 0\ns_cbranch_scc1 L_pd{u}_x")
        A(f"s_and_b64 exec, exec, vcc\ns_cbranch_scc1 L_pd{u}")
        A(f"L_pd{u}_x:\ns_mov_b64 exec, -1")

    A(f"{NAME}_kernel:")
    if o["probe"] or o["vpad"]:
        A("s_memrealtime s[100:101]")
    elif o["stamps"]:
        A("s_memrealtime s[94:95]")
    A("s_load_dwordx16 s[36:51], s[0:1], 0\ns_load_dwordx8 s[52:59], s[0:1], 64\ns_load_dwordx4 s[60:63], s[0:1], 96")
    A("s_cmp_ge_u32 s2, 256\ns_cbranch_scc1 L_end")
    A("s_cmp_lt_u32 s2, 64")
    if o["cpf"] == 2:
        A("; pull the first code of this role into L2 while the kernel arguments arrive")
        A("s_getpc_b64 s[24:25]\nL_pc0:\ns_cselect_b32 s20, L_A-L_pc0, 0")
        A("v_lshlrev_b32 v16, 7, v0\nv_min_u32 v16, L_A-L_pc0-4, v16\nv_add_u32 v16, s20, v16")
        A("v_add_co_u32 v16, vcc, s24, v16\nv_mov_b32 v17, s25\nv_addc_co_u32 v17, vcc, 0, v17, vcc")
        A("global_load_dword v17, v[16:17], off")
    A("s_cbranch_scc1 L_A")

    def lane_ids():
        A("v_lshrrev_b32 v1, 6, v0\nv_and_b32 v0, 63, v0\nv_readfirstlane_b32 s3, v1\nv_lshlrev_b32 v2, 4, v0")

    RING, BQ, SR = 64, 32, 48
    PF = dict(b=(P_BWQ, 24, 13, 512), q=(P_AWQ, 24, 13, 512), k=(P_AWUK, 24, 13, 512), u=(P_AWUV, 24, 13, 512),
              o=(P_BWO, 25, 8, 512), v=(P_AWO, 25, 8, 512), c=(P_CKV, 26, 10 + LNS, 2048))

    def l2_prefetch(order, dep):
        for ch in order:
            ptr, vb, sh, cnt = PF[ch]
            A(f"s_mov_b64 s[8:9], s[{ptr}:{ptr+1}]")
            if cnt != 512:
                A(f"s_mov_b32 s10, {cnt*8192:#x}")
            A(f"L_pf{ch}:")
            A(f"s_lshl_b32 s24, s74, {sh}")
            if dep is not None:
                A(f"s_waitcnt vmcnt({dep})")
            A(f"buffer_load_dwordx4 v[28:31], v{vb}, s[8:11], s24 offen")
            A(f"s_addk_i32 s74, 96\ns_cmpk_lt_u32 s74, {cnt}\ns_cbranch_scc1 L_pf{ch}")
            A(f"s_addk_i32 s74, {-cnt}")
            if cnt != 512:
                A("s_mov_b32 s10, 0x400000")

    A("L_B:")
    A("s_and_b32 s70, s2, 6\ns_and_b32 s25, s2, 7\ns_add_u32 s70, s70, s25\ns_lshl_b32 s25, s70, 8")
    A("v_and_b32 v6, 15, v0\nv_lshl_add_u32 v24, v6, 4, s25\nv_and_b32 v4, 16, v0\nv_lshl_add_u32 v24, v4, 5, v24")
    A("v_lshrrev_b32 v4, 5, v0\nv_lshl_add_u32 v24, v4, 12, v24")
    A("s_lshr_b32 s74, s2, 3\ns_lshl_b32 s74, s74, 2\ns_addk_i32 s74, -32")
    A("s_mov_b32 s10, 0x400000\ns_mov_b32 s11, 0x20000")
    nf = o["fast"]
    assert all(PF[c][1] == 24 for c in o["pf"][:nf])
    A("s_waitcnt lgkmcnt(0)")
    stamp(0)
    l2_prefetch(o["pf"][:nf], None)
    lane_ids()
    if o["cpf"] == 1:
        code_prefetch("L_B", "L_A")
    A("s_lshr_b32 s24, s2, 3\ns_sub_u32 s24, s24, 8")
    A("s_mul_i32 s26, s24, 43\ns_lshr_b32 s26, s26, 8\ns_mul_i32 s27, s26, 6\ns_sub_u32 s27, s24, s27")
    head_of()
    A("s_lshl_b32 s25, s70, 17\ns_lshl_b32 s24, s3, 8\ns_add_u32 s25, s25, s24\nv_lshl_add_u32 v25, v6, 4, s25")
    A("v_and_b32 v4, 16, v0\nv_lshl_add_u32 v25, v4, 14, v25\nv_and_b32 v4, 32, v0\nv_lshl_add_u32 v25, v4, 16, v25")
    A(f"s_and_b32 s25, s2, {NS-1}\ns_lshl_b32 s25, s25, 10\ns_lshl_b32 s24, s3, {10+LNS}\ns_add_u32 s25, s25, s24")
    A(f"s_bfe_u32 s24, s2, {LNS | ((3 - LNS) << 16):#x}\ns_lshl_b32 s24, s24, {21 + LNS}\ns_add_u32 s25, s25, s24")
    A("v_add_u32 v26, s25, v2")
    A("s_cmp_ge_u32 s27, 3\ns_cselect_b32 s28, 1, 0\ns_mul_i32 s29, s28, 3\ns_sub_u32 s29, s27, s29")
    A("s_lshr_b32 s72, s3, 1\ns_lshl_b32 s24, s28, 1\ns_add_u32 s72, s72, s24")
    A("s_and_b32 s31, s3, 1\ns_lshl_b32 s24, s29, 1\ns_add_u32 s31, s31, s24")
    A("s_lshl_b32 s30, s72, 5\ns_add_u32 s30, s30, s26\ns_lshl_b32 s30, s30, 20")
    A("v_lshrrev_b32 v3, 4, v0\nv_and_b32 v4, 3, v0\nv_lshlrev_b32 v5, 6, v3\nv_lshl_add_u32 v5, v4, 4, v5")
    A("v_bfe_u32 v1, v0, 2, 2\nv_lshl_add_u32 v1, v1, 8, v5")
    NREG = 1024 // (6 * chunk) * chunk
    NLFT = 171 - NREG
    A(f"s_mul_i32 s35, s31, {chunk*1024}\ns_add_u32 s32, s35, {160*6144}")
    A(f"s_mul_i32 s28, s31, {NLFT*1024}\ns_add_u32 s28, s28, {NREG*6144}")
    A("s_mov_b32 s6, 0x100000\ns_mov_b32 s7, 0x20000")
    A(f"s_add_u32 s4, s{P_K}, s30\ns_addc_u32 s5, s{P_K+1}, 0")
    srd(12, P_WS, WS_SIZE)
    srd(16, P_DBG, 256)
    make_masks(sel=False)
    quad_masks()
    for x in range(16):
        A(f"v_mov_b32 v{BQ+x}, 0")
    A("v_lshrrev_b32 v3, 4, v0\nv_lshlrev_b32 v60, 6, v3\nv_and_b32 v4, 7, v0\nv_lshl_add_u32 v60, v4, 3, v60")
    A("s_lshl_b32 s33, s26, 2\ns_add_u32 s33, s33, s72")
    A(f"s_lshl_b32 s34, s33, 8\ns_add_u32 s34, s34, {WS_QB:#x}")
    A(f"s_mul_i32 s73, s33, 6\ns_add_u32 s73, s73, s31\ns_lshl_b32 s73, s73, 8\ns_add_u32 s73, s73, {WS_OB:#x}")
    l2_prefetch(o["pf"][nf:], o["pdep"])
    stamp(8)

    def sload(i, dst):
        if i >= NREG:
            A(f"buffer_load_dwordx4 {dst}, v1, s[4:7], s28 offen offset:{(i - NREG)*1024} nt")
            return
        A(f"buffer_load_dwordx4 {dst}, v1, s[4:7], s32 offen offset:{(i % chunk)*1024} nt")
        if i % chunk == chunk - 1:
            A(f"s_add_u32 s32, s32, {6*chunk*1024}")

    def park(lo, hi):
        for n in range(lo, hi):
            A("s_waitcnt vmcnt(15)")
            if n < 11:
                sload(160 + n, ar(4 * n))
            else:
                if n == 11:
                    A("s_mov_b32 s32, s35")
                m = n - 11
                sload(m, ar(64 + 4 * m) if m < 16 * NB else vr(RING + 4 * (m - 16 * NB)))

    NB = o["nbank"]
    NP = 27 + 16 * NB
    qa, qb = o["qa"], o["qb"]
    park(0, qa)
    stamp(6)
    A(f"s_mov_b64 exec, 1\nbuffer_load_dword v61, off, s[16:19], 0 offset:{C_QB} sc1\ns_mov_b64 exec, -1")
    park(qa, qb)
    A(f"s_waitcnt vmcnt({qb - qa})\nv_readfirstlane_b32 s25, v61")
    A("s_cmp_ge_u32 s25, 32\ns_cbranch_scc1 L_B_q")
    poll_word(f"buffer_load_dword v61, off, s[16:19], 0 offset:{C_QB} sc1", 61, 32, "L_B_q", 16, "ge")
    A("L_B_q:\ns_mov_b64 exec, -1")
    stamp(7)
    A("buffer_load_dwordx4 v[8:11], v5, s[12:15], s34 offen sc1")
    park(qb, NP)
    A(f"s_waitcnt vmcnt({min(15, NP - qb)})")
    for x in range(4):
        for i in range(4):
            A(f"v_mov_b32_dpp v{BQ+4*x+i}, v{8+i} {DPP_ID} row_mask:0xf bank_mask:{1 << x:#x}")
    stamp(1)

    def kblock(src, S, n, stream):
        for j in range(n):
            x, y = j & 3, j >> 2
            D = 12 + 4 * (y & 1)
            if stream:
                A("s_waitcnt vmcnt(15)")
            A(f"v_mfma_f32_16x16x32_bf16 {vr(D)}, {src(j)}, {vr(BQ+4*x)}, {'0' if x == 0 else vr(D)}")
            if stream:
                sload(j, src(j))
            if x == 3 or j == n - 1:
                if y == 0:
                    diag_sum(D, 0, S)
                else:
                    diag_sum(D, y, 3)
                    A(f"v_cndmask_b32 v{S}, v{S}, v3, s[{62+2*y}:{63+2*y}]")

    A(f"s_mov_b32 s27, {NB}")
    A("L_BK:")
    trace(1)
    A("s_cmp_lg_u32 s27, 9\ns_cbranch_scc1 L_BK_a")
    A(f"s_add_u32 s4, s{P_V}, s30\ns_addc_u32 s5, s{P_V+1}, 0\ns_mov_b32 s32, s35\nv_mov_b32 v1, v2")
    A("L_BK_a:")
    A("s_barrier")
    A(f"s_cmp_lg_u32 s27, {o['xi_it']}\ns_cbranch_scc1 L_BK_x0")
    A(f"s_and_b32 s24, s2, 7\ns_lshl_b32 s24, s24, 7\ns_add_u32 s24, s24, {WS_XI:#x}")
    A("v_and_b32 v63, 7, v0\nv_lshlrev_b32 v63, 2, v63\nbuffer_load_dword v62, v63, s[12:15], s24 offen sc1")
    A("L_BK_x0:")
    A(f"s_cmp_lg_u32 s27, {o['xi_it']+1}\ns_cbranch_scc1 L_BK_x1")
    A("s_getreg_b32 s24, hwreg(HW_REG_XCC_ID, 0, 4)\nv_cmp_ne_u32 vcc, s24, v62\ns_or_b32 s75, vcc_lo, vcc_hi")
    for i in range(4):
        A(f"v_mov_b32 v{28+i}, -1")
    A("s_mov_b64 exec, 0xffff")
    near_far("buffer_store_dwordx4 v[28:31], v2, s[12:15], s73 offen")
    A("s_mov_b64 exec, -1")
    A("L_BK_x1:")
    for k in range(NB, 9):
        A(f"v_mov_b32 v{SR+k}, v{SR+k+1}")
    kblock(lambda j: vr(RING + 4 * j), SR + 9, 16, True)
    for k in range(NB):
        A(f"s_cmp_lg_u32 s27, {NB+2+k}\ns_cbranch_scc1 L_BK_c{k}")
        kblock(lambda j: ar(64 + 64 * k + 4 * j), SR + k, 16, False)
        A(f"L_BK_c{k}:")
    A(f"s_cmp_lg_u32 s27, {NB+1}\ns_cbranch_scc1 L_BK_b")
    kblock(lambda j: ar(4 * j), SR + 10, 11, False)
    A(f"s_mul_i32 s24, s31, {NLFT}\ns_sub_i32 s24, {1024 - 6*NREG}, s24\ns_max_i32 s24, s24, 0\ns_min_i32 s24, s24, {NLFT}\ns_add_u32 s24, s24, {NREG - 160}")
    A("v_and_b32 v3, 3, v0\nv_bfe_u32 v4, v0, 2, 2\nv_lshl_add_u32 v3, v3, 2, v4")
    A(f"v_mov_b32 v4, 0xff800000\nv_cmp_gt_u32 vcc, s24, v3\nv_cndmask_b32 v{SR+10}, v4, v{SR+10}, vcc")
    A(f"v_mov_b32 v61, {SCALE:#x}\nv_mov_b32 v7, 0")
    A(f"s_lshl_b32 s34, s2, 7\ns_add_u32 s34, s34, {WS_BML - 64*128:#x}")
    A("L_BK_b:")
    A("s_add_u32 s27, s27, 1\ns_cmp_lt_u32 s27, 10\ns_cbranch_scc1 L_BK")
    stamp(2)

    A(f"v_max3_f32 v3, v{SR}, v{SR+1}, v{SR+2}")
    for k in range(3, 11, 2):
        A(f"v_max3_f32 v3, v3, v{SR+k}, v{SR+k+1}")
    wave_reduce("v_max_f32", 3, 24)
    A("v_mul_f32 v6, s24, v61")

    def probs(ks):
        for k in ks:
            A(f"v_fma_f32 v{SR+k}, v{SR+k}, v61, -v6")
        for k in ks:
            A(f"v_exp_f32 v{SR+k}, v{SR+k}")
        for k in ks:
            A(f"v_add_f32 v7, v7, v{SR+k}")
        for k in ks:
            A(f"v_cvt_pk_bf16_f32 v{SR+k}, v{SR+k}, v{SR+k}")

    def publish_ml():
        wave_reduce("v_add_f32", 7, 70)
        A("s_lshl_b32 s25, s3, 4\ns_add_u32 s25, s25, s34")
        A("s_mov_b64 exec, 1\nv_mov_b32 v7, s70")
        A("s_cmp_lg_u32 s75, 0")
        near_far("buffer_store_dwordx2 v[6:7], off, s[12:15], s25")
        A("s_mov_b64 exec, -1")
    for i in range(4):
        A(f"v_mov_b32 v{12+i}, 0")
    probs([0])
    stamp(3)

    A("s_mov_b32 s27, 0")
    A("L_BV:")
    trace(11)
    A("s_barrier")
    if o["hlp"]:
        A(f"s_cmp_ge_u32 s27, {o['h_it']}\ns_cselect_b32 s71, s3, 4")

    def v_finish():
        if o["vpad"]:
            A(f"s_lshr_b32 s24, s2, 3\ns_mul_i32 s24, s24, 6\ns_sub_u32 s24, {o['vpad']}, s24")
            A("L_vpad:\ns_memrealtime s[98:99]\ns_waitcnt lgkmcnt(0)\ns_sub_u32 s25, s98, s100\ns_cmp_lt_u32 s25, s24\ns_cbranch_scc1 L_vpad")
        stamp(4)
        A("s_mov_b32 exec_lo, 0x00ff00ff\ns_mov_b32 exec_hi, 0x00ff00ff")
        A("s_cmp_lg_u32 s75, 0")
        A("v_cvt_pk_bf16_f32 v4, v12, v13\nv_cvt_pk_bf16_f32 v5, v14, v15")
        if 'b' not in o['drop']:
            near_far("buffer_store_dwordx2 v[4:5], v60, s[12:15], s73 offen")
        stamp(5)
        trace_out()
        stamps_out()
        A("s_endpgm")

    def v_step(j, p, cnt):
        x, y = j & 3, j >> 2
        for i in range(4):
            A(f"v_and_b32_dpp v{8+i}, v{p}, v{MASK+i} row_newbcast:{4*x+y} row_mask:0xf bank_mask:0xf")
        A(f"s_waitcnt vmcnt({cnt})")
        A(f"v_mfma_f32_16x16x32_bf16 v[12:15], {vr(RING+4*j)}, v[8:11], v[12:15]")

    NOUT = NREG - 160
    for j in range(16):
        x, y = j & 3, j >> 2
        if j == NOUT:
            A("s_cmp_eq_u32 s27, 9\ns_cbranch_scc1 L_BT")
        if j == o["dfr"]:
            A("s_cmp_lg_u32 s27, 0\ns_cbranch_scc1 L_BV_d")
            probs(range(1, 11))
            publish_ml()
            A("L_BV_d:")
        if o["hlp"] and x == 0:
            A(f"s_cmp_lg_u32 s71, {y}\ns_cbranch_scc1 L_BV_p{y}")
            A(f"s_lshl_b32 s24, s27, 2\ns_add_u32 s24, s24, {y}\ns_mov_b64 exec, 1\nv_mov_b32 v63, s24")
            A("s_cmp_lg_u32 s75, 0")
            near_far("buffer_store_dword v63, off, s[12:15], s34 offset:64")
            A("s_mov_b64 exec, -1")
            A(f"L_BV_p{y}:")
        v_step(j, SR, 15)
        sload(j, vr(RING + 4 * j))
    for k in range(10):
        A(f"v_mov_b32 v{SR+k}, v{SR+k+1}")
    A("s_add_u32 s27, s27, 1\ns_branch L_BV")
    A("L_BT:")
    for j in range(NOUT, 11):
        v_step(j, SR, 15)
        sload(160 + j, vr(RING + 4 * j))
    for n in range(16):
        j = (11 + n) & 15
        v_step(j, SR if j >= 11 else SR + 1, 15 - n)
    v_finish()

    XA, XB = 32, 48
    A("L_A:")
    role[0] = "A"
    lane_ids()
    if o["cpf"] == 1:
        code_prefetch("L_A", "L_A2")
    A("s_mov_b32 s74, s2\ns_and_b32 s72, s2, 31")
    A("s_and_b32 s70, s2, 6\ns_and_b32 s25, s2, 7\ns_add_u32 s70, s70, s25\ns_lshr_b32 s26, s72, 3")
    head_of()
    A("v_lshrrev_b32 v3, 4, v0\nv_and_b32 v4, 15, v0")
    A("v_lshlrev_b32 v18, 18, v3\nv_lshl_add_u32 v18, v4, 4, v18")
    A("v_lshrrev_b32 v6, 3, v4\nv_lshlrev_b32 v6, 10, v6\nv_lshl_add_u32 v19, v3, 6, v6")
    A("v_bfe_u32 v1, v0, 2, 2\nv_lshlrev_b32 v64, 18, v1\nv_lshl_add_u32 v64, v3, 6, v64")
    A("v_and_b32 v4, 3, v0\nv_lshl_add_u32 v64, v4, 4, v64")
    A("v_lshlrev_b32 v65, 9, v1\nv_lshl_add_u32 v65, v3, 7, v65\nv_lshl_add_u32 v65, v4, 5, v65")
    A(f"v_add_u32 v65, {L_QP}, v65")
    A("v_lshlrev_b32 v66, 15, v1\nv_lshl_add_u32 v66, v3, 6, v66\nv_lshl_add_u32 v66, v4, 4, v66")
    A("v_and_b32 v4, 15, v0\nv_lshlrev_b32 v67, 10, v3\nv_lshl_add_u32 v67, v4, 4, v67")
    A("s_lshl_b32 s35, s3, 20\ns_lshl_b32 s24, s26, 8\ns_add_u32 s35, s35, s24")
    A("s_waitcnt lgkmcnt(0)")
    stamp(0)
    A("s_cmp_lt_u32 s74, 32")
    A(f"s_cselect_b64 s[4:5], s[{P_AWQ}:{P_AWQ+1}], s[{P_BWQ}:{P_BWQ+1}]\ns_mov_b32 s6, 0x400000\ns_mov_b32 s7, 0x20000")
    A(f"s_cselect_b64 s[20:21], s[{P_AX}:{P_AX+1}], s[{P_BX}:{P_BX+1}]\ns_mov_b32 s22, 4096\ns_mov_b32 s23, 0x20000")
    A("s_cselect_b32 s75, 0x400000, 0")
    A("s_lshl_b32 s24, s3, 8\ns_mov_b32 s32, s35")
    A("buffer_load_dwordx4 v[12:15], v67, s[20:23], s24 offen")

    def wload(j, voff, pol="nt"):
        A(f"buffer_load_dwordx4 {vr(WB+4*j)}, v{voff}, s[4:7], s32 offen {pol}")
        A("s_add_u32 s32, s32, 8192")
    LEAD = o["lead"]
    for j in range(LEAD):
        wload(j, 18, "")
    srd(12, P_WS, WS_SIZE)
    srd(16, P_DBG, 256)
    make_masks()
    quad_masks()
    A(f"s_lshl_b32 s24, s3, 8\ns_add_u32 s24, s24, {L_CX}\nv_add_u32 v3, s24, v67\nv_add_u32 v4, s24, v19")
    A(f"s_waitcnt vmcnt({LEAD})\nds_write_b128 v3, v[12:15]\ns_waitcnt lgkmcnt(0)")
    for p in range(2):
        for i in range(4):
            A(f"ds_read_b128 {vr(XA+16*p+4*i)}, v4 offset:{2048*p+16*i}")
    A("s_waitcnt lgkmcnt(0)")

    for i in range(4):
        A(f"v_mov_b32 v{76+i}, -1")
    A(f"s_lshl_b32 s71, s72, 2\ns_add_u32 s71, s71, s3\ns_lshl_b32 s71, s71, 10\ns_add_u32 s71, s71, {WS_BML:#x}")
    A(f"s_cmp_lt_u32 s74, 32\ns_cselect_b32 s71, {WS_SIZE:#x}, s71")

    def s1_after(j):
        if j + LEAD == 32:
            A("; clear this workgroup's flag line and (role C) the slots that are polled for data")
            A(f"s_lshl_b32 s73, s74, 7\ns_add_u32 s73, s73, {WS_FLAG:#x}")
            A("s_cmp_lg_u32 s3, 0\ns_cbranch_scc1 L_A_nofl")
            A("s_mov_b64 exec, 1\nbuffer_store_dwordx4 v[76:79], off, s[12:15], s73 sc1\ns_mov_b64 exec, -1")
            A("L_A_nofl:")
            for i in range(0 if 'c' in o['drop'] else 1):
                A(f"s_cmp_ge_u32 s71, {WS_CLR_END:#x}\ns_cselect_b32 s71, {WS_SIZE:#x}, s71")
                A("buffer_store_dwordx4 v[76:79], v2, s[12:15], s71 offen sc1\ns_add_u32 s71, s71, 0x20000")
            code_prefetch("L_A2", "L_last", back=False)
            A(f"s_mov_b32 s4, s{P_AWUK}\ns_mov_b32 s5, s{P_AWUK+1}\ns_mov_b32 s6, s75\ns_mov_b32 s32, s35")
        if j + LEAD < 32:
            wload(j + LEAD, 18)
        else:
            wload(j + LEAD - 32, 64)
    extra = ((0 if 'c' in o['drop'] else 1) + (1 if o["cpf"] else 0)) * o["xw"]
    gemv([XA, XB], [12, 68], wait=lambda j: A(f"s_waitcnt vmcnt({LEAD - 1 + (extra if j + LEAD > 32 else 0)})"), after=s1_after)
    q_reduce([12, 68], 65, 8, 72)
    stamp(1)
    A("s_cmp_ge_u32 s74, 32\ns_cbranch_scc1 L_C")
    A("L_A2:")
    TQ = 72
    for j in range(LEAD, 32):
        wload(j, 64)
    DQ, TT = 80, 112
    for y in range(4):
        for e in range(8):
            j = 8 * y + e
            A(f"s_waitcnt vmcnt({31-j})")
            A(f"v_mfma_f32_16x16x32_bf16 {vr(DQ+4*e)}, {vr(WB+4*j)}, v[8:11], 0")
        t = TQ if y == 0 else TT
        for n, a in enumerate(a for a in range(4) if a != y):
            for e in range(8):
                src = DQ + 4 * e + y if n == 0 else t + e
                A(f"v_add_f32_dpp v{t+e}, v{DQ+4*e+a}, v{src} quad_perm:[{a},{a},{a},{a}] row_mask:0xf bank_mask:0xf")
        if y:
            for e in range(8):
                A(f"v_cndmask_b32 v{TQ+e}, v{TQ+e}, v{TT+e}, s[{62+2*y}:{63+2*y}]")
    A(f"s_mov_b32 s71, {SCALE:#x}")
    for e in range(8):
        A(f"v_mul_f32 v{TQ+e}, s71, v{TQ+e}")
    for i in range(4):
        A(f"v_cvt_pk_bf16_f32 v{4+i}, v{TQ+2*i}, v{TQ+2*i+1}")
    A(f"s_lshl_b32 s24, s26, 10\ns_lshl_b32 s25, s3, 8\ns_add_u32 s24, s24, s25\ns_add_u32 s24, s24, {WS_QA:#x}")
    if 'q' not in o['drop']:
        A(f"buffer_store_dwordx4 v[4:7], v66, s[12:15], s24 offen sc1")
    bwo_stage()
    signal(C_Q, 64)
    stamp(2)
    bwo_transpose()
    srd(4, P_AWUV, 4 << 20)
    srd(8, P_AWO, 4 << 20)
    A("s_mov_b32 s32, s35")
    for j in range(32):
        wload(j, 18)
    A("s_lshl_b32 s33, s26, 17\ns_lshl_b32 s24, s3, 15\ns_add_u32 s33, s33, s24")
    A(f"s_mul_i32 s34, s3, {32*WROW}")
    A("s_waitcnt lgkmcnt(0)\ns_barrier")
    wo_stage()
    A("s_waitcnt vmcnt(0)\ns_barrier")
    wo_transpose()
    A("s_waitcnt lgkmcnt(0)")
    stamp(3)
    await_flag(C_Q)
    publish_xcc()
    await_flag(C_P)
    stamp(4)
    PR = 72
    A(f"s_lshl_b32 s24, s3, {8+LNS}\ns_lshl_b32 s25, s26, 3\ns_add_u32 s25, s25, s24\ns_add_u32 s25, s25, {WS_PML:#x}")
    A(f"v_and_b32 v3, {NS-1}, v0\nv_lshlrev_b32 v3, 8, v3")
    A("buffer_load_dwordx2 v[4:5], v3, s[12:15], s25 offen sc1")
    A(f"s_lshl_b32 s24, s3, {15+LNS}\ns_lshl_b32 s25, s26, 10\ns_add_u32 s24, s24, s25\ns_add_u32 s24, s24, {WS_PART:#x}")
    for s in range(0 if 'P' in o['drop'] else NS):
        A(f"buffer_load_dwordx4 {vr(PR+4*s)}, v2, s[12:15], s24 offen sc1 nt\ns_add_u32 s24, s24, 0x8000")
    A(f"s_waitcnt vmcnt({NS})")
    A("v_mov_b32 v6, v4")
    rors = ("row_ror:4", "row_ror:2", "row_ror:1")[3 - LNS:]
    for c in rors:
        A(f"v_max_f32_dpp v6, v6, v6 {c} row_mask:0xf bank_mask:0xf")
    A("v_sub_f32 v4, v4, v6\nv_exp_f32 v4, v4\nv_mul_f32 v5, v4, v5")
    for c in rors:
        A(f"v_add_f32_dpp v5, v5, v5 {c} row_mask:0xf bank_mask:0xf")
    A("v_rcp_f32 v5, v5\nv_mul_f32 v4, v4, v5")
    CA = 104
    for s in range(NS):
        A(f"v_readlane_b32 s24, v4, {s}")
        A(f"s_waitcnt vmcnt({NS-1-s})")
        for i in range(4):
            A(f"v_lshlrev_b32 v5, 16, v{PR+4*s+i}\nv_and_b32 v6, 0xffff0000, v{PR+4*s+i}")
            if s == 0:
                A(f"v_mul_f32 v{CA+2*i}, s24, v5\nv_mul_f32 v{CA+2*i+1}, s24, v6")
            else:
                A(f"v_fmac_f32 v{CA+2*i}, s24, v5\nv_fmac_f32 v{CA+2*i+1}, s24, v6")
    for i in range(4):
        A(f"v_cvt_pk_bf16_f32 v{4+i}, v{CA+2*i}, v{CA+2*i+1}")
    A(f"s_lshl_b32 s24, s3, 10\ns_add_u32 s24, s24, {L_CX}\nv_add_u32 v3, s24, v2")
    A("ds_write_b128 v3, v[4:7]")
    A(f"s_lshl_b32 s24, s3, 8\ns_add_u32 s24, s24, {L_CX}\nv_add_u32 v3, s24, v19")
    A("s_waitcnt lgkmcnt(0)\ns_barrier")
    for p in range(2):
        for i in range(4):
            A(f"ds_read_b128 {vr(XA+16*p+4*i)}, v3 offset:{2048*p+16*i}")
    A("s_waitcnt lgkmcnt(0)")
    gemv([XA, XB], [12, 68])
    A("v_lshrrev_b32 v3, 4, v0\nv_lshlrev_b32 v3, 7, v3\nv_and_b32 v4, 7, v0\nv_lshl_add_u32 v3, v4, 4, v3")
    A("v_bfe_u32 v4, v0, 3, 1\nv_lshl_add_u32 v3, v4, 9, v3")
    A(f"s_lshl_b32 s24, s3, 11\ns_add_u32 s24, s24, {L_QP}\nv_add_u32 v3, s24, v3")
    A("ds_write_b128 v3, v[12:15]\nds_write_b128 v3, v[68:71] offset:1024")
    A("s_waitcnt lgkmcnt(0)\ns_barrier")
    A(f"v_and_b32 v5, 31, v0\ns_lshl_b32 s24, s3, 9\ns_add_u32 s24, s24, {L_QP}\nv_lshl_add_u32 v3, v5, 4, s24")
    for w in range(4):
        A(f"ds_read_b128 {vr(72+4*w)}, v3 offset:{w*2048}")
    A(f"s_mul_i32 s24, s3, {OROW}\ns_add_u32 s24, s24, {L_OA}\nv_lshl_add_u32 v5, v5, 3, s24")
    A("s_waitcnt lgkmcnt(0)")
    for w in range(1, 4):
        for r in range(4):
            A(f"v_add_f32 v{72+r}, v{72+r}, v{72+4*w+r}")
    A("v_cvt_pk_bf16_f32 v6, v72, v73\nv_cvt_pk_bf16_f32 v7, v74, v75")
    A("ds_write_b64 v5, v[6:7]")
    A(f"v_lshrrev_b32 v3, 4, v0\nv_and_b32 v4, 3, v0\nv_mul_u32_u24 v5, {OROW}, v4\nv_lshl_add_u32 v5, v3, 4, v5\nv_add_u32 v5, {L_OA}, v5")
    A("s_waitcnt lgkmcnt(0)\ns_barrier")
    for i in range(4):
        A(f"ds_read_b128 {vr(XA+4*i)}, v5 offset:{64*i}")

    def merge_w(T):
        for r in range(4):
            A(f"v_mov_b32_dpp v{4+4*(T>>2)+r}, v{72+4*T+r} {DPP_ID} row_mask:{1 << (T & 3):#x} bank_mask:0xf")
    for T in range(8):
        D = 72 + 4 * T
        for i in range(4):
            if T == 0:
                A(f"s_waitcnt lgkmcnt({3-i})")
            A(f"v_mfma_f32_16x16x32_bf16 {vr(D)}, {vr(XA+4*i)}, {ar((T*4+i)*4)}, {'0' if i == 0 else vr(D)}")
        if T >= 2:
            merge_w(T - 2)
    merge_w(6)
    merge_w(7)
    for i in range(4):
        A(f"v_cvt_pk_bf16_f32 v{12+i}, v{4+2*i}, v{5+2*i}")
    finish_setup()
    A(f"s_lshl_b32 s30, s3, 10\ns_add_u32 s30, s30, {WS_YA:#x}\ns_lshl_b32 s24, s26, 12\ns_add_u32 s24, s24, s30")
    if 'y' not in o['drop']:
        A("buffer_store_dwordx2 v[12:13], v80, s[12:15], s24 offen sc1")
        A("buffer_store_dwordx2 v[14:15], v80, s[12:15], s24 offen offset:512 sc1")
    A(f"s_lshl_b32 s24, s3, 7\ns_add_u32 s24, s24, {WS_ELA:#x}\ns_waitcnt vmcnt(0)")
    elect("s24")
    A("s_waitcnt vmcnt(0)\nv_readfirstlane_b32 s24, v83\ns_cmp_lg_u32 s24, 1983\ns_cbranch_scc1 L_W_x")
    A("s_lshl_b32 s31, s3, 8\nL_W_f:")
    finish("s30", "s31")
    A("s_add_u32 s30, s30, 512\ns_add_u32 s31, s31, 128\ns_bitcmp1_b32 s31, 7\ns_cbranch_scc1 L_W_f")
    A("L_W_x:\ns_barrier")
    stamp(5)

    WT, OX, OA_ = 32, 56, 128
    A("L_R:")
    srd(20, P_OUT, 8192)
    make_masks(sel=False)
    A("v_lshrrev_b32 v3, 4, v0\nv_and_b32 v4, 7, v0\nv_bfe_u32 v7, v0, 3, 1")
    A(f"v_lshl_add_u32 v5, v3, 3, v4\nv_mul_u32_u24 v6, {OROW}, v7\nv_lshl_add_u32 v5, v5, 3, v6")
    A(f"s_mul_i32 s24, s3, {4*OROW}\ns_add_u32 s24, s24, {L_QP}\nv_add_u32 v24, s24, v5")
    A(f"v_and_b32 v5, 3, v0\nv_mul_u32_u24 v25, {OROW}, v5\nv_lshl_add_u32 v25, v3, 4, v25\nv_add_u32 v25, {L_QP}, v25")
    A("v_lshlrev_b32 v26, 4, v4\nv_lshl_add_u32 v26, v7, 3, v26\nv_and_b32 v5, 15, v0\nv_lshlrev_b32 v28, 11, v3\nv_lshl_add_u32 v28, v5, 1, v28")
    A("s_and_b32 s24, s74, 7\ns_lshl_b32 s24, s24, 3\ns_bfm_b64 s[44:45], 8, s24\ns_not_b64 s[44:45], s[44:45]")
    A("v_min_u32 v6, 5, v4\nv_lshrrev_b32 v5, 1, v6\nv_and_b32 v8, 1, v3\nv_mad_u32_u24 v5, v8, 3, v5\nv_lshlrev_b32 v31, 10, v5")
    A("v_and_b32 v6, 1, v6\nv_lshl_add_u32 v6, v7, 1, v6\nv_lshl_add_u32 v31, v6, 4, v31")
    stamp(8)
    A(f"s_and_b32 s35, s72, 7\ns_lshl_b32 s35, s35, 7\ns_add_u32 s35, s35, {WS_BML:#x}")
    A("s_lshr_b32 s34, s72, 3\ns_mul_i32 s34, s34, 6\ns_mul_i32 s29, s3, 6144\ns_add_u32 s29, s29, s35")
    poll_data(lambda: A("buffer_load_dwordx2 v[8:9], v31, s[12:15], s29 offen sc1"), 8, 2, o['sl_ml'])
    red8 = ("quad_perm:[1,0,3,2]", "quad_perm:[2,3,0,1]", "row_half_mirror")
    A("v_mov_b32 v6, v8")
    for c in red8:
        A(f"v_max_f32_dpp v6, v6, v6 {c} row_mask:0xf bank_mask:0xf")
    A("v_sub_f32 v8, v8, v6\nv_exp_f32 v8, v8\nv_cmp_gt_u32 vcc, 6, v4\nv_cndmask_b32 v8, 0, v8, vcc\nv_mul_f32 v9, v8, v9")
    for c in red8:
        A(f"v_add_f32_dpp v9, v9, v9 {c} row_mask:0xf bank_mask:0xf")
    A("v_rcp_f32 v9, v9\nv_mul_f32 v8, v8, v9\nv_cvt_pk_bf16_f32 v8, v8, v8")
    A("v_lshrrev_b32 v3, 4, v0\nv_mul_u32_u24 v9, 6, v7\nv_sub_u32 v3, v3, v9\nv_lshlrev_b32 v9, 3, v7")
    for k in range(3):
        A(f"v_add_u32 v5, {4*k}, v3\nv_min_u32 v5, 6, v5\nv_add_u32 v5, v5, v9\nv_lshlrev_b32 v5, 2, v5")
        A(f"ds_bpermute_b32 v{10+k}, v5, v8\nds_bpermute_b32 v{13+k}, v5, v8 offset:64")
    A("s_waitcnt lgkmcnt(0)")
    for k in range(6):
        for i in range(4):
            A(f"v_and_b32 v{WT+4*k+i}, v{10+k}, v{MASK+i}")
    wave_head("s29")
    A(f"s_mul_i32 s29, s29, 6144\ns_add_u32 s29, s29, {WS_OB:#x}\ns_add_u32 s42, s29, 4096")
    A("s_lshr_b32 s24, s74, 3\ns_lshl_b32 s24, s24, 2\ns_add_u32 s24, s24, s3")
    A(f"s_lshl_b32 s36, s24, 10\ns_add_u32 s36, s36, {WS_YB:#x}\ns_and_b32 s37, s74, 7\ns_lshl_b32 s37, s37, 7\ns_add_u32 s37, s37, s36")
    A(f"s_lshl_b32 s38, s24, 7\ns_add_u32 s38, s38, {WS_EL:#x}\ns_lshl_b32 s39, s24, 5\ns_add_u32 s39, s39, 1024")

    def helper():
        if not o["hlp"]:
            return
        assert 36 + o["h_lq"] + o["h_u"] > 43
        A("s_cmp_lg_u32 s3, 0\ns_cbranch_scc1 L_H_x")
        A("s_lshr_b32 s24, s74, 5\ns_mul_i32 s25, s24, 3\ns_add_u32 s34, s34, s25")
        A("s_lshl_b32 s24, s24, 6\ns_add_u32 s24, s24, s26\ns_lshl_b32 s24, s24, 20")
        srd(4, P_V, 1 << 20, add="s24")
        A("s_add_u32 s8, s4, 0x2000000\ns_addc_u32 s9, s5, 0\ns_mov_b32 s10, s6\ns_mov_b32 s11, 0x20000")
        lgc = int(math.log2(chunk))
        A(f"v_lshrrev_b32 v3, {4+lgc}, v0\nv_mul_u32_u24 v16, {6144*chunk}, v3\nv_and_b32 v3, {16*chunk-1}, v0\nv_lshl_add_u32 v16, v3, 7, v16")
        A("v_lshlrev_b32 v17, 10, v0\nv_mov_b32 v18, 0")
        U = o["h_u"]
        NX = (27, 28, 32)
        A(f"s_mov_b32 s27, 43\ns_mov_b32 s28, 43\ns_mov_b32 s32, 43\ns_mov_b32 s75, 1024")
        A("L_H:")
        A("s_sub_u32 s75, s75, 1\ns_cmp_eq_u32 s75, 0\ns_cbranch_scc1 L_H_x")
        A("s_mov_b64 exec, 0xffffff\nbuffer_load_dword v18, v17, s[12:15], s35 offen offset:64 sc1\ns_mov_b64 exec, -1")
        A("s_waitcnt vmcnt(0)\nv_max_i32 v19, 0, v18")
        A("v_add_u32_dpp v3, v19, v19 row_ror:8 row_mask:0xf bank_mask:0xf")
        for c in ("row_ror:4", "row_ror:2", "row_ror:1"):
            A(f"v_add_u32_dpp v3, v3, v3 {c} row_mask:0xf bank_mask:0xf")
        A("v_readlane_b32 s70, v3, 0\nv_readlane_b32 s24, v3, 16\ns_add_u32 s70, s70, s24")
        for t in range(3):
            A(f"s_add_u32 s24, s34, {t}\nv_readlane_b32 s24, v19, s24")
            A(f"s_sub_u32 s25, 43, s{NX[t]}\ns_mul_i32 s25, s25, {o['h_cw']}\ns_mul_i32 s{64+t}, s24, 24\ns_add_u32 s{64+t}, s{64+t}, s25")
            A(f"s_add_u32 s24, s24, {o['h_lq'] + U}\ns_cmp_gt_u32 s24, s{NX[t]}\ns_cselect_b32 s{64+t}, 0xffff, s{64+t}")
        A("s_min_u32 s71, s64, s65\ns_min_u32 s71, s71, s66\ns_cmp_eq_u32 s71, 0xffff\ns_cbranch_scc1 L_H_x")
        A(f"s_add_u32 s24, s71, {o['h_th']}\ns_cmp_lt_i32 s24, s70\ns_cbranch_scc1 L_H_go")
        A(f"s_sleep {o['h_sl']}\ns_branch L_H")
        A("L_H_go:")
        for t in range(3):
            if t < 2:
                A(f"s_cmp_lg_u32 s71, s{64+t}\ns_cbranch_scc1 L_H_n{t}")
            A(f"s_sub_u32 s{NX[t]}, s{NX[t]}, {U}\ns_mul_i32 s24, s{NX[t]}, {4*6144}\ns_add_u32 s24, s24, {2048*chunk*t}")
            if chunk == 4:
                A(f"s_cmp_eq_u32 s{NX[t]}, {43-U}\ns_cselect_b32 s25, {2048*t}, 0")
            if t < 2:
                A(f"s_branch L_H_ld\nL_H_n{t}:")
        A("L_H_ld:")
        for k in range(U):
            if chunk == 4 and k == U - 1:
                A("s_sub_u32 s24, s24, s25")
            A("buffer_load_dword v5, v16, s[4:7], s24 offen\nbuffer_load_dword v5, v16, s[8:11], s24 offen")
            if k + 1 < U:
                A(f"s_add_u32 s24, s24, {4*6144}")
        A("s_branch L_H")
        A("L_H_x:")

    def p_loads():
        for k in range(6):
            A(f"buffer_load_dwordx4 {vr(OX+4*k)}, v2, s[12:15], {'s29' if k < 4 else 's42'} offen offset:{1024*(k & 3)} sc1")
    A(f"s_mov_b32 s30, {WS_SIZE:#x}\ns_mov_b32 s31, s30\ns_mov_b32 s40, s30\ns_mov_b32 s41, s30\ns_mov_b32 s33, 0")
    A("s_branch L_P_go\nL_P:\ns_mov_b64 s[30:31], s[36:37]\ns_mov_b64 s[40:41], s[38:39]\ns_mov_b32 s33, 447")
    helper()
    if 'e' in o['drop']:
        A("s_endpgm")
    poll_data(p_loads, OX, 24, 0)
    stamp(9)
    A("L_P_go:")
    for k in (0, 3, 1, 4, 2, 5):
        D = 12 + 4 * (k // 3)
        A(f"v_mfma_f32_16x16x32_bf16 {vr(D)}, {vr(OX+4*k)}, {vr(WT+4*k)}, {vr(D) if k % 3 else 0}")
    if o["eb"]:
        A("s_barrier")
        elect("s40")
    A("v_cvt_pk_bf16_f32 v4, v12, v13\nv_cvt_pk_bf16_f32 v5, v14, v15\nds_write_b64 v24, v[4:5]")
    A(f"v_cvt_pk_bf16_f32 v6, v16, v17\nv_cvt_pk_bf16_f32 v7, v18, v19\nds_write_b64 v24, v[6:7] offset:{2*OROW}")
    A("s_waitcnt lgkmcnt(0)\ns_barrier")
    for n in range(16):
        A(f"ds_read_b128 {vr(OA_+4*n)}, v25 offset:{(n >> 2)*4*OROW + 64*(n & 3)}")
        if n == 7 and not o["eb"]:
            elect("s40")
        if n >= 8:
            A("s_waitcnt lgkmcnt(8)")
            A(f"v_mfma_f32_16x16x32_bf16 v[12:15], {vr(OA_+4*(n-8))}, {ar(128+4*(n-8))}, {'v[12:15]' if n > 8 else 0}")
    for n in range(8, 16):
        A(f"s_waitcnt lgkmcnt({15-n})")
        A(f"v_mfma_f32_16x16x32_bf16 v[12:15], {vr(OA_+4*n)}, {ar(128+4*n)}, v[12:15]")
    A("v_cvt_pk_bf16_f32 v4, v12, v13\nv_cvt_pk_bf16_f32 v5, v14, v15\ns_mov_b64 exec, 0xffff")
    A("buffer_store_dwordx2 v[4:5], v26, s[12:15], s31 offen sc1\ns_mov_b64 exec, -1")
    A("v_mov_b32 v16, v4\nv_mov_b32 v17, v5\nv_mov_b32 v18, v4\nv_mov_b32 v19, v5")
    for i in range(4):
        A(f"v_mov_b32_dpp v{16+i}, v{4 + (i & 1)} row_ror:8 row_mask:0xf bank_mask:{'0xc' if i < 2 else '0x3'}")
    A("s_waitcnt vmcnt(1)\nv_readfirstlane_b32 s24, v83\ns_cmp_eq_u32 s24, s33\ns_cbranch_scc1 L_P_f")
    A("s_waitcnt vmcnt(0)\nv_readfirstlane_b32 s24, v83\ns_cmp_lg_u32 s24, s33\ns_cbranch_scc1 L_P_n\nL_P_f:")
    A("s_mov_b64 exec, s[44:45]")
    poll_data(lambda: A("buffer_load_dwordx4 v[16:19], v2, s[12:15], s30 offen sc1"), 16, 4, 0)
    for i in range(4):
        A(f"v_lshlrev_b32 v{56+2*i}, 16, v{16+i}\nv_and_b32 v{57+2*i}, 0xffff0000, v{16+i}")
    for a in (56, 57, 60, 61):
        A(f"v_permlane32_swap_b32 v{a}, v{a+2}")
    for a in (56, 57, 60, 61):
        A(f"v_add_f32 v{a}, v{a}, v{a+2}")
    A("v_permlane16_swap_b32 v56, v57\nv_permlane16_swap_b32 v60, v61\nv_add_f32 v56, v56, v57\nv_add_f32 v60, v60, v61")
    A("v_add_f32_dpp v4, v56, v56 row_ror:8 row_mask:0xf bank_mask:0x3\nv_add_f32_dpp v4, v60, v60 row_ror:8 row_mask:0xf bank_mask:0xc")
    A("v_cvt_pk_bf16_f32 v4, v4, v4")
    A("buffer_store_short v4, v28, s[20:23], s41 offen")
    A("L_P_n:\ns_cmp_lg_u32 s33, 0\ns_cbranch_scc1 L_P_x\ns_barrier\ns_branch L_P\nL_P_x:")
    stamp(11)
    stamps_out()
    A("L_end:")
    A("s_endpgm")

    ST, SS, PP, TR, ACC = 32, 64, 72, 192, 128
    A("L_C:")
    A("s_cmp_lg_u32 s3, 0\ns_cbranch_scc1 L_C_q")
    A("v_lshrrev_b32 v3, 4, v0\nv_and_b32 v4, 3, v0\nv_lshlrev_b32 v5, 6, v3\nv_lshl_add_u32 v5, v4, 4, v5")
    A("v_bfe_u32 v4, v0, 2, 2\nv_lshl_add_u32 v5, v4, 8, v5")
    A(f"s_lshl_b32 s24, s26, 10\ns_add_u32 s24, s24, {WS_QB:#x}")
    A(f"buffer_store_dwordx4 v[8:11], v5, s[12:15], s24 offen sc1")
    A("L_C_q:")
    signal(C_Q, 64, also=C_QB)
    stamp(5)
    bwo_stage()
    A("s_waitcnt vmcnt(0)\ns_barrier")
    bwo_transpose()
    LG = int(math.log2(G))
    RS = 1024 * NS
    NR = 16
    A(f"s_and_b32 s70, s72, {NS-1}\ns_lshr_b32 s71, s72, {3+LG}")
    A(f"s_bfe_u32 s24, s72, {LNS | ((3 - LNS) << 16):#x}\ns_lshl_b32 s24, s24, {LNS-1}\ns_add_u32 s71, s71, s24")
    A(f"s_bfe_u32 s75, s72, {3 | (LG << 16):#x}")
    A("s_lshl_b32 s30, s71, 22")
    srd(4, P_CKV, 1 << 22, add="s30")
    A(f"s_mul_i32 s32, s3, {NR*RS}\ns_lshl_b32 s24, s70, 10\ns_add_u32 s32, s32, s24\ns_mul_i32 s34, s3, {NR*CROW}")

    def c_row(r):
        A("buffer_load_dwordx4 v2, s[4:7], s32 offen lds")
        A(f"s_add_u32 m0, m0, {CROW}\ns_add_u32 s32, s32, {RS if r < NR - 1 else (3*NR + 1)*RS}")

    A("s_waitcnt lgkmcnt(0)\ns_barrier")
    A("s_mov_b32 m0, s34")
    for r in range(NR):
        c_row(r)
    A("s_lshr_b32 s28, s3, 1\ns_and_b32 s29, s3, 1")
    A(f"v_and_b32 v3, 15, v0\nv_lshrrev_b32 v4, 4, v0\nv_mul_u32_u24 v19, {CROW}, v3\nv_lshl_add_u32 v19, v4, 4, v19")
    A(f"v_lshrrev_b32 v5, 2, v0\nv_mul_u32_u24 v20, {CROW}, v5\nv_and_b32 v5, 3, v0\nv_lshl_add_u32 v20, v5, 3, v20")
    A("s_lshl_b32 s24, s29, 9\nv_add_u32 v20, s24, v20")
    A(f"v_and_b32 v3, {HN-1}, v0\nv_mul_u32_u24 v18, {CROW}, v3\nv_lshl_add_u32 v18, v4, 4, v18\nv_add_u32 v18, {3*CTILE}, v18")
    A(f"s_mul_i32 s24, s28, {CTILE}\nv_add_u32 v19, s24, v19\nv_add_u32 v20, s24, v20")
    for r in range(64):
        A(f"v_mov_b32 v{ACC+r}, 0")
    A("v_mov_b32 v22, 0xff800000\nv_mov_b32 v23, 0")
    await_flag(C_Q)
    stamp(2)
    NQ = HN // 4
    A(f"s_lshl_b32 s24, s71, 15\ns_mul_i32 s25, s3, {NQ*1024}\ns_add_u32 s24, s24, s25\ns_add_u32 s24, s24, {WS_QA:#x}")
    A(f"s_mul_i32 s25, s75, {HN*1024}\ns_add_u32 s24, s24, s25")
    for r in range(NQ):
        A(f"buffer_load_dwordx4 {vr(ST+4*r)}, v2, s[12:15], s24 offen offset:{r*1024} sc1")
    A(f"s_mul_i32 s24, s3, {NQ*CROW}\ns_add_u32 s24, s24, {3*CTILE}\nv_add_u32 v3, s24, v2")
    for r in range(NQ):
        A(f"s_waitcnt vmcnt({NQ-1-r})\nds_write_b128 v3, {vr(ST+4*r)} offset:{r*CROW}")
    A("s_waitcnt lgkmcnt(0)\ns_barrier")
    for k in range(16):
        A(f"ds_read_b128 {ar(4*k)}, v18 offset:{64*k}")
    publish_xcc()
    STEP = 2 * CTILE
    A(f"s_mov_b32 s27, 0\ns_mov_b32 s33, {4*CTILE - STEP}\ns_mov_b32 s35, 0")
    A("s_waitcnt lgkmcnt(0)")
    A("L_CT:")
    A("s_waitcnt vmcnt(0)\ns_barrier")
    A("v_add_u32 v24, s35, v19\nv_add_u32 v25, s35, v20")

    def qk_read(n):
        A(f"ds_read_b128 {vr(ST+4*(n & 7))}, v24 offset:{64*(n >> 1) + 16*CROW*(n & 1)}")
    for n in range(7):
        qk_read(n)
    A("s_add_u32 m0, s33, s34")
    A(f"s_mov_b32 s33, s35\ns_add_u32 s35, s35, {STEP}\ns_cmp_eq_u32 s35, {4*CTILE}\ns_cselect_b32 s35, 0, s35")
    trs = [f"ds_read_b64_tr_b16 {vr(TR+4*ct+2*z, 2)}, v25 offset:{16*z*CROW + 32*ct}" for ct in range(16) for z in range(2)]
    for n in range(32):
        D = SS + 4 * (n & 1)
        A("s_waitcnt lgkmcnt(6)")
        A(f"v_mfma_f32_16x16x32_bf16 {vr(D)}, {vr(ST+4*(n & 7))}, {ar(4*(n >> 1))}, {'0' if n < 2 else vr(D)}")
        if n + 7 < 32:
            qk_read(n + 7)
        else:
            A(trs.pop(0))
        if n % 2 == 0:
            c_row(n // 2)
    for _ in range(7):
        A(trs.pop(0))
    sm = [f"v_max3_f32 v3, v{SS}, v{SS+1}, v22"]
    sm += [f"v_max3_f32 v3, v3, v{SS+r}, v{SS+r+1}" for r in range(2, 8, 2)]
    sm += ["v_mov_b32 v4, v3", "v_permlane32_swap_b32 v3, v4", "v_max_f32 v3, v3, v4"]
    sm += ["v_mov_b32 v4, v3", "v_permlane16_swap_b32 v3, v4", "v_max_f32 v3, v3, v4"]
    sm += ["v_sub_f32 v4, v22, v3", "v_exp_f32 v4, v4", "v_mov_b32 v22, v3"]
    sm += [f"v_sub_f32 v{SS+r}, v{SS+r}, v3" for r in range(8)]
    sm += [f"v_exp_f32 v{SS+r}, v{SS+r}" for r in range(8)]
    sm += [f"v_cvt_pk_bf16_f32 v{PP+i}, v{SS+2*i}, v{SS+2*i+1}" for i in range(4)]
    for n, ins in enumerate(sm):
        A(ins)
        if trs and n >= 4:
            A(trs.pop(0))
    assert not trs
    ls = [f"v_fma_f32 v23, v23, v4, v{SS}"] + [f"v_add_f32 v23, v23, v{SS+r}" for r in range(1, 8)]

    def rescale(ct):
        for r in range(0, 4, 2):
            A(f"v_pk_mul_f32 {vr(ACC+4*ct+r,2)}, {vr(ACC+4*ct+r,2)}, v[4:5] op_sel_hi:[1,0]")
    rescale(0)
    rescale(1)
    A("s_waitcnt lgkmcnt(0)")
    for ct in range(16):
        A(f"v_mfma_f32_16x16x32_bf16 {vr(ACC+4*ct)}, {vr(TR+4*ct)}, {vr(PP)}, {vr(ACC+4*ct)}")
        if ct + 2 < 16:
            rescale(ct + 2)
    for ins in ls:
        A(ins)
    A(f"s_add_u32 s27, s27, 1\ns_cmp_lt_u32 s27, {8*G}\ns_cbranch_scc1 L_CT")
    stamp(3)
    A("s_waitcnt vmcnt(0)\ns_barrier")
    A("v_mov_b32 v4, v23\nv_permlane32_swap_b32 v23, v4\nv_add_f32 v23, v23, v4")
    A("v_mov_b32 v4, v23\nv_permlane16_swap_b32 v23, v4\nv_add_f32 v23, v23, v4")
    XM, XA_, XT = 0, 4096, 40960
    A(f"s_lshl_b32 s24, s3, 9\nv_lshl_add_u32 v3, v0, 3, s24\nds_write_b64 v3, v[22:23] offset:{XM}")
    A("v_xor_b32 v3, 0x400, v3\ns_waitcnt lgkmcnt(0)\ns_barrier")
    A(f"ds_read_b64 v[6:7], v3 offset:{XM}\ns_waitcnt lgkmcnt(0)")
    A("v_max_f32 v3, v22, v6\nv_sub_f32 v4, v22, v3\nv_sub_f32 v6, v6, v3\nv_exp_f32 v4, v4\nv_exp_f32 v6, v6")
    A("v_mov_b32 v22, v3\nv_mul_f32 v23, v23, v4\nv_fmac_f32 v23, v7, v6")
    A(f"v_and_b32 v3, 15, v0\nv_lshlrev_b32 v5, 3, v3")
    A(f"s_lshl_b32 s24, s71, {LNS}\ns_add_u32 s31, s24, s70\ns_lshl_b32 s24, s31, 8\ns_mul_i32 s25, s75, {HN*8}\ns_add_u32 s24, s24, s25\ns_add_u32 s24, s24, {WS_PML:#x}")
    A("s_cmp_lg_u32 s3, 0\ns_cbranch_scc1 L_C_ml")
    if 'm' not in o['drop']:
        A(f"s_mov_b64 exec, {(1 << HN) - 1:#x}\nbuffer_store_dwordx2 v[22:23], v5, s[12:15], s24 offen sc1\ns_mov_b64 exec, -1")
    A("L_C_ml:")
    for r in range(0, 64, 2):
        A(f"v_pk_mul_f32 {vr(ACC+r,2)}, {vr(ACC+r,2)}, v[4:5] op_sel_hi:[1,0]")
    A(f"s_lshl_b32 s24, s3, 13\ns_add_u32 s24, s24, {XA_}\nv_add_u32 v6, s24, v2")
    A(f"s_xor_b32 s24, s3, 2\ns_lshl_b32 s24, s24, 13\ns_add_u32 s24, s24, {XA_}\nv_add_u32 v7, s24, v2")
    A("s_cmp_lg_u32 s28, 0\ns_cbranch_scc1 L_C_x1")
    for k in range(8):
        A(f"ds_write_b128 v6, {vr(ACC+32+4*k)} offset:{1024*k}")
    A("s_branch L_C_x2\nL_C_x1:")
    for k in range(8):
        A(f"ds_write_b128 v6, {vr(ACC+4*k)} offset:{1024*k}")
    A("s_waitcnt lgkmcnt(0)")
    for r in range(32):
        A(f"v_mov_b32 v{ACC+r}, v{ACC+32+r}")
    A("L_C_x2:\ns_waitcnt lgkmcnt(0)\ns_barrier")
    for k in range(8):
        A(f"ds_read_b128 {vr(TR+4*k)}, v7 offset:{1024*k}")
    TROW = 272
    A(f"v_lshrrev_b32 v4, 4, v0\nv_mul_u32_u24 v3, {TROW}, v3\nv_lshl_add_u32 v3, v4, 3, v3")
    A(f"s_mul_i32 s24, s3, {16*TROW}\ns_add_u32 s24, s24, {XT}\nv_add_u32 v3, s24, v3")
    for k in range(8):
        r = ACC + 4 * k
        d = ST + 2 * k
        A(f"s_waitcnt lgkmcnt(7)")
        for e in range(4):
            A(f"v_add_f32 v{r+e}, v{r+e}, v{TR+4*k+e}")
        A(f"v_cvt_pk_bf16_f32 v{d}, v{r}, v{r+1}\nv_cvt_pk_bf16_f32 v{d+1}, v{r+2}, v{r+3}")
        A(f"ds_write_b64 v3, {vr(d,2)} offset:{32*k}")
    A(f"v_and_b32 v5, 15, v0\nv_mul_u32_u24 v3, {TROW}, v4\nv_lshl_add_u32 v3, v5, 4, v3\nv_add_u32 v3, s24, v3")
    HS, US = 10, 15
    A(f"v_lshlrev_b32 v4, {HS}, v4\nv_lshl_add_u32 v4, v5, 4, v4")
    A("s_waitcnt lgkmcnt(0)")
    for k in range(NQ):
        A(f"ds_read_b128 {vr(SS+4*k)}, v3 offset:{4*k*TROW}")
    A(f"s_lshl_b32 s24, s31, {US}\ns_lshl_b32 s25, s29, 9\ns_add_u32 s24, s24, s25\ns_lshl_b32 s25, s28, 8\ns_add_u32 s24, s24, s25")
    A(f"s_mul_i32 s25, s75, {HN << HS}\ns_add_u32 s24, s24, s25\ns_add_u32 s24, s24, {WS_PART:#x}")
    for k in range(NQ):
        A(f"s_waitcnt lgkmcnt({NQ-1-k})")
        if 'p' not in o['drop']:
            A(f"buffer_store_dwordx4 {vr(SS+4*k)}, v4, s[12:15], s24 offen sc1 nt")
        A(f"s_add_u32 s24, s24, {4 << HS}")
    signal(C_P, 32, only_w=True)
    stamp(4)
    A("s_branch L_R")
    A("L_last:")
    A("s_endpgm")

    ref = open(os.path.join(os.path.dirname(os.path.abspath(__file__)), "..", NAME + ".s.ref")).read().splitlines()
    head = [l for l in ref if l.startswith(";") and "@launch" not in l]
    head.append(f"; @launch grid=(256,1,1) block=(256,1,1) lds={LDS_BYTES}")
    pre = f'.amdgcn_target "amdgcn-amd-amdhsa--gfx950"\n.text\n.globl {NAME}_kernel\n.p2align 8\n.type {NAME}_kernel,@function\n'
    post = f""".section .rodata,"a"
.p2align 6
.amdhsa_kernel {NAME}_kernel
  .amdhsa_next_free_vgpr {448 + 64 * max(0, NB - 2)}
  .amdhsa_next_free_sgpr 102
  .amdhsa_accum_offset 256
  .amdhsa_group_segment_fixed_size 0
  .amdhsa_kernarg_size 112
  .amdhsa_user_sgpr_count 2
  .amdhsa_user_sgpr_kernarg_segment_ptr 1
  .amdhsa_system_sgpr_workgroup_id_x 1
  .amdhsa_float_denorm_mode_32 3
.end_amdhsa_kernel
"""
    return "\n".join(head) + "\n" + pre + A.text() + post


if __name__ == "__main__":
    kw = {}
    out = None
    for a in sys.argv[1:]:
        if "=" in a:
            k, v = a.split("=", 1)
            kw[k] = int(v) if v.lstrip("-").isdigit() else v
        else:
            out = a
    s = gen(**kw)
    if out:
        open(out, "w").write(s)
    else:
        sys.stdout.write(s)
```

```python
import math
import os
import struct
import sys

sys.path.insert(0, os.path.dirname(os.path.abspath(__file__)))
from asmlib import Asm

NAME = "concat_heads__compressed_kv_cla__mha_block_cached__decode"

DEF = dict(
    chunk=1,
    nbank=1,
    qa=16, qb=28,
    pf="bqkouvc",
    fast=3, pdep=6,
    xi_it=7, dfr=13,
    hlp=1, h_lq=6, h_u=2, h_cw=17, h_th=36, h_sl=4, h_it=1,
    lead=12, hg=2, cpf=2, xw=1, eb=1, hb=1, rc=2, rb=2, rq=2, ry=2, rp=1, ys='sc1 nt', yl='sc1 nt',
    sl_cnt=4, sl_ml=64,
    stamps=0, trace=0, drop="", probe=None, vpad=0,
)

WS_QA, WS_YA, WS_PML, WS_QB, WS_FLAG, WS_PART = 0x0, 0x80000, 0x120000, 0x140000, 0x170000, 0x400000
WS_OB, WS_BML = 0x180000, 0x1c0000
WS_STAMP = 0x300000
WS_SIZE = 0x600000
C_Q, C_P, C_QB = 0, 4, 128

WROW = 1056
OROW = 320
L_MISC = 128 * WROW
L_QP, L_OA, L_CX = L_MISC, L_MISC + 8192, L_MISC + 10240
LDS_BYTES = L_MISC + 14336
CROW = WROW
CTILE = 32 * CROW

SCALE = struct.unpack("<I", struct.pack("<f", math.log2(math.e) / math.sqrt(128.0)))[0]
SPIN = 1 << 18

P_AX, P_CKV, P_AWQ, P_AWUK, P_AWUV, P_AWO, P_BX, P_K, P_V, P_BWQ, P_BWO, P_OUT, P_DBG, P_WS = range(36, 64, 2)
DPP_ID = "quad_perm:[0,1,2,3]"


def gen(**kw):
    o = dict(DEF)
    o.update(kw)
    A = Asm()
    chunk = o["chunk"]
    G = o["hg"]
    NS, HN = 8 // G, 32 // G
    LNS = int(math.log2(NS))
    RQ, RY, RP = 10 + o["rq"], 10 + o["ry"], 10 + o["rp"]
    RC, RB = 10 + o["rc"], 10 + o["rb"]
    WS_XI, WS_ELA, WS_EL, WS_YB, WS_CLR_END = (WS_BML + (r << RC) for r in (24, 25, 26, 30, 62))
    uid = [0]
    role = ['B']

    def vr(b, n=4):
        return f"v[{b}:{b+n-1}]"

    def ar(b, n=4):
        return f"a[{b}:{b+n-1}]"

    def srd(s, ptr, size, add=None):
        if add is None:
            A(f"s_mov_b32 s{s}, s{ptr}\ns_mov_b32 s{s+1}, s{ptr+1}")
        else:
            A(f"s_add_u32 s{s}, s{ptr}, {add}\ns_addc_u32 s{s+1}, s{ptr+1}, 0")
        A(f"s_mov_b32 s{s+2}, {size:#x}\ns_mov_b32 s{s+3}, 0x20000")

    def stamp(k):
        if o["probe"] and str(k) not in (o["probe"].split(",")[0].lstrip("m"), o["probe"].split(",")[2]):
            return
        if o["stamps"]:
            A(f"s_memrealtime s[{76+2*k}:{77+2*k}]\ns_waitcnt lgkmcnt(0)")

    def trace(base):
        if o["trace"]:
            A(f"s_memrealtime s[100:101]\ns_add_u32 m0, s27, {base}\ns_waitcnt lgkmcnt(0)\nv_writelane_b32 v59, s100, m0")

    def trace_out():
        if o["trace"]:
            A(f"s_mov_b64 exec, -1\ns_lshl_b32 s24, s2, 2\ns_add_u32 s24, s24, s3\ns_lshl_b32 s24, s24, 8\ns_add_u32 s24, s24, {WS_STAMP + 0x10000:#x}")
            A("v_lshlrev_b32 v1, 2, v0\nbuffer_store_dword v59, v1, s[12:15], s24 offen")

    def probe_out():
        ka, ra, kb, rb, mult = o["probe"].split(",")
        mean = ka.startswith("m")
        ka = ka.lstrip("m")
        sreg = lambda k: 100 if k == "e" else 76 + 2 * int(k)
        uid[0] += 1
        u = uid[0]
        A(f"s_cmp_lg_u32 s3, 0\ns_cbranch_scc1 L_pr{u}")
        A("s_mov_b64 exec, 1")
        for k, rs, off, neg in ((ka, ra, 16, False), (kb, rb, 20, True)):
            if role[0] == "B":
                if "B" not in rs:
                    continue
                A(f"s_not_b32 s24, s{sreg(k)}" if neg else f"s_mov_b32 s24, s{sreg(k)}")
                if mean and not neg:
                    A("s_sub_u32 s24, s24, s100")
            else:
                A(f"s_not_b32 s24, s{sreg(k)}" if neg else f"s_mov_b32 s24, s{sreg(k)}")
                A("s_cmp_lt_u32 s74, 32")
                A(f"s_cselect_b32 s24, {'s24' if 'W' in rs else 0}, {'s24' if 'C' in rs else 0}")
            dig = [int(c) for c in rs if c.isdigit()]
            if dig:
                A(f"s_and_b32 s25, s2, 7\ns_bitcmp1_b32 {sum(1 << d for d in dig)}, s25\ns_cselect_b32 s24, s24, 0")
            A(f"v_mov_b32 v1, s24\nbuffer_atomic_{'add' if mean and not neg else 'umax'} v1, off, s[16:19], 0 offset:{off}\ns_waitcnt vmcnt(0)")
        A("v_mov_b32 v1, 1\nbuffer_atomic_add v1, off, s[16:19], 0 offset:24 sc0\ns_waitcnt vmcnt(0)")
        A(f"v_readfirstlane_b32 s24, v1\ns_cmp_lg_u32 s24, 255\ns_cbranch_scc1 L_pr{u}")
        A("buffer_load_dwordx2 v[4:5], off, s[16:19], 0 offset:16 sc1\ns_waitcnt vmcnt(0)")
        A("v_readfirstlane_b32 s24, v4\nv_readfirstlane_b32 s25, v5\ns_not_b32 s25, s25")
        A("s_mul_i32 s24, s24, 341\ns_lshr_b32 s24, s24, 16" if mean else "s_sub_u32 s24, s24, s25")
        A("s_min_u32 s24, s24, 20000")
        A("v_mov_b32 v1, s24\nbuffer_store_dword v1, off, s[16:19], 0 offset:28")
        if mult.startswith("T"):
            T, m = (mult[1:].split("x") + ["0"])[:2]
            A(f"s_mov_b32 s28, s25\ns_mul_i32 s24, s24, {m}\ns_add_u32 s24, s24, {T}")
        else:
            A(f"s_mul_i32 s24, s24, {mult}\ns_memrealtime s[28:29]\ns_waitcnt lgkmcnt(0)")
        A(f"L_pr{u}_w:\ns_memrealtime s[30:31]\ns_waitcnt lgkmcnt(0)\ns_sub_u32 s25, s30, s28\ns_cmp_lt_u32 s25, s24\ns_cbranch_scc1 L_pr{u}_w")
        A(f"L_pr{u}:")

    def stamps_out():
        if o["probe"]:
            probe_out()
        elif o["stamps"]:
            A("s_lshl_b32 s24, s2, 2\ns_add_u32 s24, s24, s3\ns_lshl_b32 s24, s24, 6")
            A(f"s_add_u32 s24, s24, {WS_STAMP:#x}")
            A("s_mov_b64 exec, 1")
            for k in range(12):
                A(f"v_mov_b32 v1, s{76+2*k}")
                A(f"buffer_store_dword v1, off, s[12:15], s24 offset:{4*k}")
            A("s_getreg_b32 s25, hwreg(HW_REG_XCC_ID, 0, 4)\nv_mov_b32 v1, s25")
            A("buffer_store_dword v1, off, s[12:15], s24 offset:48")
            A("s_getreg_b32 s25, hwreg(HW_REG_HW_ID)\nv_mov_b32 v1, s25")
            A("buffer_store_dword v1, off, s[12:15], s24 offset:52")

    def signal(cnt, n, also=None, only_w=False):
        uid[0] += 1
        u = uid[0]
        A("s_waitcnt vmcnt(0)\ns_barrier")
        A(f"s_cmp_lg_u32 s3, 0\ns_cbranch_scc1 L_sig{u}")
        A("s_mov_b64 exec, 1\nv_mov_b32 v3, 1")
        if also is not None:
            A(f"v_mov_b32 v4, 1\nbuffer_atomic_add v4, off, s[16:19], 0 offset:{also}")
        A(f"buffer_atomic_add v3, off, s[16:19], 0 offset:{cnt} sc0")
        A("s_waitcnt vmcnt(0)\nv_readfirstlane_b32 s24, v3\ns_mov_b64 exec, -1")
        A(f"s_and_b32 s24, s24, {n-1}\ns_cmp_lg_u32 s24, {n-1}\ns_cbranch_scc1 L_sig{u}")
        A(f"v_lshlrev_b32 v4, 7, v0\nv_mov_b32 v3, 1\ns_mov_b32 s24, {WS_FLAG:#x}")
        if only_w:
            A("s_mov_b32 exec_hi, 0")
        A(f"buffer_store_dword v3, v4, s[12:15], s24 offen offset:{cnt} sc1")
        if only_w:
            A("s_mov_b64 exec, -1")
        A(f"L_sig{u}:")

    def poll_word(load, v, val, done, sleep, cmp="eq"):
        uid[0] += 1
        u = uid[0]
        A(f"s_mov_b32 s24, {SPIN}\ns_mov_b64 exec, 1")
        A(f"L_aw{u}:")
        A(load)
        A(f"s_waitcnt vmcnt(0)\nv_readfirstlane_b32 s25, v{v}")
        A(f"s_cmp_{cmp}_u32 s25, {val}\ns_cbranch_scc1 {done}")
        A(f"s_sleep {sleep}\ns_sub_u32 s24, s24, 1\ns_cmp_lg_u32 s24, 0\ns_cbranch_scc1 L_aw{u}")

    def await_flag(cnt):
        uid[0] += 1
        x = f"L_awx{uid[0]}"
        A(f"s_cmp_lg_u32 s3, 0\ns_cbranch_scc1 {x}")
        poll_word(f"buffer_load_dword v1, off, s[12:15], s73 offset:{cnt} sc1", 1, 1, x, o["sl_cnt"])
        A(f"{x}:\ns_mov_b64 exec, -1\ns_barrier")

    def code_prefetch(lo, hi, back=True):
        if not o["cpf"]:
            return
        uid[0] += 1
        A(f"s_getpc_b64 s[24:25]\nL_pc{uid[0]}:")
        if back:
            A(f"s_sub_u32 s24, s24, L_pc{uid[0]}-{lo}\ns_subb_u32 s25, s25, 0")
        else:
            A(f"s_add_u32 s24, s24, {lo}-L_pc{uid[0]}\ns_addc_u32 s25, s25, 0")
        A(f"v_lshl_add_u32 v16, v0, 2, s3\nv_lshlrev_b32 v16, 7, v16\nv_min_u32 v16, {hi}-{lo}-4, v16")
        A("v_mov_b32 v17, s25\nv_add_co_u32 v16, vcc, s24, v16\nv_addc_co_u32 v17, vcc, 0, v17, vcc")
        A("global_load_dword v17, v[16:17], off")

    MASK, SELE, SELO = 20, 24, 28
    WB = 128

    def make_masks(sel=True):
        A("v_and_b32 v3, 1, v0\nv_lshlrev_b32 v3, 4, v3\nv_mov_b32 v4, 0xffff\nv_lshlrev_b32 v4, v3, v4")
        A("v_bfe_u32 v3, v0, 1, 2")
        for i in range(4):
            A(f"v_cmp_eq_u32 vcc, {i}, v3\nv_cndmask_b32 v{MASK+i}, 0, v4, vcc")
        if sel:
            A("v_mov_b32 v3, 0x0c0c0c0c\ns_mov_b32 s24, 0x01000100\ns_mov_b32 s25, 0x03020302")
            for i in range(4):
                A(f"v_bfi_b32 v{SELE+i}, v{MASK+i}, s24, v3\nv_bfi_b32 v{SELO+i}, v{MASK+i}, s25, v3")

    def gemv(xs, accs, wait=None, after=None):
        for j in range(32):
            sel = SELO if j & 1 else SELE
            for p, x in enumerate(xs):
                for i in range(4):
                    A(f"v_perm_b32 v{(8, 4)[p]+i}, v{x+j//2}, v{x+j//2}, v{sel+i}")
            if wait:
                wait(j)
            for p, acc in enumerate(accs):
                A(f"v_mfma_f32_16x16x32_bf16 {vr(acc)}, {vr(WB+4*j)}, {vr((8, 4)[p])}, {'0' if j == 0 else vr(acc)}")
            if after:
                after(j)

    def q_reduce(accs, rd, dst, tmp):
        A("v_lshrrev_b32 v3, 4, v0\nv_lshlrev_b32 v3, 7, v3\nv_and_b32 v4, 7, v0\nv_lshl_add_u32 v3, v4, 2, v3")
        A("v_bfe_u32 v4, v0, 3, 1\nv_lshl_add_u32 v3, v4, 9, v3")
        A(f"s_lshl_b32 s24, s3, 11\ns_add_u32 s24, s24, {L_QP}\nv_add_u32 v3, s24, v3")
        for p, acc in enumerate(accs):
            for r in range(4):
                A(f"ds_write_b32 v3, v{acc+r} offset:{p*1024 + r*32}")
        A("s_waitcnt lgkmcnt(0)\ns_barrier")
        for w in range(4):
            A(f"ds_read_b128 {vr(tmp+8*w)}, v{rd} offset:{w*2048}")
            A(f"ds_read_b128 {vr(tmp+8*w+4)}, v{rd} offset:{w*2048+16}")
        for w in range(1, 4):
            A(f"s_waitcnt lgkmcnt({6-2*w})")
            for e in range(8):
                A(f"v_add_f32 v{tmp+e}, v{tmp+e}, v{tmp+8*w+e}")
        for i in range(4):
            A(f"v_cvt_pk_bf16_f32 v{dst+i}, v{tmp+2*i}, v{tmp+2*i+1}")

    def diag_sum(D, y, t):
        src = D + y
        for a in range(4):
            if a != y:
                A(f"v_add_f32_dpp v{t}, v{D+a}, v{src} quad_perm:[{a},{a},{a},{a}] row_mask:0xf bank_mask:0xf")
                src = t

    def quad_masks():
        for y in range(1, 4):
            A(f"s_mov_b32 s{62+2*y}, {0x11111111 << y:#x}\ns_mov_b32 s{63+2*y}, {0x11111111 << y:#x}")

    def wave_reduce(op, v, sdst):
        for c in ("row_ror:8", "row_ror:4", "row_ror:2", "row_ror:1"):
            A(f"{op}_dpp v{v}, v{v}, v{v} {c} row_mask:0xf bank_mask:0xf")
        A(f"{op}_dpp v{v}, v{v}, v{v} row_bcast:15 row_mask:0xa bank_mask:0xf")
        A(f"{op}_dpp v{v}, v{v}, v{v} row_bcast:31 row_mask:0xc bank_mask:0xf")
        A(f"v_readlane_b32 s{sdst}, v{v}, 63")

    def wo_stage():
        A("s_mov_b32 s70, 0\nL_woA:")
        A("s_and_b32 s24, s70, 3\ns_lshl_b32 s24, s24, 1\ns_lshr_b32 s25, s70, 2\ns_or_b32 s24, s24, s25")
        A("s_lshl_b32 s24, s24, 10\ns_add_u32 s24, s24, s33")
        A(f"s_mul_i32 s25, s70, {4*WROW}\ns_add_u32 m0, s25, s34")
        for r in range(4):
            A("s_waitcnt vmcnt(24)")
            A("buffer_load_dwordx4 v2, s[8:11], s24 offen nt lds")
            if r < 3:
                A(f"s_add_u32 m0, m0, {WROW}\ns_add_u32 s24, s24, 8192")
        A("s_add_u32 s70, s70, 1\ns_cmp_lt_u32 s70, 8\ns_cbranch_scc1 L_woA")

    def wo_transpose():
        A(f"v_lshrrev_b32 v3, 2, v0\nv_mul_u32_u24 v3, {WROW}, v3\nv_and_b32 v4, 3, v0\nv_lshl_add_u32 v3, v4, 3, v3")
        A(f"s_lshl_b32 s24, s3, 8\nv_add_u32 v3, s24, v3\nv_add_u32 v4, {64*WROW}, v3")
        for T in range(8):
            for i in range(4):
                for z in range(2):
                    A(f"ds_read_b64_tr_b16 {ar((T*4+i)*4+2*z, 2)}, v{3 if i < 2 else 4} offset:{(32*(i&1)+16*z)*WROW + T*32}")

    def wave_head(dst):
        A(f"s_and_b32 s24, s3, 1\ns_lshl_b32 s24, s24, 1\ns_and_b32 {dst}, s3, 2\ns_lshl_b32 {dst}, {dst}, 3\ns_or_b32 {dst}, {dst}, s24")
        A(f"s_and_b32 s24, s26, 13\ns_or_b32 {dst}, {dst}, s24")

    def bwo_stage():
        srd(8, P_BWO, 4 << 20)
        wave_head("s25")
        A("s_lshl_b32 s25, s25, 17\ns_lshr_b32 s24, s74, 3\ns_lshl_b32 s24, s24, 7\ns_add_u32 s24, s24, s25")
        A("v_lshrrev_b32 v3, 4, v0\nv_lshlrev_b32 v3, 15, v3\nv_and_b32 v4, 8, v0\nv_lshl_add_u32 v3, v4, 10, v3\nv_and_b32 v4, 0x70, v2\nv_add_u32 v3, v3, v4")
        A(f"s_mul_i32 m0, s3, {16*WROW}")
        rows = [16 * (g & 1) + (g >> 1) + 2 * r for g in range(4) for r in range(4)]
        for k, row in enumerate(rows):
            A("buffer_load_dwordx4 v3, s[8:11], s24 offen nt lds")
            if k < 15:
                A(f"s_add_u32 m0, m0, {WROW}\ns_add_u32 s24, s24, {(rows[k+1] - row) * 1024}")

    def bwo_transpose():
        A(f"v_lshrrev_b32 v3, 2, v0\nv_mul_u32_u24 v3, {WROW}, v3\nv_and_b32 v4, 3, v0\nv_lshl_add_u32 v3, v4, 3, v3")
        A("s_lshl_b32 s24, s3, 5\nv_add_u32 v3, s24, v3")
        for hq in range(4):
            for i in range(4):
                for z in range(2):
                    A(f"ds_read_b64_tr_b16 {ar(128+(hq*4+i)*4+2*z, 2)}, v3 offset:{16*hq*WROW + 128*(2*i+z)}")

    def head_of():
        A("s_and_b32 s25, s26, 1\ns_lshl_b32 s25, s25, 1\ns_and_b32 s26, s26, 2\ns_lshl_b32 s26, s26, 3\ns_or_b32 s26, s26, s25\ns_or_b32 s26, s26, s70")

    def publish_xcc():
        uid[0] += 1
        A(f"s_cmp_lg_u32 s3, 0\ns_cbranch_scc1 L_xi{uid[0]}")
        A("s_and_b32 s24, s74, 7\ns_lshl_b32 s24, s24, 5\ns_lshr_b32 s25, s74, 3\ns_add_u32 s24, s24, s25\ns_lshl_b32 s24, s24, 2")
        A(f"s_add_u32 s24, s24, {WS_XI:#x}\ns_getreg_b32 s25, hwreg(HW_REG_XCC_ID, 0, 4)")
        A("s_mov_b64 exec, 1\nv_mov_b32 v3, s25\nbuffer_store_dword v3, off, s[12:15], s24 sc1\ns_mov_b64 exec, -1")
        A(f"L_xi{uid[0]}:")

    def near_far(store):
        uid[0] += 1
        A(f"s_cbranch_scc1 L_far{uid[0]}\n{store}\ns_branch L_near{uid[0]}\nL_far{uid[0]}:\n{store} sc1\nL_near{uid[0]}:")

    ONE, FX, FD = 84, 128, 92

    def finish_setup():
        srd(20, P_OUT, 8192)
        A("v_and_b32 v3, 3, v0\nv_lshlrev_b32 v80, 4, v3\nv_bfe_u32 v4, v0, 2, 1\nv_lshl_add_u32 v80, v4, 3, v80")
        A("v_lshrrev_b32 v5, 3, v0\nv_lshl_add_u32 v80, v5, 6, v80")
        A("v_lshlrev_b32 v82, 11, v3\nv_lshl_add_u32 v82, v4, 3, v82\nv_lshrrev_b32 v3, 4, v0\nv_lshl_add_u32 v82, v3, 4, v82")
        A("v_and_b32 v5, 1, v5\nv_lshl_add_u32 v82, v5, 6, v82")
        A(f"v_and_b32 v81, 0xf0, v2\nv_lshl_add_u32 v81, v3, {RY+2}, v81")
        A("v_cmp_eq_u32 vcc, 0, v5\nv_mov_b32 v3, 0x3f803f80\nv_cndmask_b32 v4, 0, v3, vcc\nv_xor_b32 v5, v3, v4")
        for i in range(4):
            A(f"v_and_b32 v{ONE+i}, v4, v{MASK+i}\nv_and_b32 v{ONE+4+i}, v5, v{MASK+i}")

    def elect(so):
        A(f"s_mov_b64 exec, 1\nv_mov_b32 v83, 64\nbuffer_atomic_add v83, off, s[12:15], {so} sc0\ns_mov_b64 exec, -1")

    def finish(base, out):
        uid[0] += 1
        u = uid[0]
        A(f"s_mov_b32 s25, {SPIN}\nL_fi{u}:\ns_mov_b32 s24, {base}")
        for k in range(8):
            for cb in range(2):
                A(f"buffer_load_dwordx4 {vr(FX+8*k+4*cb)}, v81, s[12:15], s24 offen offset:{256*cb} {o['yl']}")
            if k < 7:
                A(f"s_add_u32 s24, s24, {16 << RY}")
        for n in range(16):
            A(f"s_waitcnt vmcnt({15-n})")
            A(f"v_mfma_f32_16x16x32_bf16 {vr(FD)}, {vr(FX+4*n)}, {vr(ONE+4*(n & 1))}, {vr(FD) if n else 0}")
        A(f"v_cmp_u_f32 vcc, v{FD}, v{FD+1}\nv_cmp_u_f32 s[68:69], v{FD+2}, v{FD+3}")
        A(f"v_cvt_pk_bf16_f32 v4, v{FD}, v{FD+1}\nv_cvt_pk_bf16_f32 v5, v{FD+2}, v{FD+3}")
        A(f"s_or_b64 vcc, vcc, s[68:69]\ns_cbranch_scc0 L_fi{u}_x")
        A(f"v_max_u32 v3, v{FX}, v{FX+1}")
        for k in range(2, 64, 2):
            A(f"v_max3_u32 v3, v3, v{FX+k}, v{FX+k+1}")
        A(f"v_cmp_eq_u32 vcc, -1, v3\ns_sub_u32 s25, s25, 1\ns_cmp_eq_u32 s25, 0\ns_cbranch_scc1 L_fi{u}_x")
        A(f"s_cmp_lg_u64 vcc, 0\ns_cbranch_scc1 L_fi{u}")
        A(f"L_fi{u}_x:\nbuffer_store_dwordx2 v[4:5], v82, s[20:23], {out} offen")

    def poll_data(loads, lo, n, sleep):
        uid[0] += 1
        u = uid[0]
        A(f"s_mov_b32 s24, {SPIN}")
        if sleep:
            A(f"s_branch L_pd{u}_in\nL_pd{u}:\ns_sleep {sleep}\nL_pd{u}_in:")
        else:
            A(f"L_pd{u}:")
        loads()
        A("s_waitcnt vmcnt(0)")
        A(f"v_max_u32 v3, v{lo}, v{lo+1}")
        for k in range(2, n, 2):
            A(f"v_max3_u32 v3, v3, v{lo+k}, v{lo+k+1}")
        A(f"v_cmp_eq_u32 vcc, -1, v3\ns_sub_u32 s24, s24, 1\ns_cmp_eq_u32 s24, 0\ns_cbranch_scc1 L_pd{u}_x")
        A(f"s_and_b64 exec, exec, vcc\ns_cbranch_scc1 L_pd{u}")
        A(f"L_pd{u}_x:\ns_mov_b64 exec, -1")

    A(f"{NAME}_kernel:")
    if o["probe"] or o["vpad"]:
        A("s_memrealtime s[100:101]")
    elif o["stamps"]:
        A("s_memrealtime s[94:95]")
    A("s_load_dwordx16 s[36:51], s[0:1], 0\ns_load_dwordx8 s[52:59], s[0:1], 64\ns_load_dwordx4 s[60:63], s[0:1], 96")
    A("s_cmp_ge_u32 s2, 256\ns_cbranch_scc1 L_end")
    A("s_cmp_lt_u32 s2, 64")
    if o["cpf"] == 2:
        A("; pull the first code of this role into L2 while the kernel arguments arrive")
        A("s_getpc_b64 s[24:25]\nL_pc0:\ns_cselect_b32 s20, L_A-L_pc0, 0")
        A("v_lshlrev_b32 v16, 7, v0\nv_min_u32 v16, L_A-L_pc0-4, v16\nv_add_u32 v16, s20, v16")
        A("v_add_co_u32 v16, vcc, s24, v16\nv_mov_b32 v17, s25\nv_addc_co_u32 v17, vcc, 0, v17, vcc")
        A("global_load_dword v17, v[16:17], off")
    A("s_cbranch_scc1 L_A")

    def lane_ids():
        A("v_lshrrev_b32 v1, 6, v0\nv_and_b32 v0, 63, v0\nv_readfirstlane_b32 s3, v1\nv_lshlrev_b32 v2, 4, v0")

    RING, BQ, SR = 64, 32, 48
    PF = dict(b=(P_BWQ, 24, 13, 512), q=(P_AWQ, 24, 13, 512), k=(P_AWUK, 24, 13, 512), u=(P_AWUV, 24, 13, 512),
              o=(P_BWO, 25, 8, 512), v=(P_AWO, 25, 8, 512), c=(P_CKV, 26, 10 + LNS, 2048))

    def l2_prefetch(order, dep):
        for ch in order:
            ptr, vb, sh, cnt = PF[ch]
            A(f"s_mov_b64 s[8:9], s[{ptr}:{ptr+1}]")
            if cnt != 512:
                A(f"s_mov_b32 s10, {cnt*8192:#x}")
            A(f"L_pf{ch}:")
            A(f"s_lshl_b32 s24, s74, {sh}")
            if dep is not None:
                A(f"s_waitcnt vmcnt({dep})")
            A(f"buffer_load_dwordx4 v[28:31], v{vb}, s[8:11], s24 offen")
            A(f"s_addk_i32 s74, 96\ns_cmpk_lt_u32 s74, {cnt}\ns_cbranch_scc1 L_pf{ch}")
            A(f"s_addk_i32 s74, {-cnt}")
            if cnt != 512:
                A("s_mov_b32 s10, 0x400000")

    A("L_B:")
    A("s_and_b32 s70, s2, 6\ns_and_b32 s25, s2, 7\ns_add_u32 s70, s70, s25\ns_lshl_b32 s25, s70, 8")
    A("v_and_b32 v6, 15, v0\nv_lshl_add_u32 v24, v6, 4, s25\nv_and_b32 v4, 16, v0\nv_lshl_add_u32 v24, v4, 5, v24")
    A("v_lshrrev_b32 v4, 5, v0\nv_lshl_add_u32 v24, v4, 12, v24")
    A("s_lshr_b32 s74, s2, 3\ns_lshl_b32 s74, s74, 2\ns_addk_i32 s74, -32")
    A("s_mov_b32 s10, 0x400000\ns_mov_b32 s11, 0x20000")
    nf = o["fast"]
    assert all(PF[c][1] == 24 for c in o["pf"][:nf])
    A("s_waitcnt lgkmcnt(0)")
    stamp(0)
    l2_prefetch(o["pf"][:nf], None)
    lane_ids()
    if o["cpf"] == 1:
        code_prefetch("L_B", "L_A")
    A("s_lshr_b32 s24, s2, 3\ns_sub_u32 s24, s24, 8")
    A("s_mul_i32 s26, s24, 43\ns_lshr_b32 s26, s26, 8\ns_mul_i32 s27, s26, 6\ns_sub_u32 s27, s24, s27")
    head_of()
    A("s_lshl_b32 s25, s70, 17\ns_lshl_b32 s24, s3, 8\ns_add_u32 s25, s25, s24\nv_lshl_add_u32 v25, v6, 4, s25")
    A("v_and_b32 v4, 16, v0\nv_lshl_add_u32 v25, v4, 14, v25\nv_and_b32 v4, 32, v0\nv_lshl_add_u32 v25, v4, 16, v25")
    A(f"s_and_b32 s25, s2, {NS-1}\ns_lshl_b32 s25, s25, 10\ns_lshl_b32 s24, s3, {10+LNS}\ns_add_u32 s25, s25, s24")
    A(f"s_bfe_u32 s24, s2, {LNS | ((3 - LNS) << 16):#x}\ns_lshl_b32 s24, s24, {21 + LNS}\ns_add_u32 s25, s25, s24")
    A("v_add_u32 v26, s25, v2")
    A("s_cmp_ge_u32 s27, 3\ns_cselect_b32 s28, 1, 0\ns_mul_i32 s29, s28, 3\ns_sub_u32 s29, s27, s29")
    A("s_lshr_b32 s72, s3, 1\ns_lshl_b32 s24, s28, 1\ns_add_u32 s72, s72, s24")
    A("s_and_b32 s31, s3, 1\ns_lshl_b32 s24, s29, 1\ns_add_u32 s31, s31, s24")
    A("s_lshl_b32 s30, s72, 5\ns_add_u32 s30, s30, s26\ns_lshl_b32 s30, s30, 20")
    A("v_lshrrev_b32 v3, 4, v0\nv_and_b32 v4, 3, v0\nv_lshlrev_b32 v5, 6, v3\nv_lshl_add_u32 v5, v4, 4, v5")
    A("v_bfe_u32 v1, v0, 2, 2\nv_lshl_add_u32 v1, v1, 8, v5")
    NREG = 1024 // (6 * chunk) * chunk
    NLFT = 171 - NREG
    A(f"s_mul_i32 s35, s31, {chunk*1024}\ns_add_u32 s32, s35, {160*6144}")
    A(f"s_mul_i32 s28, s31, {NLFT*1024}\ns_add_u32 s28, s28, {NREG*6144}")
    A("s_mov_b32 s6, 0x100000\ns_mov_b32 s7, 0x20000")
    A(f"s_add_u32 s4, s{P_K}, s30\ns_addc_u32 s5, s{P_K+1}, 0")
    srd(12, P_WS, WS_SIZE)
    srd(16, P_DBG, 256)
    make_masks(sel=False)
    quad_masks()
    for x in range(16):
        A(f"v_mov_b32 v{BQ+x}, 0")
    A("v_lshrrev_b32 v3, 4, v0\nv_lshlrev_b32 v60, 6, v3\nv_and_b32 v4, 7, v0\nv_lshl_add_u32 v60, v4, 3, v60")
    A("s_lshl_b32 s33, s26, 2\ns_add_u32 s33, s33, s72")
    A(f"s_lshl_b32 s34, s26, {RB}\ns_lshl_b32 s24, s72, 8\ns_add_u32 s34, s34, s24\ns_add_u32 s34, s34, {WS_QB:#x}")
    A(f"s_mul_i32 s73, s33, 6\ns_add_u32 s73, s73, s31\ns_lshl_b32 s73, s73, 8\ns_add_u32 s73, s73, {WS_OB:#x}")
    l2_prefetch(o["pf"][nf:], o["pdep"])
    stamp(8)

    def sload(i, dst):
        if i >= NREG:
            A(f"buffer_load_dwordx4 {dst}, v1, s[4:7], s28 offen offset:{(i - NREG)*1024} nt")
            return
        A(f"buffer_load_dwordx4 {dst}, v1, s[4:7], s32 offen offset:{(i % chunk)*1024} nt")
        if i % chunk == chunk - 1:
            A(f"s_add_u32 s32, s32, {6*chunk*1024}")

    def park(lo, hi):
        for n in range(lo, hi):
            A("s_waitcnt vmcnt(15)")
            if n < 11:
                sload(160 + n, ar(4 * n))
            else:
                if n == 11:
                    A("s_mov_b32 s32, s35")
                m = n - 11
                sload(m, ar(64 + 4 * m) if m < 16 * NB else vr(RING + 4 * (m - 16 * NB)))

    NB = o["nbank"]
    NP = 27 + 16 * NB
    qa, qb = o["qa"], o["qb"]
    park(0, qa)
    stamp(6)
    A(f"s_mov_b64 exec, 1\nbuffer_load_dword v61, off, s[16:19], 0 offset:{C_QB} sc1\ns_mov_b64 exec, -1")
    park(qa, qb)
    A(f"s_waitcnt vmcnt({qb - qa})\nv_readfirstlane_b32 s25, v61")
    A("s_cmp_ge_u32 s25, 32\ns_cbranch_scc1 L_B_q")
    poll_word(f"buffer_load_dword v61, off, s[16:19], 0 offset:{C_QB} sc1", 61, 32, "L_B_q", 16, "ge")
    A("L_B_q:\ns_mov_b64 exec, -1")
    stamp(7)
    A("buffer_load_dwordx4 v[8:11], v5, s[12:15], s34 offen sc1")
    park(qb, NP)
    A(f"s_waitcnt vmcnt({min(15, NP - qb)})")
    for x in range(4):
        for i in range(4):
            A(f"v_mov_b32_dpp v{BQ+4*x+i}, v{8+i} {DPP_ID} row_mask:0xf bank_mask:{1 << x:#x}")
    stamp(1)

    def kblock(src, S, n, stream):
        for j in range(n):
            x, y = j & 3, j >> 2
            D = 12 + 4 * (y & 1)
            if stream:
                A("s_waitcnt vmcnt(15)")
            A(f"v_mfma_f32_16x16x32_bf16 {vr(D)}, {src(j)}, {vr(BQ+4*x)}, {'0' if x == 0 else vr(D)}")
            if stream:
                sload(j, src(j))
            if x == 3 or j == n - 1:
                if y == 0:
                    diag_sum(D, 0, S)
                else:
                    diag_sum(D, y, 3)
                    A(f"v_cndmask_b32 v{S}, v{S}, v3, s[{62+2*y}:{63+2*y}]")

    A(f"s_mov_b32 s27, {NB}")
    A("L_BK:")
    trace(1)
    A("s_cmp_lg_u32 s27, 9\ns_cbranch_scc1 L_BK_a")
    A(f"s_add_u32 s4, s{P_V}, s30\ns_addc_u32 s5, s{P_V+1}, 0\ns_mov_b32 s32, s35\nv_mov_b32 v1, v2")
    A("L_BK_a:")
    A("s_barrier")
    A(f"s_cmp_lg_u32 s27, {o['xi_it']}\ns_cbranch_scc1 L_BK_x0")
    A(f"s_and_b32 s24, s2, 7\ns_lshl_b32 s24, s24, 7\ns_add_u32 s24, s24, {WS_XI:#x}")
    A("v_and_b32 v63, 7, v0\nv_lshlrev_b32 v63, 2, v63\nbuffer_load_dword v62, v63, s[12:15], s24 offen sc1")
    A("L_BK_x0:")
    A(f"s_cmp_lg_u32 s27, {o['xi_it']+1}\ns_cbranch_scc1 L_BK_x1")
    A("s_getreg_b32 s24, hwreg(HW_REG_XCC_ID, 0, 4)\nv_cmp_ne_u32 vcc, s24, v62\ns_or_b32 s75, vcc_lo, vcc_hi")
    for i in range(4):
        A(f"v_mov_b32 v{28+i}, -1")
    A("s_mov_b64 exec, 0xffff")
    near_far("buffer_store_dwordx4 v[28:31], v2, s[12:15], s73 offen")
    A("s_mov_b64 exec, -1")
    A("L_BK_x1:")
    for k in range(NB, 9):
        A(f"v_mov_b32 v{SR+k}, v{SR+k+1}")
    kblock(lambda j: vr(RING + 4 * j), SR + 9, 16, True)
    for k in range(NB):
        A(f"s_cmp_lg_u32 s27, {NB+2+k}\ns_cbranch_scc1 L_BK_c{k}")
        kblock(lambda j: ar(64 + 64 * k + 4 * j), SR + k, 16, False)
        A(f"L_BK_c{k}:")
    A(f"s_cmp_lg_u32 s27, {NB+1}\ns_cbranch_scc1 L_BK_b")
    kblock(lambda j: ar(4 * j), SR + 10, 11, False)
    A(f"s_mul_i32 s24, s31, {NLFT}\ns_sub_i32 s24, {1024 - 6*NREG}, s24\ns_max_i32 s24, s24, 0\ns_min_i32 s24, s24, {NLFT}\ns_add_u32 s24, s24, {NREG - 160}")
    A("v_and_b32 v3, 3, v0\nv_bfe_u32 v4, v0, 2, 2\nv_lshl_add_u32 v3, v3, 2, v4")
    A(f"v_mov_b32 v4, 0xff800000\nv_cmp_gt_u32 vcc, s24, v3\nv_cndmask_b32 v{SR+10}, v4, v{SR+10}, vcc")
    A(f"v_mov_b32 v61, {SCALE:#x}\nv_mov_b32 v7, 0")
    A(f"s_lshr_b32 s34, s2, 3\ns_lshl_b32 s34, s34, {RC}\ns_and_b32 s24, s2, 7\ns_lshl_b32 s24, s24, 7\ns_add_u32 s34, s34, s24\ns_add_u32 s34, s34, {WS_BML - (8 << RC):#x}")
    A("L_BK_b:")
    A("s_add_u32 s27, s27, 1\ns_cmp_lt_u32 s27, 10\ns_cbranch_scc1 L_BK")
    stamp(2)

    A(f"v_max3_f32 v3, v{SR}, v{SR+1}, v{SR+2}")
    for k in range(3, 11, 2):
        A(f"v_max3_f32 v3, v3, v{SR+k}, v{SR+k+1}")
    wave_reduce("v_max_f32", 3, 24)
    A("v_mul_f32 v6, s24, v61")

    def probs(ks):
        for k in ks:
            A(f"v_fma_f32 v{SR+k}, v{SR+k}, v61, -v6")
        for k in ks:
            A(f"v_exp_f32 v{SR+k}, v{SR+k}")
        for k in ks:
            A(f"v_add_f32 v7, v7, v{SR+k}")
        for k in ks:
            A(f"v_cvt_pk_bf16_f32 v{SR+k}, v{SR+k}, v{SR+k}")

    def publish_ml():
        wave_reduce("v_add_f32", 7, 70)
        A("s_lshl_b32 s25, s3, 4\ns_add_u32 s25, s25, s34")
        A("s_mov_b64 exec, 1\nv_mov_b32 v7, s70")
        A("s_cmp_lg_u32 s75, 0")
        near_far("buffer_store_dwordx2 v[6:7], off, s[12:15], s25")
        A("s_mov_b64 exec, -1")
    for i in range(4):
        A(f"v_mov_b32 v{12+i}, 0")
    probs([0])
    stamp(3)

    A("s_mov_b32 s27, 0")
    A("L_BV:")
    trace(11)
    A("s_barrier")
    if o["hlp"]:
        A(f"s_cmp_ge_u32 s27, {o['h_it']}\ns_cselect_b32 s71, s3, 4")

    def v_finish():
        if o["vpad"]:
            A(f"s_lshr_b32 s24, s2, 3\ns_mul_i32 s24, s24, 6\ns_sub_u32 s24, {o['vpad']}, s24")
            A("L_vpad:\ns_memrealtime s[98:99]\ns_waitcnt lgkmcnt(0)\ns_sub_u32 s25, s98, s100\ns_cmp_lt_u32 s25, s24\ns_cbranch_scc1 L_vpad")
        stamp(4)
        A("s_mov_b32 exec_lo, 0x00ff00ff\ns_mov_b32 exec_hi, 0x00ff00ff")
        A("s_cmp_lg_u32 s75, 0")
        A("v_cvt_pk_bf16_f32 v4, v12, v13\nv_cvt_pk_bf16_f32 v5, v14, v15")
        if 'b' not in o['drop']:
            near_far("buffer_store_dwordx2 v[4:5], v60, s[12:15], s73 offen")
        stamp(5)
        trace_out()
        stamps_out()
        A("s_endpgm")

    def v_step(j, p, cnt):
        x, y = j & 3, j >> 2
        for i in range(4):
            A(f"v_and_b32_dpp v{8+i}, v{p}, v{MASK+i} row_newbcast:{4*x+y} row_mask:0xf bank_mask:0xf")
        A(f"s_waitcnt vmcnt({cnt})")
        A(f"v_mfma_f32_16x16x32_bf16 v[12:15], {vr(RING+4*j)}, v[8:11], v[12:15]")

    NOUT = NREG - 160
    for j in range(16):
        x, y = j & 3, j >> 2
        if j == NOUT:
            A("s_cmp_eq_u32 s27, 9\ns_cbranch_scc1 L_BT")
        if j == o["dfr"]:
            A("s_cmp_lg_u32 s27, 0\ns_cbranch_scc1 L_BV_d")
            probs(range(1, 11))
            publish_ml()
            A("L_BV_d:")
        if o["hlp"] and x == 0:
            A(f"s_cmp_lg_u32 s71, {y}\ns_cbranch_scc1 L_BV_p{y}")
            A(f"s_lshl_b32 s24, s27, 2\ns_add_u32 s24, s24, {y}\ns_mov_b64 exec, 1\nv_mov_b32 v63, s24")
            A("s_cmp_lg_u32 s75, 0")
            near_far("buffer_store_dword v63, off, s[12:15], s34 offset:64")
            A("s_mov_b64 exec, -1")
            A(f"L_BV_p{y}:")
        v_step(j, SR, 15)
        sload(j, vr(RING + 4 * j))
    for k in range(10):
        A(f"v_mov_b32 v{SR+k}, v{SR+k+1}")
    A("s_add_u32 s27, s27, 1\ns_branch L_BV")
    A("L_BT:")
    for j in range(NOUT, 11):
        v_step(j, SR, 15)
        sload(160 + j, vr(RING + 4 * j))
    for n in range(16):
        j = (11 + n) & 15
        v_step(j, SR if j >= 11 else SR + 1, 15 - n)
    v_finish()

    XA, XB = 32, 48
    A("L_A:")
    role[0] = "A"
    lane_ids()
    if o["cpf"] == 1:
        code_prefetch("L_A", "L_A2")
    A("s_mov_b32 s74, s2\ns_and_b32 s72, s2, 31")
    A("s_and_b32 s70, s2, 6\ns_and_b32 s25, s2, 7\ns_add_u32 s70, s70, s25\ns_lshr_b32 s26, s72, 3")
    head_of()
    A("v_lshrrev_b32 v3, 4, v0\nv_and_b32 v4, 15, v0")
    A("v_lshlrev_b32 v18, 18, v3\nv_lshl_add_u32 v18, v4, 4, v18")
    A("v_lshrrev_b32 v6, 3, v4\nv_lshlrev_b32 v6, 10, v6\nv_lshl_add_u32 v19, v3, 6, v6")
    A("v_bfe_u32 v1, v0, 2, 2\nv_lshlrev_b32 v64, 18, v1\nv_lshl_add_u32 v64, v3, 6, v64")
    A("v_and_b32 v4, 3, v0\nv_lshl_add_u32 v64, v4, 4, v64")
    A("v_lshlrev_b32 v65, 9, v1\nv_lshl_add_u32 v65, v3, 7, v65\nv_lshl_add_u32 v65, v4, 5, v65")
    A(f"v_add_u32 v65, {L_QP}, v65")
    A(f"v_lshlrev_b32 v66, {RQ+5}, v1\nv_lshl_add_u32 v66, v3, 6, v66\nv_lshl_add_u32 v66, v4, 4, v66")
    A("v_and_b32 v4, 15, v0\nv_lshlrev_b32 v67, 10, v3\nv_lshl_add_u32 v67, v4, 4, v67")
    A("s_lshl_b32 s35, s3, 20\ns_lshl_b32 s24, s26, 8\ns_add_u32 s35, s35, s24")
    A("s_waitcnt lgkmcnt(0)")
    stamp(0)
    A("s_cmp_lt_u32 s74, 32")
    A(f"s_cselect_b64 s[4:5], s[{P_AWQ}:{P_AWQ+1}], s[{P_BWQ}:{P_BWQ+1}]\ns_mov_b32 s6, 0x400000\ns_mov_b32 s7, 0x20000")
    A(f"s_cselect_b64 s[20:21], s[{P_AX}:{P_AX+1}], s[{P_BX}:{P_BX+1}]\ns_mov_b32 s22, 4096\ns_mov_b32 s23, 0x20000")
    A("s_cselect_b32 s75, 0x400000, 0")
    A("s_lshl_b32 s24, s3, 8\ns_mov_b32 s32, s35")
    A("buffer_load_dwordx4 v[12:15], v67, s[20:23], s24 offen")

    def wload(j, voff, pol="nt"):
        A(f"buffer_load_dwordx4 {vr(WB+4*j)}, v{voff}, s[4:7], s32 offen {pol}")
        A("s_add_u32 s32, s32, 8192")
    LEAD = o["lead"]
    for j in range(LEAD):
        wload(j, 18, "")
    srd(12, P_WS, WS_SIZE)
    srd(16, P_DBG, 256)
    make_masks()
    quad_masks()
    A(f"s_lshl_b32 s24, s3, 8\ns_add_u32 s24, s24, {L_CX}\nv_add_u32 v3, s24, v67\nv_add_u32 v4, s24, v19")
    A(f"s_waitcnt vmcnt({LEAD})\nds_write_b128 v3, v[12:15]\ns_waitcnt lgkmcnt(0)")
    for p in range(2):
        for i in range(4):
            A(f"ds_read_b128 {vr(XA+16*p+4*i)}, v4 offset:{2048*p+16*i}")
    A("s_waitcnt lgkmcnt(0)")

    for i in range(4):
        A(f"v_mov_b32 v{76+i}, -1")
    A(f"s_lshl_b32 s71, s72, 2\ns_add_u32 s71, s71, s3\ns_lshl_b32 s71, s71, {RC}\ns_add_u32 s71, s71, {WS_BML:#x}")
    A(f"s_cmp_lt_u32 s74, 32\ns_cselect_b32 s71, {WS_SIZE:#x}, s71")

    def s1_after(j):
        if j + LEAD == 32:
            A("; clear this workgroup's flag line and (role C) the slots that are polled for data")
            A(f"s_lshl_b32 s73, s74, 7\ns_add_u32 s73, s73, {WS_FLAG:#x}")
            A("s_cmp_lg_u32 s3, 0\ns_cbranch_scc1 L_A_nofl")
            A("s_mov_b64 exec, 1\nbuffer_store_dwordx4 v[76:79], off, s[12:15], s73 sc1\ns_mov_b64 exec, -1")
            A("L_A_nofl:")
            for i in range(0 if 'c' in o['drop'] else 1):
                A(f"s_cmp_ge_u32 s71, {WS_CLR_END:#x}\ns_cselect_b32 s71, {WS_SIZE:#x}, s71")
                A("buffer_store_dwordx4 v[76:79], v2, s[12:15], s71 offen sc1\ns_add_u32 s71, s71, 0x20000")
            code_prefetch("L_A2", "L_last", back=False)
            A(f"s_mov_b32 s4, s{P_AWUK}\ns_mov_b32 s5, s{P_AWUK+1}\ns_mov_b32 s6, s75\ns_mov_b32 s32, s35")
        if j + LEAD < 32:
            wload(j + LEAD, 18)
        else:
            wload(j + LEAD - 32, 64)
    extra = ((0 if 'c' in o['drop'] else 1) + (1 if o["cpf"] else 0)) * o["xw"]
    gemv([XA, XB], [12, 68], wait=lambda j: A(f"s_waitcnt vmcnt({LEAD - 1 + (extra if j + LEAD > 32 else 0)})"), after=s1_after)
    q_reduce([12, 68], 65, 8, 72)
    stamp(1)
    A("s_cmp_ge_u32 s74, 32\ns_cbranch_scc1 L_C")
    A("L_A2:")
    TQ = 72
    for j in range(LEAD, 32):
        wload(j, 64)
    DQ, TT = 80, 112
    for y in range(4):
        for e in range(8):
            j = 8 * y + e
            A(f"s_waitcnt vmcnt({31-j})")
            A(f"v_mfma_f32_16x16x32_bf16 {vr(DQ+4*e)}, {vr(WB+4*j)}, v[8:11], 0")
        t = TQ if y == 0 else TT
        for n, a in enumerate(a for a in range(4) if a != y):
            for e in range(8):
                src = DQ + 4 * e + y if n == 0 else t + e
                A(f"v_add_f32_dpp v{t+e}, v{DQ+4*e+a}, v{src} quad_perm:[{a},{a},{a},{a}] row_mask:0xf bank_mask:0xf")
        if y:
            for e in range(8):
                A(f"v_cndmask_b32 v{TQ+e}, v{TQ+e}, v{TT+e}, s[{62+2*y}:{63+2*y}]")
    A(f"s_mov_b32 s71, {SCALE:#x}")
    for e in range(8):
        A(f"v_mul_f32 v{TQ+e}, s71, v{TQ+e}")
    for i in range(4):
        A(f"v_cvt_pk_bf16_f32 v{4+i}, v{TQ+2*i}, v{TQ+2*i+1}")
    A(f"s_lshl_b32 s24, s26, {RQ}\ns_lshl_b32 s25, s3, 8\ns_add_u32 s24, s24, s25\ns_add_u32 s24, s24, {WS_QA:#x}")
    if 'q' not in o['drop']:
        A(f"buffer_store_dwordx4 v[4:7], v66, s[12:15], s24 offen sc1")
    bwo_stage()
    signal(C_Q, 64)
    stamp(2)
    bwo_transpose()
    srd(4, P_AWUV, 4 << 20)
    srd(8, P_AWO, 4 << 20)
    A("s_mov_b32 s32, s35")
    for j in range(32):
        wload(j, 18)
    A("s_lshl_b32 s33, s26, 17\ns_lshl_b32 s24, s3, 15\ns_add_u32 s33, s33, s24")
    A(f"s_mul_i32 s34, s3, {32*WROW}")
    A("s_waitcnt lgkmcnt(0)\ns_barrier")
    wo_stage()
    A("s_waitcnt vmcnt(0)\ns_barrier")
    wo_transpose()
    A("s_waitcnt lgkmcnt(0)")
    stamp(3)
    await_flag(C_Q)
    publish_xcc()
    await_flag(C_P)
    stamp(4)
    PR = 72
    A(f"s_lshl_b32 s24, s3, {8+LNS}\ns_lshl_b32 s25, s26, 3\ns_add_u32 s25, s25, s24\ns_add_u32 s25, s25, {WS_PML:#x}")
    A(f"v_and_b32 v3, {NS-1}, v0\nv_lshlrev_b32 v3, 8, v3")
    A("buffer_load_dwordx2 v[4:5], v3, s[12:15], s25 offen sc1")
    A(f"s_lshl_b32 s24, s3, {RP+5+LNS}\ns_lshl_b32 s25, s26, {RP}\ns_add_u32 s24, s24, s25\ns_add_u32 s24, s24, {WS_PART:#x}")
    for s in range(0 if 'P' in o['drop'] else NS):
        A(f"buffer_load_dwordx4 {vr(PR+4*s)}, v2, s[12:15], s24 offen sc1 nt\ns_add_u32 s24, s24, {32 << RP}")
    A(f"s_waitcnt vmcnt({NS})")
    A("v_mov_b32 v6, v4")
    rors = ("row_ror:4", "row_ror:2", "row_ror:1")[3 - LNS:]
    for c in rors:
        A(f"v_max_f32_dpp v6, v6, v6 {c} row_mask:0xf bank_mask:0xf")
    A("v_sub_f32 v4, v4, v6\nv_exp_f32 v4, v4\nv_mul_f32 v5, v4, v5")
    for c in rors:
        A(f"v_add_f32_dpp v5, v5, v5 {c} row_mask:0xf bank_mask:0xf")
    A("v_rcp_f32 v5, v5\nv_mul_f32 v4, v4, v5")
    CA = 104
    for s in range(NS):
        A(f"v_readlane_b32 s24, v4, {s}")
        A(f"s_waitcnt vmcnt({NS-1-s})")
        for i in range(4):
            A(f"v_lshlrev_b32 v5, 16, v{PR+4*s+i}\nv_and_b32 v6, 0xffff0000, v{PR+4*s+i}")
            if s == 0:
                A(f"v_mul_f32 v{CA+2*i}, s24, v5\nv_mul_f32 v{CA+2*i+1}, s24, v6")
            else:
                A(f"v_fmac_f32 v{CA+2*i}, s24, v5\nv_fmac_f32 v{CA+2*i+1}, s24, v6")
    for i in range(4):
        A(f"v_cvt_pk_bf16_f32 v{4+i}, v{CA+2*i}, v{CA+2*i+1}")
    A(f"s_lshl_b32 s24, s3, 10\ns_add_u32 s24, s24, {L_CX}\nv_add_u32 v3, s24, v2")
    A("ds_write_b128 v3, v[4:7]")
    A(f"s_lshl_b32 s24, s3, 8\ns_add_u32 s24, s24, {L_CX}\nv_add_u32 v3, s24, v19")
    A("s_waitcnt lgkmcnt(0)\ns_barrier")
    for p in range(2):
        for i in range(4):
            A(f"ds_read_b128 {vr(XA+16*p+4*i)}, v3 offset:{2048*p+16*i}")
    A("s_waitcnt lgkmcnt(0)")
    gemv([XA, XB], [12, 68])
    A("v_lshrrev_b32 v3, 4, v0\nv_lshlrev_b32 v3, 7, v3\nv_and_b32 v4, 7, v0\nv_lshl_add_u32 v3, v4, 4, v3")
    A("v_bfe_u32 v4, v0, 3, 1\nv_lshl_add_u32 v3, v4, 9, v3")
    A(f"s_lshl_b32 s24, s3, 11\ns_add_u32 s24, s24, {L_QP}\nv_add_u32 v3, s24, v3")
    A("ds_write_b128 v3, v[12:15]\nds_write_b128 v3, v[68:71] offset:1024")
    A("s_waitcnt lgkmcnt(0)\ns_barrier")
    A(f"v_and_b32 v5, 31, v0\ns_lshl_b32 s24, s3, 9\ns_add_u32 s24, s24, {L_QP}\nv_lshl_add_u32 v3, v5, 4, s24")
    for w in range(4):
        A(f"ds_read_b128 {vr(72+4*w)}, v3 offset:{w*2048}")
    A(f"s_mul_i32 s24, s3, {OROW}\ns_add_u32 s24, s24, {L_OA}\nv_lshl_add_u32 v5, v5, 3, s24")
    A("s_waitcnt lgkmcnt(0)")
    for w in range(1, 4):
        for r in range(4):
            A(f"v_add_f32 v{72+r}, v{72+r}, v{72+4*w+r}")
    A("v_cvt_pk_bf16_f32 v6, v72, v73\nv_cvt_pk_bf16_f32 v7, v74, v75")
    A("ds_write_b64 v5, v[6:7]")
    A(f"v_lshrrev_b32 v3, 4, v0\nv_and_b32 v4, 3, v0\nv_mul_u32_u24 v5, {OROW}, v4\nv_lshl_add_u32 v5, v3, 4, v5\nv_add_u32 v5, {L_OA}, v5")
    A("s_waitcnt lgkmcnt(0)\ns_barrier")
    for i in range(4):
        A(f"ds_read_b128 {vr(XA+4*i)}, v5 offset:{64*i}")

    def merge_w(T):
        for r in range(4):
            A(f"v_mov_b32_dpp v{4+4*(T>>2)+r}, v{72+4*T+r} {DPP_ID} row_mask:{1 << (T & 3):#x} bank_mask:0xf")
    for T in range(8):
        D = 72 + 4 * T
        for i in range(4):
            if T == 0:
                A(f"s_waitcnt lgkmcnt({3-i})")
            A(f"v_mfma_f32_16x16x32_bf16 {vr(D)}, {vr(XA+4*i)}, {ar((T*4+i)*4)}, {'0' if i == 0 else vr(D)}")
        if T >= 2:
            merge_w(T - 2)
    merge_w(6)
    merge_w(7)
    for i in range(4):
        A(f"v_cvt_pk_bf16_f32 v{12+i}, v{4+2*i}, v{5+2*i}")
    finish_setup()
    A(f"s_lshl_b32 s30, s3, {RY}\ns_add_u32 s30, s30, {WS_YA:#x}\ns_lshl_b32 s24, s26, {RY+2}\ns_add_u32 s24, s24, s30")
    if 'y' not in o['drop']:
        A(f"buffer_store_dwordx2 v[12:13], v80, s[12:15], s24 offen {o['ys']}")
        A(f"buffer_store_dwordx2 v[14:15], v80, s[12:15], s24 offen offset:512 {o['ys']}")
    A(f"s_lshl_b32 s24, s3, 7\ns_add_u32 s24, s24, {WS_ELA:#x}\ns_waitcnt vmcnt(0)")
    elect("s24")
    A("s_waitcnt vmcnt(0)\nv_readfirstlane_b32 s24, v83\ns_cmp_lg_u32 s24, 1983\ns_cbranch_scc1 L_W_x")
    A("s_lshl_b32 s31, s3, 8\nL_W_f:")
    finish("s30", "s31")
    A("s_add_u32 s30, s30, 512\ns_add_u32 s31, s31, 128\ns_bitcmp1_b32 s31, 7\ns_cbranch_scc1 L_W_f")
    A("L_W_x:\ns_barrier")
    stamp(5)

    WT, OX, OA_ = 32, 56, 128
    A("L_R:")
    srd(20, P_OUT, 8192)
    make_masks(sel=False)
    A("v_lshrrev_b32 v3, 4, v0\nv_and_b32 v4, 7, v0\nv_bfe_u32 v7, v0, 3, 1")
    A(f"v_lshl_add_u32 v5, v3, 3, v4\nv_mul_u32_u24 v6, {OROW}, v7\nv_lshl_add_u32 v5, v5, 3, v6")
    A(f"s_mul_i32 s24, s3, {4*OROW}\ns_add_u32 s24, s24, {L_QP}\nv_add_u32 v24, s24, v5")
    A(f"v_and_b32 v5, 3, v0\nv_mul_u32_u24 v25, {OROW}, v5\nv_lshl_add_u32 v25, v3, 4, v25\nv_add_u32 v25, {L_QP}, v25")
    A("v_lshlrev_b32 v26, 4, v4\nv_lshl_add_u32 v26, v7, 3, v26\nv_and_b32 v5, 15, v0\nv_lshlrev_b32 v28, 11, v3\nv_lshl_add_u32 v28, v5, 1, v28")
    A("s_and_b32 s24, s74, 7\ns_lshl_b32 s24, s24, 3\ns_bfm_b64 s[44:45], 8, s24\ns_not_b64 s[44:45], s[44:45]")
    A(f"v_min_u32 v6, 5, v4\nv_lshrrev_b32 v5, 1, v6\nv_and_b32 v8, 1, v3\nv_mad_u32_u24 v5, v8, 3, v5\nv_lshlrev_b32 v31, {RC}, v5")
    A("v_and_b32 v6, 1, v6\nv_lshl_add_u32 v6, v7, 1, v6\nv_lshl_add_u32 v31, v6, 4, v31")
    stamp(8)
    A(f"s_and_b32 s35, s72, 7\ns_lshl_b32 s35, s35, 7\ns_add_u32 s35, s35, {WS_BML:#x}")
    A(f"s_lshr_b32 s34, s72, 3\ns_mul_i32 s34, s34, 6\ns_mul_i32 s29, s3, {6 << RC}\ns_add_u32 s29, s29, s35")
    poll_data(lambda: A("buffer_load_dwordx2 v[8:9], v31, s[12:15], s29 offen sc1"), 8, 2, o['sl_ml'])
    red8 = ("quad_perm:[1,0,3,2]", "quad_perm:[2,3,0,1]", "row_half_mirror")
    A("v_mov_b32 v6, v8")
    for c in red8:
        A(f"v_max_f32_dpp v6, v6, v6 {c} row_mask:0xf bank_mask:0xf")
    A("v_sub_f32 v8, v8, v6\nv_exp_f32 v8, v8\nv_cmp_gt_u32 vcc, 6, v4\nv_cndmask_b32 v8, 0, v8, vcc\nv_mul_f32 v9, v8, v9")
    for c in red8:
        A(f"v_add_f32_dpp v9, v9, v9 {c} row_mask:0xf bank_mask:0xf")
    A("v_rcp_f32 v9, v9\nv_mul_f32 v8, v8, v9\nv_cvt_pk_bf16_f32 v8, v8, v8")
    A("v_lshrrev_b32 v3, 4, v0\nv_mul_u32_u24 v9, 6, v7\nv_sub_u32 v3, v3, v9\nv_lshlrev_b32 v9, 3, v7")
    for k in range(3):
        A(f"v_add_u32 v5, {4*k}, v3\nv_min_u32 v5, 6, v5\nv_add_u32 v5, v5, v9\nv_lshlrev_b32 v5, 2, v5")
        A(f"ds_bpermute_b32 v{10+k}, v5, v8\nds_bpermute_b32 v{13+k}, v5, v8 offset:64")
    A("s_waitcnt lgkmcnt(0)")
    for k in range(6):
        for i in range(4):
            A(f"v_and_b32 v{WT+4*k+i}, v{10+k}, v{MASK+i}")
    wave_head("s29")
    A(f"s_mul_i32 s29, s29, 6144\ns_add_u32 s29, s29, {WS_OB:#x}\ns_add_u32 s42, s29, 4096")
    A("s_lshr_b32 s24, s74, 3\ns_lshl_b32 s24, s24, 2\ns_add_u32 s24, s24, s3")
    A(f"s_lshl_b32 s36, s24, {RC}\ns_add_u32 s36, s36, {WS_YB:#x}\ns_and_b32 s37, s74, 7\ns_lshl_b32 s37, s37, 7\ns_add_u32 s37, s37, s36")
    A(f"s_lshl_b32 s38, s3, {RC}\ns_andn2_b32 s25, s74, 7\ns_lshl_b32 s25, s25, 4\ns_add_u32 s38, s38, s25\ns_add_u32 s38, s38, {WS_EL:#x}\ns_lshl_b32 s39, s24, 5\ns_add_u32 s39, s39, 1024")

    def helper():
        if not o["hlp"]:
            return
        assert 36 + o["h_lq"] + o["h_u"] > 43
        A("s_cmp_lg_u32 s3, 0\ns_cbranch_scc1 L_H_x")
        A("s_lshr_b32 s24, s74, 5\ns_mul_i32 s25, s24, 3\ns_add_u32 s34, s34, s25")
        A("s_lshl_b32 s24, s24, 6\ns_add_u32 s24, s24, s26\ns_lshl_b32 s24, s24, 20")
        srd(4, P_V, 1 << 20, add="s24")
        A("s_add_u32 s8, s4, 0x2000000\ns_addc_u32 s9, s5, 0\ns_mov_b32 s10, s6\ns_mov_b32 s11, 0x20000")
        lgc = int(math.log2(chunk))
        A(f"v_lshrrev_b32 v3, {4+lgc}, v0\nv_mul_u32_u24 v16, {6144*chunk}, v3\nv_and_b32 v3, {16*chunk-1}, v0\nv_lshl_add_u32 v16, v3, 7, v16")
        A(f"v_lshlrev_b32 v17, {RC}, v0\nv_mov_b32 v18, 0")
        U = o["h_u"]
        NX = (27, 28, 32)
        A(f"s_mov_b32 s27, 43\ns_mov_b32 s28, 43\ns_mov_b32 s32, 43\ns_mov_b32 s75, 1024")
        A("L_H:")
        A("s_sub_u32 s75, s75, 1\ns_cmp_eq_u32 s75, 0\ns_cbranch_scc1 L_H_x")
        A("s_mov_b64 exec, 0xffffff\nbuffer_load_dword v18, v17, s[12:15], s35 offen offset:64 sc1\ns_mov_b64 exec, -1")
        A("s_waitcnt vmcnt(0)\nv_max_i32 v19, 0, v18")
        A("v_add_u32_dpp v3, v19, v19 row_ror:8 row_mask:0xf bank_mask:0xf")
        for c in ("row_ror:4", "row_ror:2", "row_ror:1"):
            A(f"v_add_u32_dpp v3, v3, v3 {c} row_mask:0xf bank_mask:0xf")
        A("v_readlane_b32 s70, v3, 0\nv_readlane_b32 s24, v3, 16\ns_add_u32 s70, s70, s24")
        for t in range(3):
            A(f"s_add_u32 s24, s34, {t}\nv_readlane_b32 s24, v19, s24")
            A(f"s_sub_u32 s25, 43, s{NX[t]}\ns_mul_i32 s25, s25, {o['h_cw']}\ns_mul_i32 s{64+t}, s24, 24\ns_add_u32 s{64+t}, s{64+t}, s25")
            A(f"s_add_u32 s24, s24, {o['h_lq'] + U}\ns_cmp_gt_u32 s24, s{NX[t]}\ns_cselect_b32 s{64+t}, 0xffff, s{64+t}")
        A("s_min_u32 s71, s64, s65\ns_min_u32 s71, s71, s66\ns_cmp_eq_u32 s71, 0xffff\ns_cbranch_scc1 L_H_x")
        A(f"s_add_u32 s24, s71, {o['h_th']}\ns_cmp_lt_i32 s24, s70\ns_cbranch_scc1 L_H_go")
        A(f"s_sleep {o['h_sl']}\ns_branch L_H")
        A("L_H_go:")
        for t in range(3):
            if t < 2:
                A(f"s_cmp_lg_u32 s71, s{64+t}\ns_cbranch_scc1 L_H_n{t}")
            A(f"s_sub_u32 s{NX[t]}, s{NX[t]}, {U}\ns_mul_i32 s24, s{NX[t]}, {4*6144}\ns_add_u32 s24, s24, {2048*chunk*t}")
            if chunk == 4:
                A(f"s_cmp_eq_u32 s{NX[t]}, {43-U}\ns_cselect_b32 s25, {2048*t}, 0")
            if t < 2:
                A(f"s_branch L_H_ld\nL_H_n{t}:")
        A("L_H_ld:")
        for k in range(U):
            if chunk == 4 and k == U - 1:
                A("s_sub_u32 s24, s24, s25")
            A("buffer_load_dword v5, v16, s[4:7], s24 offen\nbuffer_load_dword v5, v16, s[8:11], s24 offen")
            if k + 1 < U:
                A(f"s_add_u32 s24, s24, {4*6144}")
        A("s_branch L_H")
        A("L_H_x:")
        if o["hb"]:
            A("s_barrier")

    def p_loads():
        for k in range(6):
            A(f"buffer_load_dwordx4 {vr(OX+4*k)}, v2, s[12:15], {'s29' if k < 4 else 's42'} offen offset:{1024*(k & 3)} sc1")
    A(f"s_mov_b32 s30, {WS_SIZE:#x}\ns_mov_b32 s31, s30\ns_mov_b32 s40, s30\ns_mov_b32 s41, s30\ns_mov_b32 s33, 0")
    A("s_branch L_P_go\nL_P:\ns_mov_b64 s[30:31], s[36:37]\ns_mov_b64 s[40:41], s[38:39]\ns_mov_b32 s33, 447")
    helper()
    if 'e' in o['drop']:
        A("s_endpgm")
    poll_data(p_loads, OX, 24, 0)
    stamp(9)
    A("L_P_go:")
    if o["eb"] == 2:
        A("s_barrier")
        elect("s40")
    for k in (0, 3, 1, 4, 2, 5):
        D = 12 + 4 * (k // 3)
        A(f"v_mfma_f32_16x16x32_bf16 {vr(D)}, {vr(OX+4*k)}, {vr(WT+4*k)}, {vr(D) if k % 3 else 0}")
    if o["eb"] == 1:
        A("s_barrier")
        elect("s40")
    A("v_cvt_pk_bf16_f32 v4, v12, v13\nv_cvt_pk_bf16_f32 v5, v14, v15\nds_write_b64 v24, v[4:5]")
    A(f"v_cvt_pk_bf16_f32 v6, v16, v17\nv_cvt_pk_bf16_f32 v7, v18, v19\nds_write_b64 v24, v[6:7] offset:{2*OROW}")
    A("s_waitcnt lgkmcnt(0)\ns_barrier")
    for n in range(16):
        A(f"ds_read_b128 {vr(OA_+4*n)}, v25 offset:{(n >> 2)*4*OROW + 64*(n & 3)}")
        if n == 7 and not o["eb"]:
            elect("s40")
        if n >= 8:
            A("s_waitcnt lgkmcnt(8)")
            A(f"v_mfma_f32_16x16x32_bf16 v[12:15], {vr(OA_+4*(n-8))}, {ar(128+4*(n-8))}, {'v[12:15]' if n > 8 else 0}")
    for n in range(8, 16):
        A(f"s_waitcnt lgkmcnt({15-n})")
        A(f"v_mfma_f32_16x16x32_bf16 v[12:15], {vr(OA_+4*n)}, {ar(128+4*n)}, v[12:15]")
    A("v_cvt_pk_bf16_f32 v4, v12, v13\nv_cvt_pk_bf16_f32 v5, v14, v15\ns_mov_b64 exec, 0xffff")
    A("buffer_store_dwordx2 v[4:5], v26, s[12:15], s31 offen sc1\ns_mov_b64 exec, -1")
    A("v_mov_b32 v16, v4\nv_mov_b32 v17, v5\nv_mov_b32 v18, v4\nv_mov_b32 v19, v5")
    for i in range(4):
        A(f"v_mov_b32_dpp v{16+i}, v{4 + (i & 1)} row_ror:8 row_mask:0xf bank_mask:{'0xc' if i < 2 else '0x3'}")
    A("s_waitcnt vmcnt(1)\nv_readfirstlane_b32 s24, v83\ns_cmp_eq_u32 s24, s33\ns_cbranch_scc1 L_P_f")
    A("s_waitcnt vmcnt(0)\nv_readfirstlane_b32 s24, v83\ns_cmp_lg_u32 s24, s33\ns_cbranch_scc1 L_P_n\nL_P_f:")
    A("s_mov_b64 exec, s[44:45]")
    poll_data(lambda: A("buffer_load_dwordx4 v[16:19], v2, s[12:15], s30 offen sc1"), 16, 4, 0)
    for i in range(4):
        A(f"v_lshlrev_b32 v{56+2*i}, 16, v{16+i}\nv_and_b32 v{57+2*i}, 0xffff0000, v{16+i}")
    for a in (56, 57, 60, 61):
        A(f"v_permlane32_swap_b32 v{a}, v{a+2}")
    for a in (56, 57, 60, 61):
        A(f"v_add_f32 v{a}, v{a}, v{a+2}")
    A("v_permlane16_swap_b32 v56, v57\nv_permlane16_swap_b32 v60, v61\nv_add_f32 v56, v56, v57\nv_add_f32 v60, v60, v61")
    A("v_add_f32_dpp v4, v56, v56 row_ror:8 row_mask:0xf bank_mask:0x3\nv_add_f32_dpp v4, v60, v60 row_ror:8 row_mask:0xf bank_mask:0xc")
    A("v_cvt_pk_bf16_f32 v4, v4, v4")
    A("buffer_store_short v4, v28, s[20:23], s41 offen")
    A("L_P_n:\ns_cmp_lg_u32 s33, 0\ns_cbranch_scc1 L_P_x\ns_barrier\ns_branch L_P\nL_P_x:")
    stamp(11)
    stamps_out()
    A("L_end:")
    A("s_endpgm")

    ST, SS, PP, TR, ACC = 32, 64, 72, 192, 128
    A("L_C:")
    A("s_cmp_lg_u32 s3, 0\ns_cbranch_scc1 L_C_q")
    A("v_lshrrev_b32 v3, 4, v0\nv_and_b32 v4, 3, v0\nv_lshlrev_b32 v5, 6, v3\nv_lshl_add_u32 v5, v4, 4, v5")
    A("v_bfe_u32 v4, v0, 2, 2\nv_lshl_add_u32 v5, v4, 8, v5")
    A(f"s_lshl_b32 s24, s26, {RB}\ns_add_u32 s24, s24, {WS_QB:#x}")
    A(f"buffer_store_dwordx4 v[8:11], v5, s[12:15], s24 offen sc1")
    A("L_C_q:")
    signal(C_Q, 64, also=C_QB)
    stamp(5)
    bwo_stage()
    A("s_waitcnt vmcnt(0)\ns_barrier")
    bwo_transpose()
    LG = int(math.log2(G))
    RS = 1024 * NS
    NR = 16
    A(f"s_and_b32 s70, s72, {NS-1}\ns_lshr_b32 s71, s72, {3+LG}")
    A(f"s_bfe_u32 s24, s72, {LNS | ((3 - LNS) << 16):#x}\ns_lshl_b32 s24, s24, {LNS-1}\ns_add_u32 s71, s71, s24")
    A(f"s_bfe_u32 s75, s72, {3 | (LG << 16):#x}")
    A("s_lshl_b32 s30, s71, 22")
    srd(4, P_CKV, 1 << 22, add="s30")
    A(f"s_mul_i32 s32, s3, {NR*RS}\ns_lshl_b32 s24, s70, 10\ns_add_u32 s32, s32, s24\ns_mul_i32 s34, s3, {NR*CROW}")

    def c_row(r):
        A("buffer_load_dwordx4 v2, s[4:7], s32 offen lds")
        A(f"s_add_u32 m0, m0, {CROW}\ns_add_u32 s32, s32, {RS if r < NR - 1 else (3*NR + 1)*RS}")

    A("s_waitcnt lgkmcnt(0)\ns_barrier")
    A("s_mov_b32 m0, s34")
    for r in range(NR):
        c_row(r)
    A("s_lshr_b32 s28, s3, 1\ns_and_b32 s29, s3, 1")
    A(f"v_and_b32 v3, 15, v0\nv_lshrrev_b32 v4, 4, v0\nv_mul_u32_u24 v19, {CROW}, v3\nv_lshl_add_u32 v19, v4, 4, v19")
    A(f"v_lshrrev_b32 v5, 2, v0\nv_mul_u32_u24 v20, {CROW}, v5\nv_and_b32 v5, 3, v0\nv_lshl_add_u32 v20, v5, 3, v20")
    A("s_lshl_b32 s24, s29, 9\nv_add_u32 v20, s24, v20")
    A(f"v_and_b32 v3, {HN-1}, v0\nv_mul_u32_u24 v18, {CROW}, v3\nv_lshl_add_u32 v18, v4, 4, v18\nv_add_u32 v18, {3*CTILE}, v18")
    A(f"s_mul_i32 s24, s28, {CTILE}\nv_add_u32 v19, s24, v19\nv_add_u32 v20, s24, v20")
    for r in range(64):
        A(f"v_mov_b32 v{ACC+r}, 0")
    A("v_mov_b32 v22, 0xff800000\nv_mov_b32 v23, 0")
    await_flag(C_Q)
    stamp(2)
    NQ = HN // 4
    A(f"s_lshl_b32 s24, s71, {RQ+5}\ns_mul_i32 s25, s3, {NQ << RQ}\ns_add_u32 s24, s24, s25\ns_add_u32 s24, s24, {WS_QA:#x}")
    A(f"s_mul_i32 s25, s75, {HN << RQ}\ns_add_u32 s24, s24, s25")
    for r in range(0 if 'Q' in o['drop'] else NQ):
        A(f"buffer_load_dwordx4 {vr(ST+4*r)}, v2, s[12:15], s24 offen sc1\ns_add_u32 s24, s24, {1 << RQ}")
    A(f"s_mul_i32 s24, s3, {NQ*CROW}\ns_add_u32 s24, s24, {3*CTILE}\nv_add_u32 v3, s24, v2")
    for r in range(NQ):
        A(f"s_waitcnt vmcnt({NQ-1-r})\nds_write_b128 v3, {vr(ST+4*r)} offset:{r*CROW}")
    A("s_waitcnt lgkmcnt(0)\ns_barrier")
    for k in range(16):
        A(f"ds_read_b128 {ar(4*k)}, v18 offset:{64*k}")
    publish_xcc()
    STEP = 2 * CTILE
    A(f"s_mov_b32 s27, 0\ns_mov_b32 s33, {4*CTILE - STEP}\ns_mov_b32 s35, 0")
    A("s_waitcnt lgkmcnt(0)")
    A("L_CT:")
    A("s_waitcnt vmcnt(0)\ns_barrier")
    A("v_add_u32 v24, s35, v19\nv_add_u32 v25, s35, v20")

    def qk_read(n):
        A(f"ds_read_b128 {vr(ST+4*(n & 7))}, v24 offset:{64*(n >> 1) + 16*CROW*(n & 1)}")
    for n in range(7):
        qk_read(n)
    A("s_add_u32 m0, s33, s34")
    A(f"s_mov_b32 s33, s35\ns_add_u32 s35, s35, {STEP}\ns_cmp_eq_u32 s35, {4*CTILE}\ns_cselect_b32 s35, 0, s35")
    trs = [f"ds_read_b64_tr_b16 {vr(TR+4*ct+2*z, 2)}, v25 offset:{16*z*CROW + 32*ct}" for ct in range(16) for z in range(2)]
    for n in range(32):
        D = SS + 4 * (n & 1)
        A("s_waitcnt lgkmcnt(6)")
        A(f"v_mfma_f32_16x16x32_bf16 {vr(D)}, {vr(ST+4*(n & 7))}, {ar(4*(n >> 1))}, {'0' if n < 2 else vr(D)}")
        if n + 7 < 32:
            qk_read(n + 7)
        else:
            A(trs.pop(0))
        if n % 2 == 0:
            c_row(n // 2)
    for _ in range(7):
        A(trs.pop(0))
    sm = [f"v_max3_f32 v3, v{SS}, v{SS+1}, v22"]
    sm += [f"v_max3_f32 v3, v3, v{SS+r}, v{SS+r+1}" for r in range(2, 8, 2)]
    sm += ["v_mov_b32 v4, v3", "v_permlane32_swap_b32 v3, v4", "v_max_f32 v3, v3, v4"]
    sm += ["v_mov_b32 v4, v3", "v_permlane16_swap_b32 v3, v4", "v_max_f32 v3, v3, v4"]
    sm += ["v_sub_f32 v4, v22, v3", "v_exp_f32 v4, v4", "v_mov_b32 v22, v3"]
    sm += [f"v_sub_f32 v{SS+r}, v{SS+r}, v3" for r in range(8)]
    sm += [f"v_exp_f32 v{SS+r}, v{SS+r}" for r in range(8)]
    sm += [f"v_cvt_pk_bf16_f32 v{PP+i}, v{SS+2*i}, v{SS+2*i+1}" for i in range(4)]
    for n, ins in enumerate(sm):
        A(ins)
        if trs and n >= 4:
            A(trs.pop(0))
    assert not trs
    ls = [f"v_fma_f32 v23, v23, v4, v{SS}"] + [f"v_add_f32 v23, v23, v{SS+r}" for r in range(1, 8)]

    def rescale(ct):
        for r in range(0, 4, 2):
            A(f"v_pk_mul_f32 {vr(ACC+4*ct+r,2)}, {vr(ACC+4*ct+r,2)}, v[4:5] op_sel_hi:[1,0]")
    rescale(0)
    rescale(1)
    A("s_waitcnt lgkmcnt(0)")
    for ct in range(16):
        A(f"v_mfma_f32_16x16x32_bf16 {vr(ACC+4*ct)}, {vr(TR+4*ct)}, {vr(PP)}, {vr(ACC+4*ct)}")
        if ct + 2 < 16:
            rescale(ct + 2)
    for ins in ls:
        A(ins)
    A(f"s_add_u32 s27, s27, 1\ns_cmp_lt_u32 s27, {8*G}\ns_cbranch_scc1 L_CT")
    stamp(3)
    A("s_waitcnt vmcnt(0)\ns_barrier")
    A("v_mov_b32 v4, v23\nv_permlane32_swap_b32 v23, v4\nv_add_f32 v23, v23, v4")
    A("v_mov_b32 v4, v23\nv_permlane16_swap_b32 v23, v4\nv_add_f32 v23, v23, v4")
    XM, XA_, XT = 0, 4096, 40960
    A(f"s_lshl_b32 s24, s3, 9\nv_lshl_add_u32 v3, v0, 3, s24\nds_write_b64 v3, v[22:23] offset:{XM}")
    A("v_xor_b32 v3, 0x400, v3\ns_waitcnt lgkmcnt(0)\ns_barrier")
    A(f"ds_read_b64 v[6:7], v3 offset:{XM}\ns_waitcnt lgkmcnt(0)")
    A("v_max_f32 v3, v22, v6\nv_sub_f32 v4, v22, v3\nv_sub_f32 v6, v6, v3\nv_exp_f32 v4, v4\nv_exp_f32 v6, v6")
    A("v_mov_b32 v22, v3\nv_mul_f32 v23, v23, v4\nv_fmac_f32 v23, v7, v6")
    A(f"v_and_b32 v3, 15, v0\nv_lshlrev_b32 v5, 3, v3")
    A(f"s_lshl_b32 s24, s71, {LNS}\ns_add_u32 s31, s24, s70\ns_lshl_b32 s24, s31, 8\ns_mul_i32 s25, s75, {HN*8}\ns_add_u32 s24, s24, s25\ns_add_u32 s24, s24, {WS_PML:#x}")
    A("s_cmp_lg_u32 s3, 0\ns_cbranch_scc1 L_C_ml")
    if 'm' not in o['drop']:
        A(f"s_mov_b64 exec, {(1 << HN) - 1:#x}\nbuffer_store_dwordx2 v[22:23], v5, s[12:15], s24 offen sc1\ns_mov_b64 exec, -1")
    A("L_C_ml:")
    for r in range(0, 64, 2):
        A(f"v_pk_mul_f32 {vr(ACC+r,2)}, {vr(ACC+r,2)}, v[4:5] op_sel_hi:[1,0]")
    A(f"s_lshl_b32 s24, s3, 13\ns_add_u32 s24, s24, {XA_}\nv_add_u32 v6, s24, v2")
    A(f"s_xor_b32 s24, s3, 2\ns_lshl_b32 s24, s24, 13\ns_add_u32 s24, s24, {XA_}\nv_add_u32 v7, s24, v2")
    A("s_cmp_lg_u32 s28, 0\ns_cbranch_scc1 L_C_x1")
    for k in range(8):
        A(f"ds_write_b128 v6, {vr(ACC+32+4*k)} offset:{1024*k}")
    A("s_branch L_C_x2\nL_C_x1:")
    for k in range(8):
        A(f"ds_write_b128 v6, {vr(ACC+4*k)} offset:{1024*k}")
    A("s_waitcnt lgkmcnt(0)")
    for r in range(32):
        A(f"v_mov_b32 v{ACC+r}, v{ACC+32+r}")
    A("L_C_x2:\ns_waitcnt lgkmcnt(0)\ns_barrier")
    for k in range(8):
        A(f"ds_read_b128 {vr(TR+4*k)}, v7 offset:{1024*k}")
    TROW = 272
    A(f"v_lshrrev_b32 v4, 4, v0\nv_mul_u32_u24 v3, {TROW}, v3\nv_lshl_add_u32 v3, v4, 3, v3")
    A(f"s_mul_i32 s24, s3, {16*TROW}\ns_add_u32 s24, s24, {XT}\nv_add_u32 v3, s24, v3")
    for k in range(8):
        r = ACC + 4 * k
        d = ST + 2 * k
        A(f"s_waitcnt lgkmcnt(7)")
        for e in range(4):
            A(f"v_add_f32 v{r+e}, v{r+e}, v{TR+4*k+e}")
        A(f"v_cvt_pk_bf16_f32 v{d}, v{r}, v{r+1}\nv_cvt_pk_bf16_f32 v{d+1}, v{r+2}, v{r+3}")
        A(f"ds_write_b64 v3, {vr(d,2)} offset:{32*k}")
    A(f"v_and_b32 v5, 15, v0\nv_mul_u32_u24 v3, {TROW}, v4\nv_lshl_add_u32 v3, v5, 4, v3\nv_add_u32 v3, s24, v3")
    HS, US = RP, RP + 5
    A(f"v_lshlrev_b32 v4, {HS}, v4\nv_lshl_add_u32 v4, v5, 4, v4")
    A("s_waitcnt lgkmcnt(0)")
    for k in range(NQ):
        A(f"ds_read_b128 {vr(SS+4*k)}, v3 offset:{4*k*TROW}")
    A(f"s_lshl_b32 s24, s31, {US}\ns_lshl_b32 s25, s29, 9\ns_add_u32 s24, s24, s25\ns_lshl_b32 s25, s28, 8\ns_add_u32 s24, s24, s25")
    A(f"s_mul_i32 s25, s75, {HN << HS}\ns_add_u32 s24, s24, s25\ns_add_u32 s24, s24, {WS_PART:#x}")
    for k in range(NQ):
        A(f"s_waitcnt lgkmcnt({NQ-1-k})")
        if 'p' not in o['drop']:
            A(f"buffer_store_dwordx4 {vr(SS+4*k)}, v4, s[12:15], s24 offen sc1 nt")
        A(f"s_add_u32 s24, s24, {4 << HS}")
    signal(C_P, 32, only_w=True)
    stamp(4)
    A("s_branch L_R")
    A("L_last:")
    A("s_endpgm")

    ref = open(os.path.join(os.path.dirname(os.path.abspath(__file__)), "..", NAME + ".s.ref")).read().splitlines()
    head = [l for l in ref if l.startswith(";") and "@launch" not in l]
    head.append(f"; @launch grid=(256,1,1) block=(256,1,1) lds={LDS_BYTES}")
    pre = f'.amdgcn_target "amdgcn-amd-amdhsa--gfx950"\n.text\n.globl {NAME}_kernel\n.p2align 8\n.type {NAME}_kernel,@function\n'
    post = f""".section .rodata,"a"
.p2align 6
.amdhsa_kernel {NAME}_kernel
  .amdhsa_next_free_vgpr {448 + 64 * max(0, NB - 2)}
  .amdhsa_next_free_sgpr 102
  .amdhsa_accum_offset 256
  .amdhsa_group_segment_fixed_size 0
  .amdhsa_kernarg_size 112
  .amdhsa_user_sgpr_count 2
  .amdhsa_user_sgpr_kernarg_segment_ptr 1
  .amdhsa_system_sgpr_workgroup_id_x 1
  .amdhsa_float_denorm_mode_32 3
.end_amdhsa_kernel
"""
    return "\n".join(head) + "\n" + pre + A.text() + post


if __name__ == "__main__":
    kw = {}
    out = None
    for a in sys.argv[1:]:
        if "=" in a:
            k, v = a.split("=", 1)
            kw[k] = int(v) if v.lstrip("-").isdigit() else v
        else:
            out = a
    s = gen(**kw)
    if out:
        open(out, "w").write(s)
    else:
        sys.stdout.write(s)
```

```python
import math
import os
import struct
import sys

sys.path.insert(0, os.path.dirname(os.path.abspath(__file__)))
from asmlib import Asm

NAME = "concat_heads__compressed_kv_cla__mha_block_cached__decode"

DEF = dict(
    chunk=1,
    nbank=1,
    qa=16, qb=28,
    pf="bqokuvc",
    fast=2, pdep=6,
    xi_it=8, c_it=7, dfr=13,
    hlp=1, h_lq=6, h_u=2, h_cw=17, h_th=36, h_sl=4, h_it=1,
    lead=12, hg=2, cpf=2, xw=1, eb=1, hb=1, cq=8, pk=0, rc=2, rb=2, rq=2, ry=2, rp=1, ys='sc1 nt', yl='sc1 nt',
    sl_cnt=4, sl_ml=64,
    stamps=0, trace=0, drop="", probe=None, vpad=0, remap=0,
)

WS_QA, WS_YA, WS_PML, WS_QB, WS_FLAG, WS_PART = 0x0, 0x80000, 0x120000, 0x140000, 0x170000, 0x400000
WS_OB, WS_BML = 0x180000, 0x1c0000
WS_STAMP = 0x300000
WS_SIZE = 0x600000
C_Q, C_P, C_QB = 0, 4, 128

WROW = 1056
OROW = 320
L_MISC = 128 * WROW
L_QP, L_OA, L_CX = L_MISC, L_MISC + 8192, L_MISC + 10240
LDS_BYTES = L_MISC + 14336
CROW = WROW
CTILE = 32 * CROW

SCALE = struct.unpack("<I", struct.pack("<f", math.log2(math.e) / math.sqrt(128.0)))[0]
SPIN = 1 << 18

P_AX, P_CKV, P_AWQ, P_AWUK, P_AWUV, P_AWO, P_BX, P_K, P_V, P_BWQ, P_BWO, P_OUT, P_DBG, P_WS = range(36, 64, 2)
DPP_ID = "quad_perm:[0,1,2,3]"


def gen(**kw):
    o = dict(DEF)
    o.update(kw)
    A = Asm()
    chunk = o["chunk"]
    G = o["hg"]
    NS, HN = 8 // G, 32 // G
    LNS = int(math.log2(NS))
    RQ, RY, RP = 10 + o["rq"], 10 + o["ry"], 10 + o["rp"]
    RC, RB = 10 + o["rc"], 10 + o["rb"]
    WS_XI, WS_ELA, WS_EL, WS_YB, WS_CLR_END = (WS_BML + (r << RC) for r in (24, 25, 26, 30, 62))
    uid = [0]
    role = ['B']

    def vr(b, n=4):
        return f"v[{b}:{b+n-1}]"

    def ar(b, n=4):
        return f"a[{b}:{b+n-1}]"

    def srd(s, ptr, size, add=None):
        if add is None:
            A(f"s_mov_b32 s{s}, s{ptr}\ns_mov_b32 s{s+1}, s{ptr+1}")
        else:
            A(f"s_add_u32 s{s}, s{ptr}, {add}\ns_addc_u32 s{s+1}, s{ptr+1}, 0")
        A(f"s_mov_b32 s{s+2}, {size:#x}\ns_mov_b32 s{s+3}, 0x20000")

    def stamp(k):
        if o["probe"] and str(k) not in (o["probe"].split(",")[0].lstrip("m"), o["probe"].split(",")[2]):
            return
        if o["stamps"]:
            A(f"s_memrealtime s[{76+2*k}:{77+2*k}]\ns_waitcnt lgkmcnt(0)")

    def trace(base):
        if o["trace"]:
            A(f"s_memrealtime s[100:101]\ns_add_u32 m0, s27, {base}\ns_waitcnt lgkmcnt(0)\nv_writelane_b32 v59, s100, m0")

    def trace_out():
        if o["trace"]:
            A(f"s_mov_b64 exec, -1\ns_lshl_b32 s24, s2, 2\ns_add_u32 s24, s24, s3\ns_lshl_b32 s24, s24, 8\ns_add_u32 s24, s24, {WS_STAMP + 0x10000:#x}")
            A("v_lshlrev_b32 v1, 2, v0\nbuffer_store_dword v59, v1, s[12:15], s24 offen")

    def probe_out():
        ka, ra, kb, rb, mult = o["probe"].split(",")
        mean = ka.startswith("m")
        ka = ka.lstrip("m")
        sreg = lambda k: 100 if k == "e" else 76 + 2 * int(k)
        uid[0] += 1
        u = uid[0]
        A(f"s_cmp_lg_u32 s3, 0\ns_cbranch_scc1 L_pr{u}")
        A("s_mov_b64 exec, 1")
        for k, rs, off, neg in ((ka, ra, 16, False), (kb, rb, 20, True)):
            if role[0] == "B":
                if "B" not in rs:
                    continue
                A(f"s_not_b32 s24, s{sreg(k)}" if neg else f"s_mov_b32 s24, s{sreg(k)}")
                if mean and not neg:
                    A("s_sub_u32 s24, s24, s100")
            else:
                A(f"s_not_b32 s24, s{sreg(k)}" if neg else f"s_mov_b32 s24, s{sreg(k)}")
                A("s_cmp_lt_u32 s74, 32")
                A(f"s_cselect_b32 s24, {'s24' if 'W' in rs else 0}, {'s24' if 'C' in rs else 0}")
            dig = [int(c) for c in rs if c.isdigit()]
            if dig:
                A(f"s_and_b32 s25, s2, 7\ns_bitcmp1_b32 {sum(1 << d for d in dig)}, s25\ns_cselect_b32 s24, s24, 0")
            A(f"v_mov_b32 v1, s24\nbuffer_atomic_{'add' if mean and not neg else 'umax'} v1, off, s[16:19], 0 offset:{off}\ns_waitcnt vmcnt(0)")
        A("v_mov_b32 v1, 1\nbuffer_atomic_add v1, off, s[16:19], 0 offset:24 sc0\ns_waitcnt vmcnt(0)")
        A(f"v_readfirstlane_b32 s24, v1\ns_cmp_lg_u32 s24, 255\ns_cbranch_scc1 L_pr{u}")
        A("buffer_load_dwordx2 v[4:5], off, s[16:19], 0 offset:16 sc1\ns_waitcnt vmcnt(0)")
        A("v_readfirstlane_b32 s24, v4\nv_readfirstlane_b32 s25, v5\ns_not_b32 s25, s25")
        A("s_mul_i32 s24, s24, 341\ns_lshr_b32 s24, s24, 16" if mean else "s_sub_u32 s24, s24, s25")
        A("s_min_u32 s24, s24, 20000")
        A("v_mov_b32 v1, s24\nbuffer_store_dword v1, off, s[16:19], 0 offset:28")
        if mult.startswith("T"):
            T, m = (mult[1:].split("x") + ["0"])[:2]
            A(f"s_mov_b32 s28, s25\ns_mul_i32 s24, s24, {m}\ns_add_u32 s24, s24, {T}")
        else:
            A(f"s_mul_i32 s24, s24, {mult}\ns_memrealtime s[28:29]\ns_waitcnt lgkmcnt(0)")
        A(f"L_pr{u}_w:\ns_memrealtime s[30:31]\ns_waitcnt lgkmcnt(0)\ns_sub_u32 s25, s30, s28\ns_cmp_lt_u32 s25, s24\ns_cbranch_scc1 L_pr{u}_w")
        A(f"L_pr{u}:")

    def stamps_out():
        if o["probe"]:
            probe_out()
        elif o["stamps"]:
            A("s_lshl_b32 s24, s2, 2\ns_add_u32 s24, s24, s3\ns_lshl_b32 s24, s24, 6")
            A(f"s_add_u32 s24, s24, {WS_STAMP:#x}")
            A("s_mov_b64 exec, 1")
            for k in range(12):
                A(f"v_mov_b32 v1, s{76+2*k}")
                A(f"buffer_store_dword v1, off, s[12:15], s24 offset:{4*k}")
            A("s_getreg_b32 s25, hwreg(HW_REG_XCC_ID, 0, 4)\nv_mov_b32 v1, s25")
            A("buffer_store_dword v1, off, s[12:15], s24 offset:48")
            A("s_getreg_b32 s25, hwreg(HW_REG_HW_ID)\nv_mov_b32 v1, s25")
            A("buffer_store_dword v1, off, s[12:15], s24 offset:52")

    def signal(cnt, n, also=None, only_w=False):
        uid[0] += 1
        u = uid[0]
        A("s_waitcnt vmcnt(0)\ns_barrier")
        A(f"s_cmp_lg_u32 s3, 0\ns_cbranch_scc1 L_sig{u}")
        A("s_mov_b64 exec, 1\nv_mov_b32 v3, 1")
        if also is not None:
            A(f"v_mov_b32 v4, 1\nbuffer_atomic_add v4, off, s[16:19], 0 offset:{also}")
        A(f"buffer_atomic_add v3, off, s[16:19], 0 offset:{cnt} sc0")
        A("s_waitcnt vmcnt(0)\nv_readfirstlane_b32 s24, v3\ns_mov_b64 exec, -1")
        A(f"s_and_b32 s24, s24, {n-1}\ns_cmp_lg_u32 s24, {n-1}\ns_cbranch_scc1 L_sig{u}")
        A(f"v_lshlrev_b32 v4, 7, v0\nv_mov_b32 v3, 1\ns_mov_b32 s24, {WS_FLAG:#x}")
        if only_w:
            A("s_mov_b32 exec_hi, 0")
        A(f"buffer_store_dword v3, v4, s[12:15], s24 offen offset:{cnt} sc1")
        if only_w:
            A("s_mov_b64 exec, -1")
        A(f"L_sig{u}:")

    def poll_word(load, v, val, done, sleep, cmp="eq"):
        uid[0] += 1
        u = uid[0]
        A(f"s_mov_b32 s24, {SPIN}\ns_mov_b64 exec, 1")
        A(f"L_aw{u}:")
        A(load)
        A(f"s_waitcnt vmcnt(0)\nv_readfirstlane_b32 s25, v{v}")
        A(f"s_cmp_{cmp}_u32 s25, {val}\ns_cbranch_scc1 {done}")
        A(f"s_sleep {sleep}\ns_sub_u32 s24, s24, 1\ns_cmp_lg_u32 s24, 0\ns_cbranch_scc1 L_aw{u}")

    def await_flag(cnt):
        uid[0] += 1
        x = f"L_awx{uid[0]}"
        A(f"s_cmp_lg_u32 s3, 0\ns_cbranch_scc1 {x}")
        poll_word(f"buffer_load_dword v1, off, s[12:15], s73 offset:{cnt} sc1", 1, 1, x, o["sl_cnt"])
        A(f"{x}:\ns_mov_b64 exec, -1\ns_barrier")

    def code_prefetch(lo, hi, back=True):
        if not o["cpf"]:
            return
        uid[0] += 1
        A(f"s_getpc_b64 s[24:25]\nL_pc{uid[0]}:")
        if back:
            A(f"s_sub_u32 s24, s24, L_pc{uid[0]}-{lo}\ns_subb_u32 s25, s25, 0")
        else:
            A(f"s_add_u32 s24, s24, {lo}-L_pc{uid[0]}\ns_addc_u32 s25, s25, 0")
        A(f"v_lshl_add_u32 v16, v0, 2, s3\nv_lshlrev_b32 v16, 7, v16\nv_min_u32 v16, {hi}-{lo}-4, v16")
        A("v_mov_b32 v17, s25\nv_add_co_u32 v16, vcc, s24, v16\nv_addc_co_u32 v17, vcc, 0, v17, vcc")
        A("global_load_dword v17, v[16:17], off")

    MASK, SELE, SELO = 20, 24, 28
    WB = 128

    def make_masks(sel=True):
        A("v_and_b32 v3, 1, v0\nv_lshlrev_b32 v3, 4, v3\nv_mov_b32 v4, 0xffff\nv_lshlrev_b32 v4, v3, v4")
        A("v_bfe_u32 v3, v0, 1, 2")
        for i in range(4):
            A(f"v_cmp_eq_u32 vcc, {i}, v3\nv_cndmask_b32 v{MASK+i}, 0, v4, vcc")
        if sel:
            A("v_mov_b32 v3, 0x0c0c0c0c\ns_mov_b32 s24, 0x01000100\ns_mov_b32 s25, 0x03020302")
            for i in range(4):
                A(f"v_bfi_b32 v{SELE+i}, v{MASK+i}, s24, v3\nv_bfi_b32 v{SELO+i}, v{MASK+i}, s25, v3")

    def gemv(xs, accs, wait=None, after=None):
        for j in range(32):
            sel = SELO if j & 1 else SELE
            for p, x in enumerate(xs):
                for i in range(4):
                    A(f"v_perm_b32 v{(8, 4)[p]+i}, v{x+j//2}, v{x+j//2}, v{sel+i}")
            if wait:
                wait(j)
            for p, acc in enumerate(accs):
                A(f"v_mfma_f32_16x16x32_bf16 {vr(acc)}, {vr(WB+4*j)}, {vr((8, 4)[p])}, {'0' if j == 0 else vr(acc)}")
            if after:
                after(j)

    def q_reduce(accs, rd, dst, tmp):
        A("v_lshrrev_b32 v3, 4, v0\nv_lshlrev_b32 v3, 7, v3\nv_and_b32 v4, 7, v0\nv_lshl_add_u32 v3, v4, 2, v3")
        A("v_bfe_u32 v4, v0, 3, 1\nv_lshl_add_u32 v3, v4, 9, v3")
        A(f"s_lshl_b32 s24, s3, 11\ns_add_u32 s24, s24, {L_QP}\nv_add_u32 v3, s24, v3")
        for p, acc in enumerate(accs):
            for r in range(4):
                A(f"ds_write_b32 v3, v{acc+r} offset:{p*1024 + r*32}")
        A("s_waitcnt lgkmcnt(0)\ns_barrier")
        for w in range(4):
            A(f"ds_read_b128 {vr(tmp+8*w)}, v{rd} offset:{w*2048}")
            A(f"ds_read_b128 {vr(tmp+8*w+4)}, v{rd} offset:{w*2048+16}")
        for w in range(1, 4):
            A(f"s_waitcnt lgkmcnt({6-2*w})")
            for e in range(8):
                A(f"v_add_f32 v{tmp+e}, v{tmp+e}, v{tmp+8*w+e}")
        for i in range(4):
            A(f"v_cvt_pk_bf16_f32 v{dst+i}, v{tmp+2*i}, v{tmp+2*i+1}")

    def diag_sum(D, y, t):
        src = D + y
        for a in range(4):
            if a != y:
                A(f"v_add_f32_dpp v{t}, v{D+a}, v{src} quad_perm:[{a},{a},{a},{a}] row_mask:0xf bank_mask:0xf")
                src = t

    def quad_masks():
        for y in range(1, 4):
            A(f"s_mov_b32 s{62+2*y}, {0x11111111 << y:#x}\ns_mov_b32 s{63+2*y}, {0x11111111 << y:#x}")

    def wave_reduce(op, v, sdst):
        for c in ("row_ror:8", "row_ror:4", "row_ror:2", "row_ror:1"):
            A(f"{op}_dpp v{v}, v{v}, v{v} {c} row_mask:0xf bank_mask:0xf")
        A(f"{op}_dpp v{v}, v{v}, v{v} row_bcast:15 row_mask:0xa bank_mask:0xf")
        A(f"{op}_dpp v{v}, v{v}, v{v} row_bcast:31 row_mask:0xc bank_mask:0xf")
        A(f"v_readlane_b32 s{sdst}, v{v}, 63")

    def wo_stage():
        A("s_mov_b32 s70, 0\nL_woA:")
        A("s_and_b32 s24, s70, 3\ns_lshl_b32 s24, s24, 1\ns_lshr_b32 s25, s70, 2\ns_or_b32 s24, s24, s25")
        A("s_lshl_b32 s24, s24, 10\ns_add_u32 s24, s24, s33")
        A(f"s_mul_i32 s25, s70, {4*WROW}\ns_add_u32 m0, s25, s34")
        for r in range(4):
            A("s_waitcnt vmcnt(24)")
            A("buffer_load_dwordx4 v2, s[8:11], s24 offen nt lds")
            if r < 3:
                A(f"s_add_u32 m0, m0, {WROW}\ns_add_u32 s24, s24, 8192")
        A("s_add_u32 s70, s70, 1\ns_cmp_lt_u32 s70, 8\ns_cbranch_scc1 L_woA")

    def wo_transpose():
        A(f"v_lshrrev_b32 v3, 2, v0\nv_mul_u32_u24 v3, {WROW}, v3\nv_and_b32 v4, 3, v0\nv_lshl_add_u32 v3, v4, 3, v3")
        A(f"s_lshl_b32 s24, s3, 8\nv_add_u32 v3, s24, v3\nv_add_u32 v4, {64*WROW}, v3")
        for T in range(8):
            for i in range(4):
                for z in range(2):
                    A(f"ds_read_b64_tr_b16 {ar((T*4+i)*4+2*z, 2)}, v{3 if i < 2 else 4} offset:{(32*(i&1)+16*z)*WROW + T*32}")

    def wave_head(dst):
        A(f"s_and_b32 s24, s3, 1\ns_lshl_b32 s24, s24, 1\ns_and_b32 {dst}, s3, 2\ns_lshl_b32 {dst}, {dst}, 3\ns_or_b32 {dst}, {dst}, s24")
        A(f"s_and_b32 s24, s26, 13\ns_or_b32 {dst}, {dst}, s24")

    def bwo_stage():
        srd(8, P_BWO, 4 << 20)
        wave_head("s25")
        A("s_lshl_b32 s25, s25, 17\ns_lshr_b32 s24, s74, 3\ns_lshl_b32 s24, s24, 7\ns_add_u32 s24, s24, s25")
        A("v_lshrrev_b32 v3, 4, v0\nv_lshlrev_b32 v3, 15, v3\nv_and_b32 v4, 8, v0\nv_lshl_add_u32 v3, v4, 10, v3\nv_and_b32 v4, 0x70, v2\nv_add_u32 v3, v3, v4")
        A(f"s_mul_i32 m0, s3, {16*WROW}")
        rows = [16 * (g & 1) + (g >> 1) + 2 * r for g in range(4) for r in range(4)]
        for k, row in enumerate(rows):
            A("buffer_load_dwordx4 v3, s[8:11], s24 offen nt lds")
            if k < 15:
                A(f"s_add_u32 m0, m0, {WROW}\ns_add_u32 s24, s24, {(rows[k+1] - row) * 1024}")

    def bwo_transpose():
        A(f"v_lshrrev_b32 v3, 2, v0\nv_mul_u32_u24 v3, {WROW}, v3\nv_and_b32 v4, 3, v0\nv_lshl_add_u32 v3, v4, 3, v3")
        A("s_lshl_b32 s24, s3, 5\nv_add_u32 v3, s24, v3")
        for hq in range(4):
            for i in range(4):
                for z in range(2):
                    A(f"ds_read_b64_tr_b16 {ar(128+(hq*4+i)*4+2*z, 2)}, v3 offset:{16*hq*WROW + 128*(2*i+z)}")

    def head_of():
        A("s_and_b32 s25, s26, 1\ns_lshl_b32 s25, s25, 1\ns_and_b32 s26, s26, 2\ns_lshl_b32 s26, s26, 3\ns_or_b32 s26, s26, s25\ns_or_b32 s26, s26, s70")

    def publish_xcc():
        uid[0] += 1
        A(f"s_cmp_lg_u32 s3, 0\ns_cbranch_scc1 L_xi{uid[0]}")
        A("s_and_b32 s24, s74, 7\ns_lshl_b32 s24, s24, 5\ns_lshr_b32 s25, s74, 3\ns_add_u32 s24, s24, s25\ns_lshl_b32 s24, s24, 2")
        A(f"s_add_u32 s24, s24, {WS_XI:#x}\ns_getreg_b32 s25, hwreg(HW_REG_XCC_ID, 0, 4)")
        A("s_mov_b64 exec, 1\nv_mov_b32 v3, s25\nbuffer_store_dword v3, off, s[12:15], s24 sc1\ns_mov_b64 exec, -1")
        A(f"L_xi{uid[0]}:")

    def near_far(store):
        uid[0] += 1
        A(f"s_cbranch_scc1 L_far{uid[0]}\n{store}\ns_branch L_near{uid[0]}\nL_far{uid[0]}:\n{store} sc1\nL_near{uid[0]}:")

    ONE, FX, FD = 84, 128, 92

    def finish_setup():
        srd(20, P_OUT, 8192)
        A("v_and_b32 v3, 3, v0\nv_lshlrev_b32 v80, 4, v3\nv_bfe_u32 v4, v0, 2, 1\nv_lshl_add_u32 v80, v4, 3, v80")
        A("v_lshrrev_b32 v5, 3, v0\nv_lshl_add_u32 v80, v5, 6, v80")
        A("v_lshlrev_b32 v82, 11, v3\nv_lshl_add_u32 v82, v4, 3, v82\nv_lshrrev_b32 v3, 4, v0\nv_lshl_add_u32 v82, v3, 4, v82")
        A("v_and_b32 v5, 1, v5\nv_lshl_add_u32 v82, v5, 6, v82")
        A(f"v_and_b32 v81, 0xf0, v2\nv_lshl_add_u32 v81, v3, {RY+2}, v81")
        A("v_cmp_eq_u32 vcc, 0, v5\nv_mov_b32 v3, 0x3f803f80\nv_cndmask_b32 v4, 0, v3, vcc\nv_xor_b32 v5, v3, v4")
        for i in range(4):
            A(f"v_and_b32 v{ONE+i}, v4, v{MASK+i}\nv_and_b32 v{ONE+4+i}, v5, v{MASK+i}")

    def elect(so):
        A(f"s_mov_b64 exec, 1\nv_mov_b32 v83, 64\nbuffer_atomic_add v83, off, s[12:15], {so} sc0\ns_mov_b64 exec, -1")

    def finish(base, out):
        uid[0] += 1
        u = uid[0]
        A(f"s_mov_b32 s25, {SPIN}\nL_fi{u}:\ns_mov_b32 s24, {base}")
        for k in range(8):
            for cb in range(2):
                A(f"buffer_load_dwordx4 {vr(FX+8*k+4*cb)}, v81, s[12:15], s24 offen offset:{256*cb} {o['yl']}")
            if k < 7:
                A(f"s_add_u32 s24, s24, {16 << RY}")
        for n in range(16):
            A(f"s_waitcnt vmcnt({15-n})")
            A(f"v_mfma_f32_16x16x32_bf16 {vr(FD)}, {vr(FX+4*n)}, {vr(ONE+4*(n & 1))}, {vr(FD) if n else 0}")
        A(f"v_cmp_u_f32 vcc, v{FD}, v{FD+1}\nv_cmp_u_f32 s[68:69], v{FD+2}, v{FD+3}")
        A(f"v_cvt_pk_bf16_f32 v4, v{FD}, v{FD+1}\nv_cvt_pk_bf16_f32 v5, v{FD+2}, v{FD+3}")
        A(f"s_or_b64 vcc, vcc, s[68:69]\ns_cbranch_scc0 L_fi{u}_x")
        A(f"v_max_u32 v3, v{FX}, v{FX+1}")
        for k in range(2, 64, 2):
            A(f"v_max3_u32 v3, v3, v{FX+k}, v{FX+k+1}")
        A(f"v_cmp_eq_u32 vcc, -1, v3\ns_sub_u32 s25, s25, 1\ns_cmp_eq_u32 s25, 0\ns_cbranch_scc1 L_fi{u}_x")
        A(f"s_cmp_lg_u64 vcc, 0\ns_cbranch_scc1 L_fi{u}")
        A(f"L_fi{u}_x:\nbuffer_store_dwordx2 v[4:5], v82, s[20:23], {out} offen")

    def poll_data(loads, lo, n, sleep):
        uid[0] += 1
        u = uid[0]
        A(f"s_mov_b32 s24, {SPIN}")
        if sleep:
            A(f"s_branch L_pd{u}_in\nL_pd{u}:\ns_sleep {sleep}\nL_pd{u}_in:")
        else:
            A(f"L_pd{u}:")
        loads()
        A("s_waitcnt vmcnt(0)")
        A(f"v_max_u32 v3, v{lo}, v{lo+1}")
        for k in range(2, n, 2):
            A(f"v_max3_u32 v3, v3, v{lo+k}, v{lo+k+1}")
        A(f"v_cmp_eq_u32 vcc, -1, v3\ns_sub_u32 s24, s24, 1\ns_cmp_eq_u32 s24, 0\ns_cbranch_scc1 L_pd{u}_x")
        A(f"s_and_b64 exec, exec, vcc\ns_cbranch_scc1 L_pd{u}")
        A(f"L_pd{u}_x:\ns_mov_b64 exec, -1")

    A(f"{NAME}_kernel:")
    if o["probe"] or o["vpad"]:
        A("s_memrealtime s[100:101]")
    elif o["stamps"]:
        A("s_memrealtime s[94:95]")
    A("s_load_dwordx16 s[36:51], s[0:1], 0\ns_load_dwordx8 s[52:59], s[0:1], 64\ns_load_dwordx4 s[60:63], s[0:1], 96")
    A("s_cmp_ge_u32 s2, 256\ns_cbranch_scc1 L_end")
    if o["remap"] == 1:
        A("s_bfe_u32 s24, s2, 0x10003\ns_cmp_lt_u32 s2, 64\ns_cselect_b32 s24, 0, s24\ns_xor_b32 s2, s2, s24")
    elif o["remap"] == 2:
        A("s_lshr_b32 s24, s2, 3\ns_cmp_eq_u32 s24, 5\ns_cselect_b32 s24, 1, 0\ns_bitcmp1_b32 s2, 2\ns_cselect_b32 s24, s24, 0\ns_xor_b32 s2, s2, s24")
    elif o["remap"] == 3:
        A("s_sub_u32 s2, 255, s2")
    A("s_cmp_lt_u32 s2, 64")
    if o["cpf"] == 2:
        A("; pull the first code of this role into L2 while the kernel arguments arrive")
        A("s_getpc_b64 s[24:25]\nL_pc0:\ns_cselect_b32 s20, L_A-L_pc0, 0")
        A("v_lshlrev_b32 v16, 7, v0\nv_min_u32 v16, L_A-L_pc0-4, v16\nv_add_u32 v16, s20, v16")
        A("v_add_co_u32 v16, vcc, s24, v16\nv_mov_b32 v17, s25\nv_addc_co_u32 v17, vcc, 0, v17, vcc")
        A("global_load_dword v17, v[16:17], off")
    A("s_cbranch_scc1 L_A")

    def lane_ids():
        A("v_lshrrev_b32 v1, 6, v0\nv_and_b32 v0, 63, v0\nv_readfirstlane_b32 s3, v1\nv_lshlrev_b32 v2, 4, v0")

    RING, BQ, SR = 64, 32, 48
    PF = dict(b=(P_BWQ, 24, 13, 512), q=(P_AWQ, 24, 13, 512), k=(P_AWUK, 24, 13, 512), u=(P_AWUV, 24, 13, 512),
              o=(P_BWO, 25, 8, 512), v=(P_AWO, 25, 8, 512), c=(P_CKV, 26, 10 + LNS, 2048))

    def l2_prefetch(order, dep):
        for ch in order:
            ptr, vb, sh, cnt = PF[ch]
            A(f"s_mov_b64 s[8:9], s[{ptr}:{ptr+1}]")
            if cnt != 512:
                A(f"s_mov_b32 s10, {cnt*8192:#x}")
            A(f"L_pf{ch}:")
            A(f"s_lshl_b32 s24, s74, {sh}")
            if dep is not None:
                A(f"s_waitcnt vmcnt({dep})")
            A(f"buffer_load_dwordx4 v[28:31], v{vb}, s[8:11], s24 offen")
            A(f"s_addk_i32 s74, 96\ns_cmpk_lt_u32 s74, {cnt}\ns_cbranch_scc1 L_pf{ch}")
            A(f"s_addk_i32 s74, {-cnt}")
            if cnt != 512:
                A("s_mov_b32 s10, 0x400000")

    A("L_B:")
    A("s_and_b32 s70, s2, 6\ns_and_b32 s25, s2, 7\ns_add_u32 s70, s70, s25\ns_lshl_b32 s25, s70, 8")
    A("v_and_b32 v6, 15, v0\nv_lshl_add_u32 v24, v6, 4, s25\nv_and_b32 v4, 16, v0\nv_lshl_add_u32 v24, v4, 5, v24")
    A("v_lshrrev_b32 v4, 5, v0\nv_lshl_add_u32 v24, v4, 12, v24")
    A("s_lshr_b32 s74, s2, 3\ns_lshl_b32 s74, s74, 2\ns_addk_i32 s74, -32")
    A("s_mov_b32 s10, 0x400000\ns_mov_b32 s11, 0x20000")
    nf = o["fast"]
    assert all(PF[c][1] == 24 for c in o["pf"][:nf])
    A("s_waitcnt lgkmcnt(0)")
    stamp(0)
    l2_prefetch(o["pf"][:nf], None)
    lane_ids()
    if o["cpf"] == 1:
        code_prefetch("L_B", "L_A")
    A("s_lshr_b32 s24, s2, 3\ns_sub_u32 s24, s24, 8")
    A("s_mul_i32 s26, s24, 43\ns_lshr_b32 s26, s26, 8\ns_mul_i32 s27, s26, 6\ns_sub_u32 s27, s24, s27")
    head_of()
    A("s_lshl_b32 s25, s70, 17\ns_lshl_b32 s24, s3, 8\ns_add_u32 s25, s25, s24\nv_lshl_add_u32 v25, v6, 4, s25")
    A("v_and_b32 v4, 16, v0\nv_lshl_add_u32 v25, v4, 14, v25\nv_and_b32 v4, 32, v0\nv_lshl_add_u32 v25, v4, 16, v25")
    A(f"s_and_b32 s25, s2, {NS-1}\ns_lshl_b32 s25, s25, 10\ns_lshl_b32 s24, s3, {10+LNS}\ns_add_u32 s25, s25, s24")
    A(f"s_bfe_u32 s24, s2, {LNS | ((3 - LNS) << 16):#x}\ns_lshl_b32 s24, s24, {21 + LNS}\ns_add_u32 s25, s25, s24")
    A("v_add_u32 v26, s25, v2")
    A("s_cmp_ge_u32 s27, 3\ns_cselect_b32 s28, 1, 0\ns_mul_i32 s29, s28, 3\ns_sub_u32 s29, s27, s29")
    A("s_lshr_b32 s72, s3, 1\ns_lshl_b32 s24, s28, 1\ns_add_u32 s72, s72, s24")
    A("s_and_b32 s31, s3, 1\ns_lshl_b32 s24, s29, 1\ns_add_u32 s31, s31, s24")
    A("s_lshl_b32 s30, s72, 5\ns_add_u32 s30, s30, s26\ns_lshl_b32 s30, s30, 20")
    A("v_lshrrev_b32 v3, 4, v0\nv_and_b32 v4, 3, v0\nv_lshlrev_b32 v5, 6, v3\nv_lshl_add_u32 v5, v4, 4, v5")
    A("v_bfe_u32 v1, v0, 2, 2\nv_lshl_add_u32 v1, v1, 8, v5")
    NREG = 1024 // (6 * chunk) * chunk
    NLFT = 171 - NREG
    A(f"s_mul_i32 s35, s31, {chunk*1024}\ns_add_u32 s32, s35, {160*6144}")
    A(f"s_mul_i32 s28, s31, {NLFT*1024}\ns_add_u32 s28, s28, {NREG*6144}")
    A("s_mov_b32 s6, 0x100000\ns_mov_b32 s7, 0x20000")
    A(f"s_add_u32 s4, s{P_K}, s30\ns_addc_u32 s5, s{P_K+1}, 0")
    srd(12, P_WS, WS_SIZE)
    srd(16, P_DBG, 256)
    make_masks(sel=False)
    quad_masks()
    for x in range(16):
        A(f"v_mov_b32 v{BQ+x}, 0")
    A("v_lshrrev_b32 v3, 4, v0\nv_lshlrev_b32 v60, 6, v3\nv_and_b32 v4, 7, v0\nv_lshl_add_u32 v60, v4, 3, v60")
    A("s_lshl_b32 s33, s26, 2\ns_add_u32 s33, s33, s72")
    A(f"s_lshl_b32 s34, s26, {RB}\ns_lshl_b32 s24, s72, 8\ns_add_u32 s34, s34, s24\ns_add_u32 s34, s34, {WS_QB:#x}")
    A(f"s_mul_i32 s73, s33, 6\ns_add_u32 s73, s73, s31\ns_lshl_b32 s73, s73, 8\ns_add_u32 s73, s73, {WS_OB:#x}")
    l2_prefetch(o["pf"][nf:], o["pdep"])
    stamp(8)

    def sload(i, dst):
        if i >= NREG:
            A(f"buffer_load_dwordx4 {dst}, v1, s[4:7], s28 offen offset:{(i - NREG)*1024} nt")
            return
        A(f"buffer_load_dwordx4 {dst}, v1, s[4:7], s32 offen offset:{(i % chunk)*1024} nt")
        if i % chunk == chunk - 1:
            A(f"s_add_u32 s32, s32, {6*chunk*1024}")

    def park(lo, hi):
        for n in range(lo, hi):
            A("s_waitcnt vmcnt(15)")
            if n < 11:
                sload(160 + n, ar(4 * n))
            else:
                if n == 11:
                    A("s_mov_b32 s32, s35")
                m = n - 11
                sload(m, ar(64 + 4 * m) if m < 16 * NB else vr(RING + 4 * (m - 16 * NB)))

    NB = o["nbank"]
    NP = 27 + 16 * NB
    qa, qb = o["qa"], o["qb"]
    park(0, qa)
    stamp(6)
    A(f"s_mov_b64 exec, 1\nbuffer_load_dword v61, off, s[16:19], 0 offset:{C_QB} sc1\ns_mov_b64 exec, -1")
    park(qa, qb)
    A(f"s_waitcnt vmcnt({qb - qa})\nv_readfirstlane_b32 s25, v61")
    A("s_cmp_ge_u32 s25, 32\ns_cbranch_scc1 L_B_q")
    poll_word(f"buffer_load_dword v61, off, s[16:19], 0 offset:{C_QB} sc1", 61, 32, "L_B_q", 16, "ge")
    A("L_B_q:\ns_mov_b64 exec, -1")
    stamp(7)
    A("buffer_load_dwordx4 v[8:11], v5, s[12:15], s34 offen sc1")
    park(qb, NP)
    A(f"s_waitcnt vmcnt({min(15, NP - qb)})")
    for x in range(4):
        for i in range(4):
            A(f"v_mov_b32_dpp v{BQ+4*x+i}, v{8+i} {DPP_ID} row_mask:0xf bank_mask:{1 << x:#x}")
    stamp(1)

    def kblock(src, S, n, stream):
        for j in range(n):
            x, y = j & 3, j >> 2
            D = 12 + 4 * (y & 1)
            if stream:
                A("s_waitcnt vmcnt(15)")
            A(f"v_mfma_f32_16x16x32_bf16 {vr(D)}, {src(j)}, {vr(BQ+4*x)}, {'0' if x == 0 else vr(D)}")
            if stream:
                sload(j, src(j))
            if x == 3 or j == n - 1:
                if y == 0:
                    diag_sum(D, 0, S)
                else:
                    diag_sum(D, y, 3)
                    A(f"v_cndmask_b32 v{S}, v{S}, v3, s[{62+2*y}:{63+2*y}]")

    A(f"s_mov_b32 s27, {NB}")
    A("L_BK:")
    trace(1)
    A("s_cmp_lg_u32 s27, 9\ns_cbranch_scc1 L_BK_a")
    A(f"s_add_u32 s4, s{P_V}, s30\ns_addc_u32 s5, s{P_V+1}, 0\ns_mov_b32 s32, s35\nv_mov_b32 v1, v2")
    A("L_BK_a:")
    A("s_barrier")
    A(f"s_cmp_lg_u32 s27, {o['xi_it']}\ns_cbranch_scc1 L_BK_x0")
    A(f"s_and_b32 s24, s2, 7\ns_lshl_b32 s24, s24, 7\ns_add_u32 s24, s24, {WS_XI:#x}")
    A("v_and_b32 v63, 7, v0\nv_lshlrev_b32 v63, 2, v63\nbuffer_load_dword v62, v63, s[12:15], s24 offen sc1")
    A("L_BK_x0:")
    A(f"s_cmp_lg_u32 s27, {o['xi_it']+1}\ns_cbranch_scc1 L_BK_x1")
    A("s_getreg_b32 s24, hwreg(HW_REG_XCC_ID, 0, 4)\nv_cmp_ne_u32 vcc, s24, v62\ns_or_b32 s75, vcc_lo, vcc_hi")

    def clear_row():
        for i in range(4):
            A(f"v_mov_b32 v{28+i}, -1")
        A("s_mov_b64 exec, 0xffff\ns_cmp_lg_u32 s75, 0")
        near_far("buffer_store_dwordx4 v[28:31], v2, s[12:15], s73 offen")
        A("s_mov_b64 exec, -1")
    if o["c_it"] < 0:
        clear_row()
    A("L_BK_x1:")
    for k in range(NB, 9):
        A(f"v_mov_b32 v{SR+k}, v{SR+k+1}")
    kblock(lambda j: vr(RING + 4 * j), SR + 9, 16, True)
    for k in range(NB):
        A(f"s_cmp_lg_u32 s27, {NB+2+k}\ns_cbranch_scc1 L_BK_c{k}")
        kblock(lambda j: ar(64 + 64 * k + 4 * j), SR + k, 16, False)
        A(f"L_BK_c{k}:")
    A(f"s_cmp_lg_u32 s27, {NB+1}\ns_cbranch_scc1 L_BK_b")
    kblock(lambda j: ar(4 * j), SR + 10, 11, False)
    A(f"s_mul_i32 s24, s31, {NLFT}\ns_sub_i32 s24, {1024 - 6*NREG}, s24\ns_max_i32 s24, s24, 0\ns_min_i32 s24, s24, {NLFT}\ns_add_u32 s24, s24, {NREG - 160}")
    A("v_and_b32 v3, 3, v0\nv_bfe_u32 v4, v0, 2, 2\nv_lshl_add_u32 v3, v3, 2, v4")
    A(f"v_mov_b32 v4, 0xff800000\nv_cmp_gt_u32 vcc, s24, v3\nv_cndmask_b32 v{SR+10}, v4, v{SR+10}, vcc")
    A(f"v_mov_b32 v61, {SCALE:#x}\nv_mov_b32 v7, 0")
    A(f"s_lshr_b32 s34, s2, 3\ns_lshl_b32 s34, s34, {RC}\ns_and_b32 s24, s2, 7\ns_lshl_b32 s24, s24, 7\ns_add_u32 s34, s34, s24\ns_add_u32 s34, s34, {WS_BML - (8 << RC):#x}")
    A("L_BK_b:")
    A("s_add_u32 s27, s27, 1\ns_cmp_lt_u32 s27, 10\ns_cbranch_scc1 L_BK")
    stamp(2)

    A(f"v_max3_f32 v3, v{SR}, v{SR+1}, v{SR+2}")
    for k in range(3, 11, 2):
        A(f"v_max3_f32 v3, v3, v{SR+k}, v{SR+k+1}")
    wave_reduce("v_max_f32", 3, 24)
    A("v_mul_f32 v6, s24, v61")

    def probs(ks):
        for k in ks:
            A(f"v_fma_f32 v{SR+k}, v{SR+k}, v61, -v6")
        for k in ks:
            A(f"v_exp_f32 v{SR+k}, v{SR+k}")
        for k in ks:
            A(f"v_add_f32 v7, v7, v{SR+k}")
        for k in ks:
            A(f"v_cvt_pk_bf16_f32 v{SR+k}, v{SR+k}, v{SR+k}")

    def publish_ml():
        wave_reduce("v_add_f32", 7, 70)
        A("s_lshl_b32 s25, s3, 4\ns_add_u32 s25, s25, s34")
        A("s_mov_b64 exec, 1\nv_mov_b32 v7, s70")
        A("s_cmp_lg_u32 s75, 0")
        near_far("buffer_store_dwordx2 v[6:7], off, s[12:15], s25")
        A("s_mov_b64 exec, -1")
    for i in range(4):
        A(f"v_mov_b32 v{12+i}, 0")
    probs([0])
    stamp(3)

    A("s_mov_b32 s27, 0")
    A("L_BV:")
    trace(11)
    A("s_barrier")
    if o["c_it"] >= 0:
        A("; clear this wave's result row late so it stays in L2, and mark it cleared one iteration later")
        A(f"s_cmp_lg_u32 s27, {o['c_it']}\ns_cbranch_scc1 L_BV_c0")
        clear_row()
        A(f"L_BV_c0:\ns_cmp_lg_u32 s27, {o['c_it']+1}\ns_cbranch_scc1 L_BV_c1")
        A("s_lshl_b32 s25, s3, 4\ns_add_u32 s25, s25, s34\ns_mov_b64 exec, 1\nv_mov_b32 v28, 0\nv_mov_b32 v29, 0\ns_cmp_lg_u32 s75, 0")
        near_far("buffer_store_dwordx2 v[28:29], off, s[12:15], s25 offset:8")
        A("s_mov_b64 exec, -1\nL_BV_c1:")
    if o["hlp"]:
        A(f"s_cmp_ge_u32 s27, {o['h_it']}\ns_cselect_b32 s71, s3, 4")

    def v_finish():
        if o["vpad"]:
            A(f"s_lshr_b32 s24, s2, 3\ns_mul_i32 s24, s24, 6\ns_sub_u32 s24, {o['vpad']}, s24")
            A("L_vpad:\ns_memrealtime s[98:99]\ns_waitcnt lgkmcnt(0)\ns_sub_u32 s25, s98, s100\ns_cmp_lt_u32 s25, s24\ns_cbranch_scc1 L_vpad")
        stamp(4)
        A("s_mov_b32 exec_lo, 0x00ff00ff\ns_mov_b32 exec_hi, 0x00ff00ff")
        A("s_cmp_lg_u32 s75, 0")
        A("v_cvt_pk_bf16_f32 v4, v12, v13\nv_cvt_pk_bf16_f32 v5, v14, v15")
        if 'b' not in o['drop']:
            near_far("buffer_store_dwordx2 v[4:5], v60, s[12:15], s73 offen")
        stamp(5)
        if o["stamps"]:
            A("s_mov_b32 s96, s75")
        trace_out()
        stamps_out()
        A("s_endpgm")

    def v_step(j, p, cnt):
        x, y = j & 3, j >> 2
        for i in range(4):
            A(f"v_and_b32_dpp v{8+i}, v{p}, v{MASK+i} row_newbcast:{4*x+y} row_mask:0xf bank_mask:0xf")
        A(f"s_waitcnt vmcnt({cnt})")
        A(f"v_mfma_f32_16x16x32_bf16 v[12:15], {vr(RING+4*j)}, v[8:11], v[12:15]")

    NOUT = NREG - 160
    for j in range(16):
        x, y = j & 3, j >> 2
        if j == NOUT:
            A("s_cmp_eq_u32 s27, 9\ns_cbranch_scc1 L_BT")
        if j == o["dfr"]:
            A("s_cmp_lg_u32 s27, 0\ns_cbranch_scc1 L_BV_d")
            probs(range(1, 11))
            publish_ml()
            A("L_BV_d:")
        if o["hlp"] and x == 0:
            A(f"s_cmp_lg_u32 s71, {y}\ns_cbranch_scc1 L_BV_p{y}")
            A(f"s_lshl_b32 s24, s27, 2\ns_add_u32 s24, s24, {y}\ns_mov_b64 exec, 1\nv_mov_b32 v63, s24")
            A("s_cmp_lg_u32 s75, 0")
            near_far("buffer_store_dword v63, off, s[12:15], s34 offset:64")
            A("s_mov_b64 exec, -1")
            A(f"L_BV_p{y}:")
        v_step(j, SR, 15)
        sload(j, vr(RING + 4 * j))
    for k in range(10):
        A(f"v_mov_b32 v{SR+k}, v{SR+k+1}")
    A("s_add_u32 s27, s27, 1\ns_branch L_BV")
    A("L_BT:")
    for j in range(NOUT, 11):
        v_step(j, SR, 15)
        sload(160 + j, vr(RING + 4 * j))
    for n in range(16):
        j = (11 + n) & 15
        v_step(j, SR if j >= 11 else SR + 1, 15 - n)
    v_finish()

    XA, XB = 32, 48
    A("L_A:")
    role[0] = "A"
    lane_ids()
    if o["cpf"] == 1:
        code_prefetch("L_A", "L_A2")
    A("s_mov_b32 s74, s2\ns_and_b32 s72, s2, 31")
    A("s_and_b32 s70, s2, 6\ns_and_b32 s25, s2, 7\ns_add_u32 s70, s70, s25\ns_lshr_b32 s26, s72, 3")
    head_of()
    A("v_lshrrev_b32 v3, 4, v0\nv_and_b32 v4, 15, v0")
    A("v_lshlrev_b32 v18, 18, v3\nv_lshl_add_u32 v18, v4, 4, v18")
    A("v_lshrrev_b32 v6, 3, v4\nv_lshlrev_b32 v6, 10, v6\nv_lshl_add_u32 v19, v3, 6, v6")
    A("v_bfe_u32 v1, v0, 2, 2\nv_lshlrev_b32 v64, 18, v1\nv_lshl_add_u32 v64, v3, 6, v64")
    A("v_and_b32 v4, 3, v0\nv_lshl_add_u32 v64, v4, 4, v64")
    A("v_lshlrev_b32 v65, 9, v1\nv_lshl_add_u32 v65, v3, 7, v65\nv_lshl_add_u32 v65, v4, 5, v65")
    A(f"v_add_u32 v65, {L_QP}, v65")
    A(f"v_lshlrev_b32 v66, {RQ+5}, v1\nv_lshl_add_u32 v66, v3, 6, v66\nv_lshl_add_u32 v66, v4, 4, v66")
    A("v_and_b32 v4, 15, v0\nv_lshlrev_b32 v67, 10, v3\nv_lshl_add_u32 v67, v4, 4, v67")
    A("s_lshl_b32 s35, s3, 20\ns_lshl_b32 s24, s26, 8\ns_add_u32 s35, s35, s24")
    A("s_waitcnt lgkmcnt(0)")
    stamp(0)
    A("s_cmp_lt_u32 s74, 32")
    A(f"s_cselect_b64 s[4:5], s[{P_AWQ}:{P_AWQ+1}], s[{P_BWQ}:{P_BWQ+1}]\ns_mov_b32 s6, 0x400000\ns_mov_b32 s7, 0x20000")
    A(f"s_cselect_b64 s[20:21], s[{P_AX}:{P_AX+1}], s[{P_BX}:{P_BX+1}]\ns_mov_b32 s22, 4096\ns_mov_b32 s23, 0x20000")
    A("s_cselect_b32 s75, 0x400000, 0")
    A("s_lshl_b32 s24, s3, 8\ns_mov_b32 s32, s35")
    A("buffer_load_dwordx4 v[12:15], v67, s[20:23], s24 offen")

    def wload(j, voff, pol="nt"):
        A(f"buffer_load_dwordx4 {vr(WB+4*j)}, v{voff}, s[4:7], s32 offen {pol}")
        A("s_add_u32 s32, s32, 8192")
    LEAD = o["lead"]
    for j in range(LEAD):
        wload(j, 18)
    srd(12, P_WS, WS_SIZE)
    srd(16, P_DBG, 256)
    make_masks()
    quad_masks()
    A(f"s_lshl_b32 s24, s3, 8\ns_add_u32 s24, s24, {L_CX}\nv_add_u32 v3, s24, v67\nv_add_u32 v4, s24, v19")
    A(f"s_waitcnt vmcnt({LEAD})\nds_write_b128 v3, v[12:15]\ns_waitcnt lgkmcnt(0)")
    for p in range(2):
        for i in range(4):
            A(f"ds_read_b128 {vr(XA+16*p+4*i)}, v4 offset:{2048*p+16*i}")
    A("s_waitcnt lgkmcnt(0)")

    for i in range(4):
        A(f"v_mov_b32 v{76+i}, -1")
    A(f"s_lshl_b32 s71, s72, 2\ns_add_u32 s71, s71, s3\ns_lshl_b32 s71, s71, {RC}\ns_add_u32 s71, s71, {WS_BML:#x}")
    A(f"s_cmp_lt_u32 s74, 32\ns_cselect_b32 s71, {WS_SIZE:#x}, s71")

    def s1_after(j):
        if j + LEAD == 32:
            A("; clear this workgroup's flag line and (role C) the slots that are polled for data")
            A(f"s_lshl_b32 s73, s74, 7\ns_add_u32 s73, s73, {WS_FLAG:#x}")
            A("s_cmp_lg_u32 s3, 0\ns_cbranch_scc1 L_A_nofl")
            A("s_mov_b64 exec, 1\nbuffer_store_dwordx4 v[76:79], off, s[12:15], s73 sc1\ns_mov_b64 exec, -1")
            A("L_A_nofl:")
            for i in range(0 if 'c' in o['drop'] else 1):
                A(f"s_cmp_ge_u32 s71, {WS_CLR_END:#x}\ns_cselect_b32 s71, {WS_SIZE:#x}, s71")
                A("buffer_store_dwordx4 v[76:79], v2, s[12:15], s71 offen sc1\ns_add_u32 s71, s71, 0x20000")
            code_prefetch("L_A2", "L_last", back=False)
            A(f"s_mov_b32 s4, s{P_AWUK}\ns_mov_b32 s5, s{P_AWUK+1}\ns_mov_b32 s6, s75\ns_mov_b32 s32, s35")
        if j + LEAD < 32:
            wload(j + LEAD, 18)
        else:
            wload(j + LEAD - 32, 64)
    extra = ((0 if 'c' in o['drop'] else 1) + (1 if o["cpf"] else 0)) * o["xw"]
    gemv([XA, XB], [12, 68], wait=lambda j: A(f"s_waitcnt vmcnt({LEAD - 1 + (extra if j + LEAD > 32 else 0)})"), after=s1_after)
    q_reduce([12, 68], 65, 8, 72)
    stamp(1)
    A("s_cmp_ge_u32 s74, 32\ns_cbranch_scc1 L_C")
    A("L_A2:")
    TQ = 72
    for j in range(LEAD, 32):
        wload(j, 64)
    DQ, TT = 80, 112
    for y in range(4):
        for e in range(8):
            j = 8 * y + e
            A(f"s_waitcnt vmcnt({31-j})")
            A(f"v_mfma_f32_16x16x32_bf16 {vr(DQ+4*e)}, {vr(WB+4*j)}, v[8:11], 0")
        t = TQ if y == 0 else TT
        for n, a in enumerate(a for a in range(4) if a != y):
            for e in range(8):
                src = DQ + 4 * e + y if n == 0 else t + e
                A(f"v_add_f32_dpp v{t+e}, v{DQ+4*e+a}, v{src} quad_perm:[{a},{a},{a},{a}] row_mask:0xf bank_mask:0xf")
        if y:
            for e in range(8):
                A(f"v_cndmask_b32 v{TQ+e}, v{TQ+e}, v{TT+e}, s[{62+2*y}:{63+2*y}]")
    A(f"s_mov_b32 s71, {SCALE:#x}")
    for e in range(8):
        A(f"v_mul_f32 v{TQ+e}, s71, v{TQ+e}")
    for i in range(4):
        A(f"v_cvt_pk_bf16_f32 v{4+i}, v{TQ+2*i}, v{TQ+2*i+1}")
    A(f"s_lshl_b32 s24, s26, {RQ}\ns_lshl_b32 s25, s3, 8\ns_add_u32 s24, s24, s25\ns_add_u32 s24, s24, {WS_QA:#x}")
    if 'q' not in o['drop']:
        A(f"buffer_store_dwordx4 v[4:7], v66, s[12:15], s24 offen sc1")
    bwo_stage()
    signal(C_Q, 64)
    stamp(2)
    bwo_transpose()
    srd(4, P_AWUV, 4 << 20)
    srd(8, P_AWO, 4 << 20)
    A("s_mov_b32 s32, s35")
    for j in range(32):
        wload(j, 18)
    A("s_lshl_b32 s33, s26, 17\ns_lshl_b32 s24, s3, 15\ns_add_u32 s33, s33, s24")
    A(f"s_mul_i32 s34, s3, {32*WROW}")
    A("s_waitcnt lgkmcnt(0)\ns_barrier")
    wo_stage()
    A("s_waitcnt vmcnt(0)\ns_barrier")
    wo_transpose()
    A("s_waitcnt lgkmcnt(0)")
    stamp(3)
    await_flag(C_Q)
    publish_xcc()
    await_flag(C_P)
    stamp(4)
    PR = 72
    A(f"s_lshl_b32 s24, s3, {8+LNS}\ns_lshl_b32 s25, s26, 3\ns_add_u32 s25, s25, s24\ns_add_u32 s25, s25, {WS_PML:#x}")
    A(f"v_and_b32 v3, {NS-1}, v0\nv_lshlrev_b32 v3, 8, v3")
    A("buffer_load_dwordx2 v[4:5], v3, s[12:15], s25 offen sc1")
    A(f"s_lshl_b32 s24, s3, {RP+5+LNS}\ns_lshl_b32 s25, s26, {RP}\ns_add_u32 s24, s24, s25\ns_add_u32 s24, s24, {WS_PART:#x}")
    for s in range(0 if 'P' in o['drop'] else NS):
        A(f"buffer_load_dwordx4 {vr(PR+4*s)}, v2, s[12:15], s24 offen sc1 nt\ns_add_u32 s24, s24, {32 << RP}")
    A(f"s_waitcnt vmcnt({NS})")
    A("v_mov_b32 v6, v4")
    rors = ("row_ror:4", "row_ror:2", "row_ror:1")[3 - LNS:]
    for c in rors:
        A(f"v_max_f32_dpp v6, v6, v6 {c} row_mask:0xf bank_mask:0xf")
    A("v_sub_f32 v4, v4, v6\nv_exp_f32 v4, v4\nv_mul_f32 v5, v4, v5")
    for c in rors:
        A(f"v_add_f32_dpp v5, v5, v5 {c} row_mask:0xf bank_mask:0xf")
    A("v_rcp_f32 v5, v5\nv_mul_f32 v4, v4, v5")
    CA = 104
    for s in range(NS):
        A(f"v_readlane_b32 s24, v4, {s}")
        A(f"s_waitcnt vmcnt({NS-1-s})")
        for i in range(4):
            A(f"v_lshlrev_b32 v5, 16, v{PR+4*s+i}\nv_and_b32 v6, 0xffff0000, v{PR+4*s+i}")
            if s == 0:
                A(f"v_mul_f32 v{CA+2*i}, s24, v5\nv_mul_f32 v{CA+2*i+1}, s24, v6")
            else:
                A(f"v_fmac_f32 v{CA+2*i}, s24, v5\nv_fmac_f32 v{CA+2*i+1}, s24, v6")
    for i in range(4):
        A(f"v_cvt_pk_bf16_f32 v{4+i}, v{CA+2*i}, v{CA+2*i+1}")
    A(f"s_lshl_b32 s24, s3, 10\ns_add_u32 s24, s24, {L_CX}\nv_add_u32 v3, s24, v2")
    A("ds_write_b128 v3, v[4:7]")
    A(f"s_lshl_b32 s24, s3, 8\ns_add_u32 s24, s24, {L_CX}\nv_add_u32 v3, s24, v19")
    A("s_waitcnt lgkmcnt(0)\ns_barrier")
    for p in range(2):
        for i in range(4):
            A(f"ds_read_b128 {vr(XA+16*p+4*i)}, v3 offset:{2048*p+16*i}")
    A("s_waitcnt lgkmcnt(0)")
    gemv([XA, XB], [12, 68])
    A("v_lshrrev_b32 v3, 4, v0\nv_lshlrev_b32 v3, 7, v3\nv_and_b32 v4, 7, v0\nv_lshl_add_u32 v3, v4, 4, v3")
    A("v_bfe_u32 v4, v0, 3, 1\nv_lshl_add_u32 v3, v4, 9, v3")
    A(f"s_lshl_b32 s24, s3, 11\ns_add_u32 s24, s24, {L_QP}\nv_add_u32 v3, s24, v3")
    A("ds_write_b128 v3, v[12:15]\nds_write_b128 v3, v[68:71] offset:1024")
    A("s_waitcnt lgkmcnt(0)\ns_barrier")
    A(f"v_and_b32 v5, 31, v0\ns_lshl_b32 s24, s3, 9\ns_add_u32 s24, s24, {L_QP}\nv_lshl_add_u32 v3, v5, 4, s24")
    for w in range(4):
        A(f"ds_read_b128 {vr(72+4*w)}, v3 offset:{w*2048}")
    A(f"s_mul_i32 s24, s3, {OROW}\ns_add_u32 s24, s24, {L_OA}\nv_lshl_add_u32 v5, v5, 3, s24")
    A("s_waitcnt lgkmcnt(0)")
    for w in range(1, 4):
        for r in range(4):
            A(f"v_add_f32 v{72+r}, v{72+r}, v{72+4*w+r}")
    A("v_cvt_pk_bf16_f32 v6, v72, v73\nv_cvt_pk_bf16_f32 v7, v74, v75")
    A("ds_write_b64 v5, v[6:7]")
    A(f"v_lshrrev_b32 v3, 4, v0\nv_and_b32 v4, 3, v0\nv_mul_u32_u24 v5, {OROW}, v4\nv_lshl_add_u32 v5, v3, 4, v5\nv_add_u32 v5, {L_OA}, v5")
    A("s_waitcnt lgkmcnt(0)\ns_barrier")
    for i in range(4):
        A(f"ds_read_b128 {vr(XA+4*i)}, v5 offset:{64*i}")

    def merge_w(T):
        for r in range(4):
            A(f"v_mov_b32_dpp v{4+4*(T>>2)+r}, v{72+4*T+r} {DPP_ID} row_mask:{1 << (T & 3):#x} bank_mask:0xf")
    for T in range(8):
        D = 72 + 4 * T
        for i in range(4):
            if T == 0:
                A(f"s_waitcnt lgkmcnt({3-i})")
            A(f"v_mfma_f32_16x16x32_bf16 {vr(D)}, {vr(XA+4*i)}, {ar((T*4+i)*4)}, {'0' if i == 0 else vr(D)}")
        if T >= 2:
            merge_w(T - 2)
    merge_w(6)
    merge_w(7)
    for i in range(4):
        A(f"v_cvt_pk_bf16_f32 v{12+i}, v{4+2*i}, v{5+2*i}")
    finish_setup()
    A(f"s_lshl_b32 s30, s3, {RY}\ns_add_u32 s30, s30, {WS_YA:#x}\ns_lshl_b32 s24, s26, {RY+2}\ns_add_u32 s24, s24, s30")
    if 'y' not in o['drop']:
        A(f"buffer_store_dwordx2 v[12:13], v80, s[12:15], s24 offen {o['ys']}")
        A(f"buffer_store_dwordx2 v[14:15], v80, s[12:15], s24 offen offset:512 {o['ys']}")
    A(f"s_lshl_b32 s24, s3, 7\ns_add_u32 s24, s24, {WS_ELA:#x}\ns_waitcnt vmcnt(0)")
    elect("s24")
    A("s_waitcnt vmcnt(0)\nv_readfirstlane_b32 s24, v83\ns_cmp_lg_u32 s24, 1983\ns_cbranch_scc1 L_W_x")
    A("s_lshl_b32 s31, s3, 8\nL_W_f:")
    finish("s30", "s31")
    A("s_add_u32 s30, s30, 512\ns_add_u32 s31, s31, 128\ns_bitcmp1_b32 s31, 7\ns_cbranch_scc1 L_W_f")
    A("L_W_x:\ns_barrier")
    stamp(5)

    WT, OX, OA_ = 32, 56, 128
    A("L_R:")
    srd(20, P_OUT, 8192)
    make_masks(sel=False)
    A("v_lshrrev_b32 v3, 4, v0\nv_and_b32 v4, 7, v0\nv_bfe_u32 v7, v0, 3, 1")
    A(f"v_lshl_add_u32 v5, v3, 3, v4\nv_mul_u32_u24 v6, {OROW}, v7\nv_lshl_add_u32 v5, v5, 3, v6")
    A(f"s_mul_i32 s24, s3, {4*OROW}\ns_add_u32 s24, s24, {L_QP}\nv_add_u32 v24, s24, v5")
    A(f"v_and_b32 v5, 3, v0\nv_mul_u32_u24 v25, {OROW}, v5\nv_lshl_add_u32 v25, v3, 4, v25\nv_add_u32 v25, {L_QP}, v25")
    A("v_lshlrev_b32 v26, 4, v4\nv_lshl_add_u32 v26, v7, 3, v26\nv_and_b32 v5, 15, v0\nv_lshlrev_b32 v28, 11, v3\nv_lshl_add_u32 v28, v5, 1, v28")
    A("s_and_b32 s24, s74, 7\ns_lshl_b32 s24, s24, 3\ns_bfm_b64 s[44:45], 8, s24\ns_not_b64 s[44:45], s[44:45]")
    A(f"v_min_u32 v6, 5, v4\nv_lshrrev_b32 v5, 1, v6\nv_and_b32 v8, 1, v3\nv_mad_u32_u24 v5, v8, 3, v5\nv_lshlrev_b32 v31, {RC}, v5")
    A("v_and_b32 v6, 1, v6\nv_lshl_add_u32 v6, v7, 1, v6\nv_lshl_add_u32 v31, v6, 4, v31")
    stamp(8)
    A(f"s_and_b32 s35, s72, 7\ns_lshl_b32 s35, s35, 7\ns_add_u32 s35, s35, {WS_BML:#x}")
    A(f"s_lshr_b32 s34, s72, 3\ns_mul_i32 s34, s34, 6\ns_mul_i32 s29, s3, {6 << RC}\ns_add_u32 s29, s29, s35")
    poll_data(lambda: A("buffer_load_dwordx2 v[8:9], v31, s[12:15], s29 offen sc1"), 8, 2, o['sl_ml'])
    red8 = ("quad_perm:[1,0,3,2]", "quad_perm:[2,3,0,1]", "row_half_mirror")
    A("v_mov_b32 v6, v8")
    for c in red8:
        A(f"v_max_f32_dpp v6, v6, v6 {c} row_mask:0xf bank_mask:0xf")
    A("v_sub_f32 v8, v8, v6\nv_exp_f32 v8, v8\nv_cmp_gt_u32 vcc, 6, v4\nv_cndmask_b32 v8, 0, v8, vcc\nv_mul_f32 v9, v8, v9")
    for c in red8:
        A(f"v_add_f32_dpp v9, v9, v9 {c} row_mask:0xf bank_mask:0xf")
    A("v_rcp_f32 v9, v9\nv_mul_f32 v8, v8, v9\nv_cvt_pk_bf16_f32 v8, v8, v8")
    A("v_lshrrev_b32 v3, 4, v0\nv_mul_u32_u24 v9, 6, v7\nv_sub_u32 v3, v3, v9\nv_lshlrev_b32 v9, 3, v7")
    for k in range(3):
        A(f"v_add_u32 v5, {4*k}, v3\nv_min_u32 v5, 6, v5\nv_add_u32 v5, v5, v9\nv_lshlrev_b32 v5, 2, v5")
        A(f"ds_bpermute_b32 v{10+k}, v5, v8\nds_bpermute_b32 v{13+k}, v5, v8 offset:64")
    A("s_waitcnt lgkmcnt(0)")
    for k in range(6):
        for i in range(4):
            A(f"v_and_b32 v{WT+4*k+i}, v{10+k}, v{MASK+i}")
    A("s_mov_b32 s43, s29")
    wave_head("s29")
    A(f"s_mul_i32 s29, s29, 6144\ns_add_u32 s29, s29, {WS_OB:#x}\ns_add_u32 s42, s29, 4096")
    A("s_lshr_b32 s24, s74, 3\ns_lshl_b32 s24, s24, 2\ns_add_u32 s24, s24, s3")
    A(f"s_lshl_b32 s36, s24, {RC}\ns_add_u32 s36, s36, {WS_YB:#x}\ns_and_b32 s37, s74, 7\ns_lshl_b32 s37, s37, 7\ns_add_u32 s37, s37, s36")
    A(f"s_lshl_b32 s38, s3, {RC}\ns_andn2_b32 s25, s74, 7\ns_lshl_b32 s25, s25, 4\ns_add_u32 s38, s38, s25\ns_add_u32 s38, s38, {WS_EL:#x}\ns_lshl_b32 s39, s24, 5\ns_add_u32 s39, s39, 1024")

    def helper():
        if not o["hlp"]:
            return
        assert 36 + o["h_lq"] + o["h_u"] > 43
        A("s_cmp_lg_u32 s3, 0\ns_cbranch_scc1 L_H_x")
        A("s_lshr_b32 s24, s74, 5\ns_mul_i32 s25, s24, 3\ns_add_u32 s34, s34, s25")
        A("s_lshl_b32 s24, s24, 6\ns_add_u32 s24, s24, s26\ns_lshl_b32 s24, s24, 20")
        srd(4, P_V, 1 << 20, add="s24")
        A("s_add_u32 s8, s4, 0x2000000\ns_addc_u32 s9, s5, 0\ns_mov_b32 s10, s6\ns_mov_b32 s11, 0x20000")
        lgc = int(math.log2(chunk))
        A(f"v_lshrrev_b32 v3, {4+lgc}, v0\nv_mul_u32_u24 v16, {6144*chunk}, v3\nv_and_b32 v3, {16*chunk-1}, v0\nv_lshl_add_u32 v16, v3, 7, v16")
        A(f"v_lshlrev_b32 v17, {RC}, v0\nv_mov_b32 v18, 0")
        U = o["h_u"]
        NX = (27, 28, 32)
        A(f"s_mov_b32 s27, 43\ns_mov_b32 s28, 43\ns_mov_b32 s32, 43\ns_mov_b32 s75, 1024")
        A("L_H:")
        A("s_sub_u32 s75, s75, 1\ns_cmp_eq_u32 s75, 0\ns_cbranch_scc1 L_H_x")
        A("s_mov_b64 exec, 0xffffff\nbuffer_load_dword v18, v17, s[12:15], s35 offen offset:64 sc1\ns_mov_b64 exec, -1")
        A("s_waitcnt vmcnt(0)\nv_max_i32 v19, 0, v18")
        A("v_add_u32_dpp v3, v19, v19 row_ror:8 row_mask:0xf bank_mask:0xf")
        for c in ("row_ror:4", "row_ror:2", "row_ror:1"):
            A(f"v_add_u32_dpp v3, v3, v3 {c} row_mask:0xf bank_mask:0xf")
        A("v_readlane_b32 s70, v3, 0\nv_readlane_b32 s24, v3, 16\ns_add_u32 s70, s70, s24")
        for t in range(3):
            A(f"s_add_u32 s24, s34, {t}\nv_readlane_b32 s24, v19, s24")
            A(f"s_sub_u32 s25, 43, s{NX[t]}\ns_mul_i32 s25, s25, {o['h_cw']}\ns_mul_i32 s{64+t}, s24, 24\ns_add_u32 s{64+t}, s{64+t}, s25")
            A(f"s_add_u32 s24, s24, {o['h_lq'] + U}\ns_cmp_gt_u32 s24, s{NX[t]}\ns_cselect_b32 s{64+t}, 0xffff, s{64+t}")
        A("s_min_u32 s71, s64, s65\ns_min_u32 s71, s71, s66\ns_cmp_eq_u32 s71, 0xffff\ns_cbranch_scc1 L_H_x")
        A(f"s_add_u32 s24, s71, {o['h_th']}\ns_cmp_lt_i32 s24, s70\ns_cbranch_scc1 L_H_go")
        A(f"s_sleep {o['h_sl']}\ns_branch L_H")
        A("L_H_go:")
        for t in range(3):
            if t < 2:
                A(f"s_cmp_lg_u32 s71, s{64+t}\ns_cbranch_scc1 L_H_n{t}")
            A(f"s_sub_u32 s{NX[t]}, s{NX[t]}, {U}\ns_mul_i32 s24, s{NX[t]}, {4*6144}\ns_add_u32 s24, s24, {2048*chunk*t}")
            if chunk == 4:
                A(f"s_cmp_eq_u32 s{NX[t]}, {43-U}\ns_cselect_b32 s25, {2048*t}, 0")
            if t < 2:
                A(f"s_branch L_H_ld\nL_H_n{t}:")
        A("L_H_ld:")
        for k in range(U):
            if chunk == 4 and k == U - 1:
                A("s_sub_u32 s24, s24, s25")
            A("buffer_load_dword v5, v16, s[4:7], s24 offen\nbuffer_load_dword v5, v16, s[8:11], s24 offen")
            if k + 1 < U:
                A(f"s_add_u32 s24, s24, {4*6144}")
        A("s_branch L_H")
        A("L_H_x:")
        if o["hb"]:
            A("s_barrier")

    def p_loads():
        for k in range(6):
            A(f"buffer_load_dwordx4 {vr(OX+4*k)}, v2, s[12:15], {'s29' if k < 4 else 's42'} offen offset:{1024*(k & 3)} sc1")
    A(f"s_mov_b32 s30, {WS_SIZE:#x}\ns_mov_b32 s31, s30\ns_mov_b32 s40, s30\ns_mov_b32 s41, s30\ns_mov_b32 s33, 0")
    A("s_branch L_P_go\nL_P:\ns_mov_b64 s[30:31], s[36:37]\ns_mov_b64 s[40:41], s[38:39]\ns_mov_b32 s33, 447")
    helper()
    if 'e' in o['drop']:
        A("s_endpgm")
    if o["c_it"] >= 0:
        poll_data(lambda: A("buffer_load_dwordx2 v[8:9], v31, s[12:15], s43 offen offset:8 sc1"), 8, 2, 4)
    poll_data(p_loads, OX, 24, 0)
    stamp(9)
    A("L_P_go:")
    if o["eb"] == 2:
        A("s_barrier")
        elect("s40")
    for k in (0, 3, 1, 4, 2, 5):
        D = 12 + 4 * (k // 3)
        A(f"v_mfma_f32_16x16x32_bf16 {vr(D)}, {vr(OX+4*k)}, {vr(WT+4*k)}, {vr(D) if k % 3 else 0}")
    if o["eb"] == 1:
        A("s_barrier")
        elect("s40")
    A("v_cvt_pk_bf16_f32 v4, v12, v13\nv_cvt_pk_bf16_f32 v5, v14, v15\nds_write_b64 v24, v[4:5]")
    A(f"v_cvt_pk_bf16_f32 v6, v16, v17\nv_cvt_pk_bf16_f32 v7, v18, v19\nds_write_b64 v24, v[6:7] offset:{2*OROW}")
    A("s_waitcnt lgkmcnt(0)\ns_barrier")
    for n in range(16):
        A(f"ds_read_b128 {vr(OA_+4*n)}, v25 offset:{(n >> 2)*4*OROW + 64*(n & 3)}")
        if n == 7 and not o["eb"]:
            elect("s40")
        if n >= 8:
            A("s_waitcnt lgkmcnt(8)")
            A(f"v_mfma_f32_16x16x32_bf16 v[12:15], {vr(OA_+4*(n-8))}, {ar(128+4*(n-8))}, {'v[12:15]' if n > 8 else 0}")
    for n in range(8, 16):
        A(f"s_waitcnt lgkmcnt({15-n})")
        A(f"v_mfma_f32_16x16x32_bf16 v[12:15], {vr(OA_+4*n)}, {ar(128+4*n)}, v[12:15]")
    A("v_cvt_pk_bf16_f32 v4, v12, v13\nv_cvt_pk_bf16_f32 v5, v14, v15\ns_mov_b64 exec, 0xffff")
    A("buffer_store_dwordx2 v[4:5], v26, s[12:15], s31 offen sc1\ns_mov_b64 exec, -1")
    A("v_mov_b32 v16, v4\nv_mov_b32 v17, v5\nv_mov_b32 v18, v4\nv_mov_b32 v19, v5")
    for i in range(4):
        A(f"v_mov_b32_dpp v{16+i}, v{4 + (i & 1)} row_ror:8 row_mask:0xf bank_mask:{'0xc' if i < 2 else '0x3'}")
    A("s_waitcnt vmcnt(1)\nv_readfirstlane_b32 s24, v83\ns_cmp_eq_u32 s24, s33\ns_cbranch_scc1 L_P_f")
    A("s_waitcnt vmcnt(0)\nv_readfirstlane_b32 s24, v83\ns_cmp_lg_u32 s24, s33\ns_cbranch_scc1 L_P_n\nL_P_f:")
    A("s_mov_b64 exec, s[44:45]")
    poll_data(lambda: A("buffer_load_dwordx4 v[16:19], v2, s[12:15], s30 offen sc1"), 16, 4, 0)
    for i in range(4):
        A(f"v_lshlrev_b32 v{56+2*i}, 16, v{16+i}\nv_and_b32 v{57+2*i}, 0xffff0000, v{16+i}")
    for a in (56, 57, 60, 61):
        A(f"v_permlane32_swap_b32 v{a}, v{a+2}")
    for a in (56, 57, 60, 61):
        A(f"v_add_f32 v{a}, v{a}, v{a+2}")
    A("v_permlane16_swap_b32 v56, v57\nv_permlane16_swap_b32 v60, v61\nv_add_f32 v56, v56, v57\nv_add_f32 v60, v60, v61")
    A("v_add_f32_dpp v4, v56, v56 row_ror:8 row_mask:0xf bank_mask:0x3\nv_add_f32_dpp v4, v60, v60 row_ror:8 row_mask:0xf bank_mask:0xc")
    A("v_cvt_pk_bf16_f32 v4, v4, v4")
    A("buffer_store_short v4, v28, s[20:23], s41 offen")
    A("L_P_n:\ns_cmp_lg_u32 s33, 0\ns_cbranch_scc1 L_P_x\ns_barrier\ns_branch L_P\nL_P_x:")
    stamp(11)
    stamps_out()
    A("L_end:")
    A("s_endpgm")

    ST, SS, PP, TR, ACC = 32, 64, 72, 192, 128
    A("L_C:")
    A("s_cmp_lg_u32 s3, 0\ns_cbranch_scc1 L_C_q")
    A("v_lshrrev_b32 v3, 4, v0\nv_and_b32 v4, 3, v0\nv_lshlrev_b32 v5, 6, v3\nv_lshl_add_u32 v5, v4, 4, v5")
    A("v_bfe_u32 v4, v0, 2, 2\nv_lshl_add_u32 v5, v4, 8, v5")
    A(f"s_lshl_b32 s24, s26, {RB}\ns_add_u32 s24, s24, {WS_QB:#x}")
    A(f"buffer_store_dwordx4 v[8:11], v5, s[12:15], s24 offen sc1")
    A("L_C_q:")
    signal(C_Q, 64, also=C_QB)
    stamp(5)
    bwo_stage()
    A("s_waitcnt vmcnt(0)\ns_barrier")
    bwo_transpose()
    LG = int(math.log2(G))
    RS = 1024 * NS
    NR = 16
    A(f"s_and_b32 s70, s72, {NS-1}\ns_lshr_b32 s71, s72, {3+LG}")
    A(f"s_bfe_u32 s24, s72, {LNS | ((3 - LNS) << 16):#x}\ns_lshl_b32 s24, s24, {LNS-1}\ns_add_u32 s71, s71, s24")
    A(f"s_bfe_u32 s75, s72, {3 | (LG << 16):#x}")
    A("s_lshl_b32 s30, s71, 22")
    srd(4, P_CKV, 1 << 22, add="s30")
    A(f"s_mul_i32 s32, s3, {NR*RS}\ns_lshl_b32 s24, s70, 10\ns_add_u32 s32, s32, s24\ns_mul_i32 s34, s3, {NR*CROW}")

    def c_row(r):
        A("buffer_load_dwordx4 v2, s[4:7], s32 offen lds")
        A(f"s_add_u32 m0, m0, {CROW}\ns_add_u32 s32, s32, {RS if r < NR - 1 else (3*NR + 1)*RS}")

    A("s_waitcnt lgkmcnt(0)\ns_barrier")
    A("s_mov_b32 m0, s34")
    for r in range(NR):
        c_row(r)
    A("s_lshr_b32 s28, s3, 1\ns_and_b32 s29, s3, 1")
    A(f"v_and_b32 v3, 15, v0\nv_lshrrev_b32 v4, 4, v0\nv_mul_u32_u24 v19, {CROW}, v3\nv_lshl_add_u32 v19, v4, 4, v19")
    A(f"v_lshrrev_b32 v5, 2, v0\nv_mul_u32_u24 v20, {CROW}, v5\nv_and_b32 v5, 3, v0\nv_lshl_add_u32 v20, v5, 3, v20")
    A("s_lshl_b32 s24, s29, 9\nv_add_u32 v20, s24, v20")
    A(f"v_and_b32 v3, {HN-1}, v0\nv_mul_u32_u24 v18, {CROW}, v3\nv_lshl_add_u32 v18, v4, 4, v18\nv_add_u32 v18, {3*CTILE}, v18")
    A(f"s_mul_i32 s24, s28, {CTILE}\nv_add_u32 v19, s24, v19\nv_add_u32 v20, s24, v20")
    for r in range(64):
        A(f"v_mov_b32 v{ACC+r}, 0")
    A("v_mov_b32 v22, 0xff800000\nv_mov_b32 v23, 0")
    await_flag(C_Q)
    stamp(2)
    NQ = HN // 4
    A(f"s_lshl_b32 s24, s71, {RQ+5}\ns_mul_i32 s25, s3, {NQ << RQ}\ns_add_u32 s24, s24, s25\ns_add_u32 s24, s24, {WS_QA:#x}")
    A(f"s_mul_i32 s25, s75, {HN << RQ}\ns_add_u32 s24, s24, s25")
    for r in range(0 if 'Q' in o['drop'] else NQ):
        A(f"buffer_load_dwordx4 {vr(ST+4*r)}, v2, s[12:15], s24 offen sc1\ns_add_u32 s24, s24, {1 << RQ}")
    A(f"s_mul_i32 s24, s3, {NQ*CROW}\ns_add_u32 s24, s24, {3*CTILE}\nv_add_u32 v3, s24, v2")
    for r in range(NQ):
        A(f"s_waitcnt vmcnt({NQ-1-r})\nds_write_b128 v3, {vr(ST+4*r)} offset:{r*CROW}")
    A("s_waitcnt lgkmcnt(0)\ns_barrier")
    for k in range(16):
        A(f"ds_read_b128 {ar(4*k)}, v18 offset:{64*k}")
    publish_xcc()
    STEP = 2 * CTILE
    A(f"s_mov_b32 s27, 0\ns_mov_b32 s33, {4*CTILE - STEP}\ns_mov_b32 s35, 0")
    A("s_waitcnt lgkmcnt(0)")
    A("L_CT:")
    A("s_waitcnt vmcnt(0)\ns_barrier")
    A("v_add_u32 v24, s35, v19\nv_add_u32 v25, s35, v20")

    def qk_read(n):
        A(f"ds_read_b128 {vr(ST+4*(n & 7))}, v24 offset:{64*(n >> 1) + 16*CROW*(n & 1)}")
    for n in range(7):
        qk_read(n)
    A("s_add_u32 m0, s33, s34")
    A(f"s_mov_b32 s33, s35\ns_add_u32 s35, s35, {STEP}\ns_cmp_eq_u32 s35, {4*CTILE}\ns_cselect_b32 s35, 0, s35")
    trs = [f"ds_read_b64_tr_b16 {vr(TR+4*ct+2*z, 2)}, v25 offset:{16*z*CROW + 32*ct}" for ct in range(16) for z in range(2)]
    rows = list(range(NR))
    for n in range(32):
        D = SS + 4 * (n & 1)
        A("s_waitcnt lgkmcnt(6)")
        A(f"v_mfma_f32_16x16x32_bf16 {vr(D)}, {vr(ST+4*(n & 7))}, {ar(4*(n >> 1))}, {'0' if n < 2 else vr(D)}")
        if n + 7 < 32:
            qk_read(n + 7)
        else:
            A(trs.pop(0))
        if o["cq"] and n % (32 // o["cq"]) == 0:
            c_row(rows.pop(0))
    for _ in range(7):
        A(trs.pop(0))
    sm = [f"v_max3_f32 v3, v{SS}, v{SS+1}, v22"]
    sm += [f"v_max3_f32 v3, v3, v{SS+r}, v{SS+r+1}" for r in range(2, 8, 2)]
    sm += ["v_mov_b32 v4, v3", "v_permlane32_swap_b32 v3, v4", "v_max_f32 v3, v3, v4"]
    sm += ["v_mov_b32 v4, v3", "v_permlane16_swap_b32 v3, v4", "v_max_f32 v3, v3, v4"]
    sm += ["v_sub_f32 v4, v22, v3", "v_exp_f32 v4, v4", "v_mov_b32 v22, v3"]
    sm += [f"v_sub_f32 v{SS+r}, v{SS+r}, v3" for r in range(8)]
    sm += [f"v_exp_f32 v{SS+r}, v{SS+r}" for r in range(8)]
    sm += [f"v_cvt_pk_bf16_f32 v{PP+i}, v{SS+2*i}, v{SS+2*i+1}" for i in range(4)]
    for n, ins in enumerate(sm):
        A(ins)
        if trs and n >= 4:
            A(trs.pop(0))
        if rows and n % 2 == 0:
            c_row(rows.pop(0))
    assert not trs and not rows
    ls = [f"v_fma_f32 v23, v23, v4, v{SS}"] + [f"v_add_f32 v23, v23, v{SS+r}" for r in range(1, 8)]

    def rescale(ct):
        if o["pk"]:
            for r in range(0, 4, 2):
                A(f"v_pk_mul_f32 {vr(ACC+4*ct+r,2)}, {vr(ACC+4*ct+r,2)}, v[4:5] op_sel_hi:[1,0]")
        else:
            for r in range(4):
                A(f"v_mul_f32 v{ACC+4*ct+r}, v{ACC+4*ct+r}, v4")
    rescale(0)
    rescale(1)
    A("s_waitcnt lgkmcnt(0)")
    for ct in range(16):
        A(f"v_mfma_f32_16x16x32_bf16 {vr(ACC+4*ct)}, {vr(TR+4*ct)}, {vr(PP)}, {vr(ACC+4*ct)}")
        if ct + 2 < 16:
            rescale(ct + 2)
    for ins in ls:
        A(ins)
    A(f"s_add_u32 s27, s27, 1\ns_cmp_lt_u32 s27, {8*G}\ns_cbranch_scc1 L_CT")
    stamp(3)
    A("s_waitcnt vmcnt(0)\ns_barrier")
    A("v_mov_b32 v4, v23\nv_permlane32_swap_b32 v23, v4\nv_add_f32 v23, v23, v4")
    A("v_mov_b32 v4, v23\nv_permlane16_swap_b32 v23, v4\nv_add_f32 v23, v23, v4")
    XM, XA_, XT = 0, 4096, 40960
    A(f"s_lshl_b32 s24, s3, 9\nv_lshl_add_u32 v3, v0, 3, s24\nds_write_b64 v3, v[22:23] offset:{XM}")
    A("v_xor_b32 v3, 0x400, v3\ns_waitcnt lgkmcnt(0)\ns_barrier")
    A(f"ds_read_b64 v[6:7], v3 offset:{XM}\ns_waitcnt lgkmcnt(0)")
    A("v_max_f32 v3, v22, v6\nv_sub_f32 v4, v22, v3\nv_sub_f32 v6, v6, v3\nv_exp_f32 v4, v4\nv_exp_f32 v6, v6")
    A("v_mov_b32 v22, v3\nv_mul_f32 v23, v23, v4\nv_fmac_f32 v23, v7, v6")
    A(f"v_and_b32 v3, 15, v0\nv_lshlrev_b32 v5, 3, v3")
    A(f"s_lshl_b32 s24, s71, {LNS}\ns_add_u32 s31, s24, s70\ns_lshl_b32 s24, s31, 8\ns_mul_i32 s25, s75, {HN*8}\ns_add_u32 s24, s24, s25\ns_add_u32 s24, s24, {WS_PML:#x}")
    A("s_cmp_lg_u32 s3, 0\ns_cbranch_scc1 L_C_ml")
    if 'm' not in o['drop']:
        A(f"s_mov_b64 exec, {(1 << HN) - 1:#x}\nbuffer_store_dwordx2 v[22:23], v5, s[12:15], s24 offen sc1\ns_mov_b64 exec, -1")
    A("L_C_ml:")
    for r in range(0, 64, 2):
        A(f"v_pk_mul_f32 {vr(ACC+r,2)}, {vr(ACC+r,2)}, v[4:5] op_sel_hi:[1,0]")
    A(f"s_lshl_b32 s24, s3, 13\ns_add_u32 s24, s24, {XA_}\nv_add_u32 v6, s24, v2")
    A(f"s_xor_b32 s24, s3, 2\ns_lshl_b32 s24, s24, 13\ns_add_u32 s24, s24, {XA_}\nv_add_u32 v7, s24, v2")
    A("s_cmp_lg_u32 s28, 0\ns_cbranch_scc1 L_C_x1")
    for k in range(8):
        A(f"ds_write_b128 v6, {vr(ACC+32+4*k)} offset:{1024*k}")
    A("s_branch L_C_x2\nL_C_x1:")
    for k in range(8):
        A(f"ds_write_b128 v6, {vr(ACC+4*k)} offset:{1024*k}")
    A("s_waitcnt lgkmcnt(0)")
    for r in range(32):
        A(f"v_mov_b32 v{ACC+r}, v{ACC+32+r}")
    A("L_C_x2:\ns_waitcnt lgkmcnt(0)\ns_barrier")
    for k in range(8):
        A(f"ds_read_b128 {vr(TR+4*k)}, v7 offset:{1024*k}")
    TROW = 272
    A(f"v_lshrrev_b32 v4, 4, v0\nv_mul_u32_u24 v3, {TROW}, v3\nv_lshl_add_u32 v3, v4, 3, v3")
    A(f"s_mul_i32 s24, s3, {16*TROW}\ns_add_u32 s24, s24, {XT}\nv_add_u32 v3, s24, v3")
    for k in range(8):
        r = ACC + 4 * k
        d = ST + 2 * k
        A(f"s_waitcnt lgkmcnt(7)")
        for e in range(4):
            A(f"v_add_f32 v{r+e}, v{r+e}, v{TR+4*k+e}")
        A(f"v_cvt_pk_bf16_f32 v{d}, v{r}, v{r+1}\nv_cvt_pk_bf16_f32 v{d+1}, v{r+2}, v{r+3}")
        A(f"ds_write_b64 v3, {vr(d,2)} offset:{32*k}")
    A(f"v_and_b32 v5, 15, v0\nv_mul_u32_u24 v3, {TROW}, v4\nv_lshl_add_u32 v3, v5, 4, v3\nv_add_u32 v3, s24, v3")
    HS, US = RP, RP + 5
    A(f"v_lshlrev_b32 v4, {HS}, v4\nv_lshl_add_u32 v4, v5, 4, v4")
    A("s_waitcnt lgkmcnt(0)")
    for k in range(NQ):
        A(f"ds_read_b128 {vr(SS+4*k)}, v3 offset:{4*k*TROW}")
    A(f"s_lshl_b32 s24, s31, {US}\ns_lshl_b32 s25, s29, 9\ns_add_u32 s24, s24, s25\ns_lshl_b32 s25, s28, 8\ns_add_u32 s24, s24, s25")
    A(f"s_mul_i32 s25, s75, {HN << HS}\ns_add_u32 s24, s24, s25\ns_add_u32 s24, s24, {WS_PART:#x}")
    for k in range(NQ):
        A(f"s_waitcnt lgkmcnt({NQ-1-k})")
        if 'p' not in o['drop']:
            A(f"buffer_store_dwordx4 {vr(SS+4*k)}, v4, s[12:15], s24 offen sc1 nt")
        A(f"s_add_u32 s24, s24, {4 << HS}")
    signal(C_P, 32, only_w=True)
    stamp(4)
    A("s_branch L_R")
    A("L_last:")
    A("s_endpgm")

    ref = open(os.path.join(os.path.dirname(os.path.abspath(__file__)), "..", NAME + ".s.ref")).read().splitlines()
    head = [l for l in ref if l.startswith(";") and "@launch" not in l]
    head.append(f"; @launch grid=(256,1,1) block=(256,1,1) lds={LDS_BYTES}")
    pre = f'.amdgcn_target "amdgcn-amd-amdhsa--gfx950"\n.text\n.globl {NAME}_kernel\n.p2align 8\n.type {NAME}_kernel,@function\n'
    post = f""".section .rodata,"a"
.p2align 6
.amdhsa_kernel {NAME}_kernel
  .amdhsa_next_free_vgpr {448 + 64 * max(0, NB - 2)}
  .amdhsa_next_free_sgpr 102
  .amdhsa_accum_offset 256
  .amdhsa_group_segment_fixed_size 0
  .amdhsa_kernarg_size 112
  .amdhsa_user_sgpr_count 2
  .amdhsa_user_sgpr_kernarg_segment_ptr 1
  .amdhsa_system_sgpr_workgroup_id_x 1
  .amdhsa_float_denorm_mode_32 3
.end_amdhsa_kernel
"""
    return "\n".join(head) + "\n" + pre + A.text() + post


if __name__ == "__main__":
    kw = {}
    out = None
    for a in sys.argv[1:]:
        if "=" in a:
            k, v = a.split("=", 1)
            kw[k] = int(v) if v.lstrip("-").isdigit() else v
        else:
            out = a
    s = gen(**kw)
    if out:
        open(out, "w").write(s)
    else:
        sys.stdout.write(s)
```

```python
import sys, math
from hb import *
from hb import _hip

def gen(wps, depth, chunk, kv="seq", adepth=8, flags="nt", lds=82944, stag=0, amb=32, afirst=1, thr=0, per=2, th0=4, cstr=256, poll=None, psl=16, pstr=0, pinit=0, pfl='sc1', pw=1, scen=None, rper=200, sfl='sc1', ref=0, rstr=256, rdel=0, roff=99, sched=0, apat=None, astr=1, gstr=32, wstr=128, pref=0, prefl='', afl=None, pdep=7, adelay=0, pw16=0, pl2=0, wb=0, same=0, nst=8, gm=None, skew=0, fb=None):
    waves = 4
    nwg = 256
    nA = 256 - 32 * wps
    per_head = wps
    U = depth * chunk // math.gcd(depth, chunk)
    if kv == "alt":
        U = depth * 2 * chunk // math.gcd(depth, 2 * chunk)
    nchunks = -(-(1024 // chunk) // wps)
    L = []
    A = L.append
    A(f"; @launch grid=({nwg},1,1) block=({waves*64},1,1) lds={lds}")
    A('.amdgcn_target "amdgcn-amd-amdhsa--gfx950"\n.text\n.globl mb_kernel\n.p2align 8\n.type mb_kernel,@function\nmb_kernel:')
    A("s_memrealtime s[20:21]")
    A("s_load_dwordx4 s[4:7], s[0:1], 0")
    A("s_load_dwordx4 s[16:19], s[0:1], 16")
    A(f"s_cmp_ge_u32 s2, {nwg}\ns_cbranch_scc1 L_end")
    A("v_lshrrev_b32 v1, 6, v0\ns_nop 0\nv_readfirstlane_b32 s3, v1")
    A("v_and_b32 v0, 63, v0\nv_lshlrev_b32 v1, 4, v0")
    A(f"s_mul_i32 s40, s2, {waves}\ns_add_u32 s40, s40, s3")
    A("v_mov_b32 v2, 0")
    A("s_waitcnt lgkmcnt(0)")
    A("s_mov_b32 s24, s20\ns_mov_b32 s25, s21")
    base = 8
    TV = 4
    def consume(slot):
        for j in range(4):
            A(f"v_xor_b32 v2, v2, v{base+4*slot+j}")
    if nA:
        if afirst:
            A(f"s_cmp_lt_u32 s2, {nA}\ns_cbranch_scc1 L_arole")
            A(f"s_sub_u32 s41, s2, {nA}")
        else:
            A(f"s_cmp_ge_u32 s2, {256-nA}\ns_cbranch_scc1 L_arole")
            A("s_mov_b32 s41, s2")
    else:
        A("s_mov_b32 s41, s2")
    A("s_and_b32 s42, s41, 7\ns_lshr_b32 s43, s41, 3")
    inv = -(-(1 << 32) // per_head)
    A(f"s_mul_hi_u32 s44, s43, {inv}\ns_mul_i32 s45, s44, {per_head}\ns_sub_u32 s45, s43, s45")
    A("s_lshl_b32 s44, s44, 3\ns_add_u32 s44, s44, s42")
    A("s_lshl_b32 s45, s45, 2\ns_add_u32 s45, s45, s3")
    A(f"s_mul_hi_u32 s46, s45, {inv}\ns_mul_i32 s47, s46, {wps}\ns_sub_u32 s47, s45, s47")
    A("s_lshl_b32 s46, s46, 5\ns_add_u32 s46, s46, s44")
    A("s_lshl_b32 s48, s46, 20")
    A("s_add_u32 s8, s4, s48\ns_addc_u32 s9, s5, 0\ns_mov_b32 s10, 0x100000\ns_mov_b32 s11, 0x20000")
    A("s_add_u32 s12, s6, s48\ns_addc_u32 s13, s7, 0\ns_mov_b32 s14, 0x100000\ns_mov_b32 s15, 0x20000")
    if thr and not ref and not sched:
        A(f"s_lshl_b32 s50, s43, 2\ns_add_u32 s50, s50, s3\ns_mul_i32 s50, s50, {cstr}\ns_add_u32 s50, s50, 0x40000")
        A(f"v_mov_b32 v{TV}, s50\nv_mov_b32 v{TV+1}, 1\nv_mov_b32 v{TV+2}, 0")
        A(f"s_mov_b32 s51, 0\ns_mov_b32 s52, 0\ns_mov_b32 s53, {th0}")
    if sched:
        A("s_mov_b32 s51, 0")
    if ref:
        A("s_mov_b32 s56, s16\ns_mov_b32 s57, s17\ns_mov_b32 s58, 0x100000\ns_mov_b32 s59, 0x20000")
        A(f"s_mov_b32 s51, 0\ns_mov_b32 s52, 0\nv_mov_b32 v{TV+2}, 0x7fffffff")
        A(f"s_mul_i32 s60, s42, {rstr}\ns_add_u32 s60, s60, 0x40000")
        A("s_mul_i32 s61, s42, 3\ns_cmp_eq_u32 s61, s43\ns_cselect_b32 s61, 1, 0\ns_cmp_eq_u32 s3, 0\ns_cselect_b32 s61, s61, 0")
    cstride = chunk * 1024 * wps
    span = cstride * nchunks
    A(f"s_mul_i32 s49, s47, {chunk*1024}")
    A(f"s_mul_i32 s31, s46, {stag}")
    A(f"s_mov_b32 s33, {-(-(1<<32)//nchunks)}\ns_mul_hi_u32 s32, s31, s33\ns_mul_i32 s32, s32, {nchunks}\ns_sub_u32 s31, s31, s32")
    A(f"s_mul_i32 s31, s31, {cstride}\ns_mov_b32 s34, s31")
    def load(slot, srd, reg, i):
        A(f"s_add_u32 s26, s49, s{reg}")
        o = (i % chunk) * 1024
        if o >= 4096:
            A(f"s_add_u32 s26, s26, {o - o % 4096}")
        A(f"buffer_load_dwordx4 v[{base+4*slot}:{base+4*slot+3}], v1, s[{srd}:{srd+3}], s26 offen offset:{o % 4096} {flags}")
        if i % chunk == chunk - 1:
            A(f"s_add_u32 s{reg}, s{reg}, {cstride}\ns_cmp_ge_u32 s{reg}, {span}\ns_cselect_b32 s35, {span}, 0\ns_sub_u32 s{reg}, s{reg}, s35")
    n_items = 2 * nchunks * chunk
    def item(i):
        if kv == "alt":
            isv = (i // chunk) % 2
        else:
            isv = i >= n_items // 2
        return (12 if isv else 8), (34 if isv else 31)
    def emit_range(lo, hi, tag):
        n = hi - lo
        iters = n // U
        if iters >= 2:
            A(f"s_mov_b32 s22, {iters}")
            A(f"L_{tag}:")
            if sched:
                A(f"s_add_u32 s51, s51, 1\ns_cmp_lt_u32 s51, {roff}\ns_cbranch_scc1 L_{tag}_thr")
            elif ref:
                A(f"v_readfirstlane_b32 s54, v{TV+2}")
                A(f"s_add_u32 s54, s54, {rdel}\ns_cmp_lt_u32 s54, s51\ns_cselect_b32 s52, 1, 0")
                A("s_add_u32 s51, s51, 1")
                A(f"s_cmp_ge_u32 s51, {roff}\ns_cselect_b32 s52, 0, s52")
                A("s_mov_b64 exec, 1")
                A(f"s_cmp_eq_u32 s61, 0\ns_cbranch_scc1 L_{tag}_now")
                A(f"v_mov_b32 v{TV}, s51\nbuffer_store_dword v{TV}, off, s[56:59], s60 sc1")
                A(f"L_{tag}_now:")
                A(f"s_lshl_b32 s62, s3, 1\ns_add_u32 s62, s62, s51\ns_and_b32 s62, s62, 7\ns_mul_i32 s62, s62, {rstr}\ns_add_u32 s62, s62, 0x40000")
                A(f"buffer_load_dword v{TV+2}, off, s[56:59], s62 sc1")
                A("s_mov_b64 exec, -1")
                A(f"s_cmp_lg_u32 s52, 0\ns_cbranch_scc1 L_{tag}_thr")
            elif thr:
                A(f"s_add_u32 s51, s51, 1\ns_cmp_lt_u32 s51, {per}\ns_cbranch_scc1 L_{tag}_nochk")
                A("s_mov_b32 s51, 0")
                A(f"v_readfirstlane_b32 s54, v{TV+2}")
                A("s_mov_b64 exec, 1")
                A(f"global_atomic_add v{TV+2}, v{TV}, v{TV+1}, s[16:17] sc0")
                A("s_mov_b64 exec, -1")
                A("s_add_u32 s54, s54, 8")
                A("s_cmp_lt_u32 s54, s53\ns_cselect_b32 s52, 1, 0")
                A("s_add_u32 s53, s53, 8")
                A(f"L_{tag}_nochk:")
                A(f"s_cmp_lg_u32 s52, 0\ns_cbranch_scc1 L_{tag}_thr")
            for i in range(lo, lo + U):
                A(f"s_waitcnt vmcnt({depth-1})")
                consume(i % depth)
                srd, reg = item(i + depth); load(i % depth, srd, reg, i + depth)
            if thr:
                A(f"s_branch L_{tag}_bot")
                A(f"L_{tag}_thr:")
                for i in range(lo, lo + U):
                    A(f"s_waitcnt vmcnt({depth-1-thr})")
                    consume(i % depth)
                    srd, reg = item(i + depth); load(i % depth, srd, reg, i + depth)
                A(f"L_{tag}_bot:")
            A(f"s_sub_u32 s22, s22, 1\ns_cmp_lg_u32 s22, 0\ns_cbranch_scc1 L_{tag}")
            lo += iters * U
        for i in range(lo, hi):
            A(f"s_waitcnt vmcnt({depth-1})")
            consume(i % depth)
            srd, reg = item(i + depth); load(i % depth, srd, reg, i + depth)
    if pl2:
        perA = (amb << 20) // nA
        A(f"s_mov_b32 s64, s18\ns_mov_b32 s65, s19\ns_mov_b32 s66, {amb << 20}\ns_mov_b32 s67, 0x20000")
        A("s_lshl_b32 s68, s43, 2\ns_add_u32 s68, s68, s3\ns_and_b32 s69, s68, 7\ns_lshl_b32 s69, s69, 3\ns_add_u32 s69, s69, s42")
        A(f"s_mul_i32 s69, s69, {perA}\ns_lshr_b32 s68, s68, 3\ns_lshl_b32 s68, s68, 10")
        A("L_pf:")
        A(f"s_add_u32 s70, s68, s69\nbuffer_load_dwordx4 v[4:7], v1, s[64:67], s70 offen {prefl}")
        A(f"s_add_u32 s68, s68, {12*1024}\ns_waitcnt vmcnt({pdep})\ns_cmp_lt_u32 s68, {perA}\ns_cbranch_scc1 L_pf")
    if pref:
        nB = 4 * (256 - nA)
        unit = 8192 if pw16 else 1024
        A(f"s_mov_b32 s64, s18\ns_mov_b32 s65, s19\ns_mov_b32 s66, {pref << 20}\ns_mov_b32 s67, 0x20000")
        A(f"s_lshl_b32 s68, s41, 2\ns_add_u32 s68, s68, s3\ns_mul_i32 s68, s68, {unit}\ns_mov_b32 s22, {-(-(pref << 20) // (nB * unit))}")
        if pw16:
            A("v_lshlrev_b32 v3, 7, v0")
        A("L_pf:")
        if pw16:
            A(f"buffer_load_dword v4, v3, s[64:67], s68 offen {prefl}")
        else:
            A(f"buffer_load_dwordx4 v[4:7], v1, s[64:67], s68 offen {prefl}")
        A(f"s_add_u32 s68, s68, {nB * unit}\ns_waitcnt vmcnt({pdep})\ns_sub_u32 s22, s22, 1\ns_cmp_lg_u32 s22, 0\ns_cbranch_scc1 L_pf")
    for i in range(depth):
        srd, reg = item(i); load(i % depth, srd, reg, i)
    if kv == "alt":
        emit_range(0, n_items - depth, "k")
    else:
        emit_range(0, n_items // 2 - depth, "k")
        emit_range(n_items // 2 - depth, n_items - depth, "v")
    A("s_branch L_fin")
    if nA:
        A("L_arole:")
        if afirst:
            A("s_mov_b32 s41, s2")
        else:
            A(f"s_sub_u32 s41, s2, {256-nA}")
        if scen is not None:
            A("s_cmp_ge_u32 s3, 1\ns_cbranch_scc1 L_fin")
            A("s_mov_b32 s8, s18\ns_mov_b32 s9, s19\ns_mov_b32 s10, 0x4000000\ns_mov_b32 s11, 0x20000")
            A("v_mov_b32 v8, 1\nv_mov_b32 v9, 1\nv_mov_b32 v10, 1\nv_mov_b32 v11, 1")
            A(f"s_mov_b32 s22, 0\ns_mov_b32 s23, {rper}\ns_mov_b32 s55, 200000")
            if skew:
                A(f"s_mul_i32 s27, s41, {skew}\ns_sub_u32 s23, s23, s27")
            if gm:
                A(f"v_and_b32 v1, 0xf0, v1\nv_bfe_u32 v3, v0, 4, 1\nv_mul_u32_u24 v3, {gm[0]}, v3\nv_xor_b32 v1, v1, v3\nv_bfe_u32 v3, v0, 5, 1\nv_mul_u32_u24 v3, {gm[1]}, v3\nv_xor_b32 v1, v1, v3")
            A("L_s:")
            A("s_mov_b32 s26, 0" if same else "s_lshl_b32 s26, s22, 20")
            polled = scen in ("flag", "atom_polled", "st64_polled")
            if scen == "remote":
                A("s_xor_b32 s27, s41, 1\ns_lshl_b32 s27, s27, 13\ns_add_u32 s27, s27, s26")
                for k in range(8):
                    A(f"buffer_load_dwordx4 v[12:15], v1, s[8:11], s27 offen sc1\ns_add_u32 s27, s27, 1024")
                A("s_waitcnt vmcnt(0)")
            A("L_sw:")
            if polled:
                A("s_mov_b64 exec, 1\ns_sub_u32 s27, s26, 0x100000\ns_max_i32 s27, s27, 0")
                A("buffer_load_dword v12, off, s[8:11], s26 sc1\nbuffer_load_dword v12, off, s[8:11], s27 sc1\ns_waitcnt vmcnt(0)\ns_mov_b64 exec, -1")
            A(f"s_sleep {psl}\ns_memrealtime s[20:21]\ns_waitcnt lgkmcnt(0)\ns_sub_u32 s27, s20, s24")
            A("s_sub_u32 s55, s55, 1\ns_cmp_eq_u32 s55, 0\ns_cbranch_scc1 L_fin")
            A("s_cmp_lt_u32 s27, s23\ns_cbranch_scc1 L_sw")
            if scen == "st8":
                A("s_lshl_b32 s27, s41, 4\ns_add_u32 s27, s27, s26\ns_mov_b64 exec, 1")
                A(f"buffer_store_dwordx4 v[8:11], off, s[8:11], s27 {sfl}")
            elif scen == "st8x":
                A("s_lshr_b32 s27, s41, 3\ns_lshl_b32 s27, s27, 4\ns_and_b32 s28, s41, 7\ns_lshl_b32 s28, s28, 7\ns_add_u32 s27, s27, s28\ns_add_u32 s27, s27, s26\ns_mov_b64 exec, 1")
                A(f"buffer_store_dwordx4 v[8:11], off, s[8:11], s27 {sfl}")
            elif scen in ("st64", "st64_polled"):
                A("s_and_b32 s27, s41, 31\ns_lshl_b32 s27, s27, 2\ns_add_u32 s27, s27, s26\ns_mov_b64 exec, 1")
                A(f"buffer_store_dword v8, off, s[8:11], s27 {sfl}")
            elif scen == "priv":
                A("s_lshl_b32 s27, s41, 7\ns_add_u32 s27, s27, s26\ns_mov_b64 exec, 1")
                A(f"buffer_store_dword v8, off, s[8:11], s27 {sfl}")
            elif scen == "dep":
                for k in range(nst):
                    A(f"s_mul_i32 s28, s41, {nst}\ns_add_u32 s28, s28, {k}\ns_lshl_b32 s28, s28, 2\nv_lshrrev_b32 v12, 4, v0\nv_add_u32 v12, s28, v12")
                    A("v_and_b32 v3, 0xf0, v1")
                    for n, m in enumerate(fb):
                        A(f"v_bfe_u32 v13, v12, {n}, 1\nv_mul_u32_u24 v13, {m}, v13\nv_xor_b32 v3, v3, v13")
                    A("s_lshl_b32 s27, s22, 22")
                    A(f"buffer_store_dwordx4 v[8:11], v3, s[8:11], s27 offen {sfl}")
            elif scen == "grp":
                top = [m.bit_length() - 1 for m in gm]
                free = [b for b in range(8, 24) if b not in top]
                for k in range(nst):
                    A(f"s_lshl_b32 s28, s22, 6\ns_add_u32 s28, s28, s41\ns_mul_i32 s28, s28, {nst >> (len(gm) - 2)}\ns_add_u32 s28, s28, {k >> (len(gm) - 2)}\ns_mov_b32 s27, 0")
                    for n, b in enumerate(free[:13]):
                        A(f"s_bfe_u32 s29, s28, {n | (1 << 16)}\ns_lshl_b32 s29, s29, {b}\ns_or_b32 s27, s27, s29")
                    x = 0
                    for n, m in enumerate(gm[2:]):
                        if (k >> n) & 1:
                            x ^= m
                    A(f"s_xor_b32 s27, s27, {x}\nv_xor_b32 v3, s27, v1")
                    A(f"buffer_store_dwordx4 v[8:11], v3, s[8:11], 0 offen {sfl}")
            elif scen in ("remote", "local"):
                A("s_lshl_b32 s27, s41, 13\ns_add_u32 s27, s27, s26")
                for k in range(nst):
                    A(f"buffer_store_dwordx4 v[8:11], v1, s[8:11], s27 offen {sfl}\ns_add_u32 s27, s27, 1024")
                if wb:
                    A("s_waitcnt vmcnt(0)\nbuffer_wbl2 sc1")
            elif scen == "flag":
                A("s_cmp_lg_u32 s41, 0\ns_cbranch_scc1 L_sn\ns_mov_b64 exec, 1")
                A(f"buffer_store_dword v8, off, s[8:11], s26 {sfl}")
                A("L_sn:")
            elif scen in ("atom", "atom_polled"):
                A("s_mov_b64 exec, 1\nbuffer_atomic_add v8, off, s[8:11], s26")
            A("s_waitcnt vmcnt(0)\ns_mov_b64 exec, -1")
            A(f"s_add_u32 s22, s22, 1\ns_add_u32 s23, s23, {rper}\ns_cmp_lt_u32 s23, 3300\ns_cbranch_scc1 L_s")
            A("s_branch L_fin")
        if poll is not None:
            A(f"s_cmp_ge_u32 s3, {pw}\ns_cbranch_scc1 L_fin")
            if poll:
                A(f"s_mov_b32 s8, s16\ns_mov_b32 s9, s17\ns_mov_b32 s10, 0x100000\ns_mov_b32 s11, 0x20000")
                A(f"s_mul_i32 s26, s41, {pstr}\ns_add_u32 s26, s26, 0x80000")
                A("s_mov_b64 exec, 1\nv_mov_b32 v8, 1")
                if pinit == 1:
                    A("buffer_atomic_add v8, off, s[8:11], s26")
                elif pinit == 2:
                    A("buffer_store_dword v8, off, s[8:11], s26 sc1")
                A("s_waitcnt vmcnt(0)\ns_mov_b32 s22, 20000")
                A("L_p:")
                if poll == "atomic":
                    A("v_mov_b32 v9, 0\nbuffer_atomic_add v9, off, s[8:11], s26 sc0")
                else:
                    A(f"buffer_load_dword v9, off, s[8:11], s26 {pfl}")
                A(f"s_waitcnt vmcnt(0)\ns_sleep {psl}\nv_add_u32 v2, 1, v2")
                A("s_memrealtime s[20:21]\ns_waitcnt lgkmcnt(0)\ns_sub_u32 s27, s20, s24")
                A("s_cmp_gt_u32 s27, 3400\ns_cbranch_scc1 L_px")
                A("s_sub_u32 s22, s22, 1\ns_cmp_lg_u32 s22, 0\ns_cbranch_scc1 L_p")
                A("L_px:\ns_mov_b64 exec, -1")
            A("s_branch L_fin")
        per = (amb << 20) // nA
        if afl is not None:
            flags = afl
        if adelay:
            A(f"L_ad:\ns_sleep 4\ns_memrealtime s[20:21]\ns_waitcnt lgkmcnt(0)\ns_sub_u32 s27, s20, s24\ns_cmp_lt_u32 s27, {adelay}\ns_cbranch_scc1 L_ad")
        A(f"s_mov_b32 s8, s18\ns_mov_b32 s9, s19\ns_mov_b32 s10, {amb << 20}\ns_mov_b32 s11, 0x20000")
        A(f"s_mul_i32 s26, s41, {per}\ns_lshl_b32 s27, s3, 12\ns_add_u32 s26, s26, s27")
        if apat == "lin":
            A(f"s_mul_i32 s28, s41, {per}\ns_mul_i32 s26, s3, {astr*1024}")
        elif apat == "w":
            A(f"s_and_b32 s27, s41, 31\ns_and_b32 s28, s27, 7\ns_lshl_b32 s28, s28, 2\ns_lshr_b32 s27, s27, 3\ns_add_u32 s28, s28, s27\ns_lshl_b32 s28, s28, 8")
            A(f"s_lshr_b32 s27, s41, 5\ns_lshl_b32 s27, s27, 24\ns_add_u32 s28, s28, s27\ns_mul_i32 s27, s3, {wstr*8192}\ns_add_u32 s28, s28, s27")
            A(f"v_lshrrev_b32 v3, 4, v0\nv_mul_u32_u24 v3, {gstr*8192}, v3\nv_and_b32 v1, 15, v0\nv_lshl_add_u32 v1, v1, 4, v3")
            A("s_mov_b32 s26, 0\ns_mov_b32 s29, 0")
        assert adepth % 4 == 0
        def aload(i):
            if apat == "lin":
                A(f"s_add_u32 s27, s26, s28")
                A(f"buffer_load_dwordx4 v[{base+4*(i%adepth)}:{base+4*(i%adepth)+3}], v1, s[8:11], s27 offen {flags}")
                A(f"s_add_u32 s26, s26, {4*astr*1024}\ns_and_b32 s26, s26, {per-1}")
                return
            if apat == "w":
                A(f"s_and_b32 s27, s29, 31\ns_mul_i32 s27, s27, {astr*8192}\ns_lshr_b32 s26, s29, 5\ns_lshl_b32 s26, s26, 22\ns_add_u32 s27, s27, s26\ns_add_u32 s27, s27, s28")
                A(f"buffer_load_dwordx4 v[{base+4*(i%adepth)}:{base+4*(i%adepth)+3}], v1, s[8:11], s27 offen {flags}")
                A("s_add_u32 s29, s29, 1")
                return
            A(f"buffer_load_dwordx4 v[{base+4*(i%adepth)}:{base+4*(i%adepth)+3}], v1, s[8:11], s26 offen offset:{(i%4)*1024} {flags}")
            if i % 4 == 3:
                A("s_add_u32 s26, s26, 16384")
        for i in range(adepth):
            aload(i)
        its = per // 4 // 1024 // adepth - 1
        assert its >= 1
        A(f"s_mov_b32 s22, {its}")
        A("L_a:")
        for i in range(adepth):
            A(f"s_waitcnt vmcnt({adepth-1})")
            consume(i)
            aload(i)
        A("s_sub_u32 s22, s22, 1\ns_cmp_lg_u32 s22, 0\ns_cbranch_scc1 L_a")
    A("L_fin:")
    A("s_waitcnt vmcnt(0)")
    md = max(depth, adepth)
    A("s_memrealtime s[20:21]")
    A("s_waitcnt lgkmcnt(0)")
    r = (base + 4 * md + 3) // 4 * 4
    A("s_getreg_b32 s30, hwreg(HW_REG_XCC_ID, 0, 4)")
    A(f"v_mov_b32 v{r}, s24\nv_mov_b32 v{r+1}, s30\nv_mov_b32 v{r+2}, s20\nv_mov_b32 v{r+3}, v2")
    A("s_lshl_b32 s40, s40, 4\nv_mov_b32 v3, s40")
    A("v_cmp_eq_u32 vcc, 0, v0\ns_and_saveexec_b64 s[28:29], vcc")
    A(f"global_store_dwordx4 v3, v[{r}:{r+3}], s[16:17]")
    A("L_end:\ns_endpgm")
    nv = r + 4
    A(f""".section .rodata,"a"
.p2align 6
.amdhsa_kernel mb_kernel
  .amdhsa_next_free_vgpr {nv}
  .amdhsa_next_free_sgpr 72
  .amdhsa_accum_offset {min((nv + 3) // 4 * 4,256)}
  .amdhsa_group_segment_fixed_size 0
  .amdhsa_kernarg_size 32
  .amdhsa_user_sgpr_count 2
  .amdhsa_user_sgpr_kernarg_segment_ptr 1
  .amdhsa_system_sgpr_workgroup_id_x 1
.end_amdhsa_kernel""")
    return "\n".join(L) + "\n", (256 << 20) + ((amb << 20) if nA else 0), nA, afirst

def main():
    T = 128 << 20
    cfgs = eval(open(sys.argv[1]).read())
    if "--asm-only" in sys.argv:
        for i, c in enumerate(cfgs):
            asm = gen(**c)[0]
            assemble(asm, "mb_kernel", 4, f"mb_{i}")
        print("ok"); return
    K, V, K0, V0 = (DeviceBuffer(T) for _ in range(4))
    X = DeviceBuffer(64 << 20)
    ws = DeviceBuffer(512 << 20); st = DeviceBuffer(1 << 20)
    rnd = np.random.randint(0, 2**32, size=T // 4, dtype=np.uint32)
    for b in (K0, V0):
        ck(_hip.hipMemcpy(ctypes.c_void_p(b.ptr), rnd.ctypes.data_as(ctypes.c_void_p), T, 1))
    ka = struct.pack("<4Q", K.ptr, V.ptr, st.ptr, X.ptr)
    ks = []
    for i, c in enumerate(cfgs):
        asm, nbytes, nA, af = gen(**c)
        co = assemble(asm, "mb_kernel", 4, f"mb_{i}")
        ks.append((c, AsmKernel(co, "mb_kernel"), nbytes, nA, af))
    e0, e1 = Ev(), Ev()
    rf = ReadFlush()
    res = {i: [] for i in range(len(ks))}
    for rep in range(21):
        for i, (c, k, nbytes, nA, af) in enumerate(ks):
            d2d(X, K0, 64 << 20); d2d(K, K0); d2d(V, V0); memset(ws, rep + 1)
            if '--rd' in sys.argv: rf()
            memset(st, 0)
            sync()
            e0.rec()
            k.launch((256, 1, 1), (256, 1, 1), ka, 82944)
            e1.rec()
            tev = e1.since(e0)
            s = read(st, np.uint32, 1024 * 4).reshape(1024, 4).astype(np.int64)
            t0 = s[:, 0].min()
            d = ((s[:, 2] - t0) & 0xffffffff).reshape(256, 4).max(1) / 100.
            if af: da, db = d[:nA], d[nA:]
            else: da, db = d[256 - nA:], d[:256 - nA]
            res[i].append((tev, db.max(), db.mean(), db.min(), da.max() if nA else 0, s[0, 3] if c.get('poll') else (da.mean() if nA else 0)))
    for i, (c, k, nbytes, nA, af) in enumerate(ks):
        a = np.array(res[i][1:])
        m = np.median(a, axis=0)
        print(f"{str(c):110s} ev {m[0]:6.1f} kern {m[1]:6.2f} (min {a[:,1].min():6.2f}) Bmean {m[2]:6.2f} Bfirst {m[3]:6.2f} Amax {m[4]:6.2f} Amean {m[5]:6.2f} {nbytes/m[1]/1e6:5.2f} TB/s")

if __name__ == '__main__':
    main()
```

```python
import sys, math
from hb import *
from hb import _hip

def gen(depth=8, chunk=1, seqb=1, seqh=1, stag=0, flags="nt", nwg=192, order="kv", xbits=None, xst=0, lst=0, xmask=255, ob=0, ost=0, wmap=0, bar=0, wb=0):
    per_head = nwg // 32
    W = per_head * seqb * seqh
    nchunks = -(-(1024 // chunk) // W)
    nl = nchunks * chunk
    nseq = seqb * seqh
    L = []
    A = L.append
    A("; @launch grid=(256,1,1) block=(256,1,1) lds=82944")
    A('.amdgcn_target "amdgcn-amd-amdhsa--gfx950"\n.text\n.globl mb_kernel\n.p2align 8\n.type mb_kernel,@function\nmb_kernel:')
    A("s_memrealtime s[20:21]\ns_load_dwordx4 s[4:7], s[0:1], 0\ns_load_dwordx2 s[16:17], s[0:1], 16")
    A(f"s_cmp_ge_u32 s2, {nwg}\ns_cbranch_scc1 L_end")
    A(f"s_and_b32 s3, s2, 7\ns_bitcmp0_b32 {xmask}, s3\ns_cbranch_scc1 L_end")
    A("v_lshrrev_b32 v1, 6, v0\ns_nop 0\nv_readfirstlane_b32 s3, v1\nv_and_b32 v0, 63, v0\nv_lshlrev_b32 v1, 4, v0\nv_mov_b32 v2, 0")
    A("s_lshl_b32 s40, s2, 2\ns_add_u32 s40, s40, s3")
    A("s_and_b32 s42, s2, 7\ns_lshr_b32 s43, s2, 3\ns_lshl_b32 s43, s43, 2\ns_add_u32 s43, s43, s3")
    A(f"s_mul_hi_u32 s44, s43, {-(-(1 << 32) // W)}\ns_mul_i32 s45, s44, {W}\ns_sub_u32 s45, s43, s45")
    if wmap:
        A("s_lshr_b32 s43, s2, 3\ns_mul_hi_u32 s44, s43, 0x55555556\ns_mul_i32 s45, s44, 3\ns_sub_u32 s45, s43, s45")
        A("s_lshl_b32 s45, s45, 1\ns_and_b32 s47, s3, 1\ns_add_u32 s45, s45, s47")
        A(f"s_lshr_b32 s47, s3, 1\ns_lshl_b32 s47, s47, {wmap-1}\ns_and_b32 s48, s44, {(1 << (wmap-1)) - 1}\ns_lshr_b32 s44, s44, {wmap-1}\ns_lshl_b32 s44, s44, {wmap}\ns_or_b32 s44, s44, s47\ns_or_b32 s44, s44, s48")
    if wb:
        A(f"s_lshr_b32 s43, s2, 3\ns_mul_hi_u32 s44, s43, {-(-(1 << 32) // W)}\ns_mul_i32 s45, s44, {W}\ns_sub_u32 s45, s43, s45")
        A("s_lshl_b32 s47, s3, 2\ns_or_b32 s44, s44, s47")
    gb = 4 // seqb
    A(f"s_and_b32 s46, s44, {gb-1}\ns_mul_i32 s46, s46, {seqb}")
    A(f"s_lshr_b32 s47, s44, {int(math.log2(gb))}\ns_mul_i32 s47, s47, {seqh}\ns_lshl_b32 s48, s42, 2\ns_add_u32 s47, s47, s48")
    A("s_lshl_b32 s46, s46, 5\ns_add_u32 s46, s46, s47")
    if xbits is not None:
        rest = [b for b in range(7) if b not in xbits]
        A("s_mov_b32 s46, 0")
        for n, b in enumerate(xbits):
            A(f"s_bfe_u32 s47, s42, {n | (1 << 16)}\ns_lshl_b32 s47, s47, {b}\ns_or_b32 s46, s46, s47")
        for n, b in enumerate(rest):
            A(f"s_bfe_u32 s47, s44, {n | (1 << 16)}\ns_lshl_b32 s47, s47, {b}\ns_or_b32 s46, s46, s47")
    cstride = chunk * 1024 * W
    span = cstride * nchunks
    A(f"s_mul_i32 s49, s45, {chunk*1024}")
    A(f"s_mul_i32 s31, s46, {stag}\ns_mov_b32 s33, {-(-(1<<32)//nchunks)}\ns_mul_hi_u32 s32, s31, s33\ns_mul_i32 s32, s32, {nchunks}\ns_sub_u32 s31, s31, s32")
    if xst:
        A(f"s_lshl_b32 s47, s42, 2\ns_lshr_b32 s47, 0x7d28f5b0, s47\ns_and_b32 s47, s47, 15\ns_mul_i32 s31, s47, {xst}")
    if ost:
        A(f"s_bfe_u32 s47, s46, {ob | (1 << 16)}\ns_mul_i32 s31, s47, {ost}")
    if lst:
        A(f"s_mul_i32 s47, s46, 0x9e37\ns_lshr_b32 s47, s47, 5\ns_and_b32 s47, s47, 15\ns_mul_i32 s31, s47, {lst}")
    A(f"s_mul_i32 s31, s31, {cstride}")
    A("s_waitcnt lgkmcnt(0)\ns_mov_b32 s24, s20\ns_mov_b32 s10, 0x100000\ns_mov_b32 s11, 0x20000")
    A("s_mov_b32 s50, 0\ns_mov_b32 s51, 0")
    def setsrd():
        if order == "kv":
            A(f"s_cmp_ge_u32 s50, {nseq}\ns_cselect_b64 s[12:13], s[6:7], s[4:5]\ns_and_b32 s52, s50, {nseq-1}")
        else:
            A("s_bitcmp1_b32 s50, 0\ns_cselect_b64 s[12:13], s[6:7], s[4:5]\ns_lshr_b32 s52, s50, 1")
        A(f"s_and_b32 s53, s52, {seqb-1}\ns_lshl_b32 s53, s53, 5\ns_lshr_b32 s52, s52, {int(math.log2(seqb))}\ns_add_u32 s52, s52, s53\ns_add_u32 s52, s52, s46")
        A("s_and_b32 s52, s52, 127\ns_lshl_b32 s52, s52, 20\ns_add_u32 s8, s12, s52\ns_addc_u32 s9, s13, 0")
        A(f"s_cmp_ge_u32 s50, {2*nseq}\ns_cselect_b32 s10, 0, s10")
    setsrd()
    uid = [0]
    def load(slot, i):
        A("s_add_u32 s26, s49, s31")
        A(f"buffer_load_dwordx4 v[{4+4*slot}:{7+4*slot}], v1, s[8:11], s26 offen offset:{(i % chunk)*1024} {flags}")
        if i % chunk == chunk - 1:
            uid[0] += 1
            A(f"s_add_u32 s31, s31, {cstride}\ns_cmp_ge_u32 s31, {span}\ns_cselect_b32 s35, {span}, 0\ns_sub_u32 s31, s31, s35")
            A(f"s_add_u32 s51, s51, 1\ns_cmp_lt_u32 s51, {nchunks}\ns_cbranch_scc1 L_n{uid[0]}")
            A("s_mov_b32 s51, 0\ns_add_u32 s50, s50, 1")
            setsrd()
            A(f"L_n{uid[0]}:")
    U = depth * chunk // math.gcd(depth, chunk)
    for i in range(depth):
        load(i, i)
    iters = -(-(2 * nseq * nl) // U)
    A(f"s_mov_b32 s22, {iters}\nL_k:")
    if bar:
        A("s_barrier")
    for i in range(U):
        A(f"s_waitcnt vmcnt({depth-1})")
        A(f"v_xor_b32 v2, v2, v{4+4*(i % depth)}")
        load(i % depth, i + depth)
    A("s_sub_u32 s22, s22, 1\ns_cmp_lg_u32 s22, 0\ns_cbranch_scc1 L_k")
    A("s_waitcnt vmcnt(0)\ns_memrealtime s[20:21]\ns_waitcnt lgkmcnt(0)")
    r = 4 + 4 * depth
    A(f"v_mov_b32 v{r}, s24\nv_mov_b32 v{r+1}, 0\nv_mov_b32 v{r+2}, s20\nv_mov_b32 v{r+3}, v2")
    A("s_lshl_b32 s40, s40, 4\nv_mov_b32 v3, s40\nv_cmp_eq_u32 vcc, 0, v0\ns_and_saveexec_b64 s[28:29], vcc")
    A(f"global_store_dwordx4 v3, v[{r}:{r+3}], s[16:17]\nL_end:\ns_endpgm")
    A(f""".section .rodata,"a"
.p2align 6
.amdhsa_kernel mb_kernel
  .amdhsa_next_free_vgpr {r+4}
  .amdhsa_next_free_sgpr 64
  .amdhsa_accum_offset {r+4}
  .amdhsa_group_segment_fixed_size 0
  .amdhsa_kernarg_size 24
  .amdhsa_user_sgpr_count 2
  .amdhsa_user_sgpr_kernarg_segment_ptr 1
  .amdhsa_system_sgpr_workgroup_id_x 1
.end_amdhsa_kernel""")
    return "\n".join(L) + "\n"

def main():
    T = 128 << 20
    cfgs = eval(open(sys.argv[1]).read())
    cos = [assemble(gen(**c), "mb_kernel", 3, f"mb5_{i}") for i, c in enumerate(cfgs)]
    if "--asm-only" in sys.argv:
        print("ok"); sys.exit()
    ks = [AsmKernel(co, "mb_kernel") for co in cos]
    st = DeviceBuffer(1 << 20); rf = ReadFlush()
    keep = []
    NA = int(sys.argv[2]) if len(sys.argv) > 2 else 8
    tab = np.zeros((len(cfgs), NA, 2))
    for a in range(NA):
        keep.append([DeviceBuffer.handed(x) for x in (4096, 16 << 20, 4 << 20, 4 << 20, (1 + 3 * a) << 21)])
        K = DeviceBuffer.handed(T); V = DeviceBuffer.handed(T)
        keep.append([K, V, DeviceBuffer.handed(512 << 20)])
        memset(K, 3); memset(V, 5)
        ka = struct.pack("<3Q", K.ptr, V.ptr, st.ptr)
        res = [[] for _ in ks]
        for rep in range(9):
            for i, k in enumerate(ks):
                n = cfgs[i].get("nwg", 192)
                rf(); memset(st, 0)
                k.launch((256, 1, 1), (256, 1, 1), ka, 82944)
                sync()
                s = read(st, np.uint32, n * 16).reshape(n * 4, 4).astype(np.int64)
                s = s[s[:, 0] != 0]; d = ((s[:, 2] - s[:, 0].min()) & 0xffffffff) / 100.
                res[i].append((d.max(), d.mean()))
        for i in range(len(ks)):
            tab[i, a] = np.median(np.array(res[i][1:]), 0)
    np.set_printoptions(linewidth=200, precision=1, suppress=True)
    for i, c in enumerate(cfgs):
        print(f"{str(c):70s} max {tab[i,:,0]} avg {tab[i,:,0].mean():.2f} | mean {tab[i,:,1]} avg {tab[i,:,1].mean():.2f}")

if __name__ == '__main__':
    main()
```

```python
import math
import os
import struct
import sys

sys.path.insert(0, os.path.dirname(os.path.abspath(__file__)))
from asmlib import Asm

NAME = "concat_heads__compressed_kv_cla__mha_block_cached__decode"

DEF = dict(
    chunk=1,
    nbank=1,
    qa=16, qb=28,
    pf="bqokvuc",
    fast=2, pdep=6,
    xi_it=8, c_it=7, dfr=13,
    hlp=1, h_lq=6, h_u=2, h_cw=17, h_th=36, h_sl=4, h_it=1, k_it=0, k_th=36,
    lead=12, hg=2, cpf=2, xw=1, eb=1, cq=8, pk=0, rc=2, rb=2, rq=2, rp=1,
    sl_cnt=4, sl_ml=16,
    stamps=0, trace=0, drop="", probe=None, vpad=0, remap=0,
)

WS_QA, WS_YA, WS_PML, WS_QB, WS_FLAG, WS_PART = 0x0, 0x80000, 0x120000, 0x140000, 0x170000, 0x400000
WS_OB, WS_CX, WS_BML = 0x180000, 0x1b0000, 0x1b8000
WS_STAMP = 0x300000
WS_SIZE = 0x600000
C_Q, C_P, C_QB = 0, 4, 128

WROW = 1056
OROW = 320
L_MISC = 128 * WROW
L_QP, L_CX = L_MISC, L_MISC + 8192
LDS_BYTES = L_MISC + 12288
CROW = WROW
CTILE = 32 * CROW

SCALE = struct.unpack("<I", struct.pack("<f", math.log2(math.e) / math.sqrt(128.0)))[0]
SPIN = 1 << 18

P_AX, P_CKV, P_AWQ, P_AWUK, P_AWUV, P_AWO, P_BX, P_K, P_V, P_BWQ, P_BWO, P_OUT, P_DBG, P_WS = range(36, 64, 2)
DPP_ID = "quad_perm:[0,1,2,3]"


def gen(**kw):
    o = dict(DEF)
    o.update(kw)
    A = Asm()
    chunk = o["chunk"]
    G = o["hg"]
    NS, HN = 8 // G, 32 // G
    LNS = int(math.log2(NS))
    RQ, RP = 10 + o["rq"], 10 + o["rp"]
    RC, RB = 10 + o["rc"], 10 + o["rb"]
    WS_XI, WS_CF, WS_EL, WS_YB, WS_CLR_END = (WS_BML + (r << RC) for r in (24, 25, 29, 33, 65))
    uid = [0]
    role = ['B']

    def vr(b, n=4):
        return f"v[{b}:{b+n-1}]"

    def ar(b, n=4):
        return f"a[{b}:{b+n-1}]"

    def srd(s, ptr, size, add=None):
        if add is None:
            A(f"s_mov_b32 s{s}, s{ptr}\ns_mov_b32 s{s+1}, s{ptr+1}")
        else:
            A(f"s_add_u32 s{s}, s{ptr}, {add}\ns_addc_u32 s{s+1}, s{ptr+1}, 0")
        A(f"s_mov_b32 s{s+2}, {size:#x}\ns_mov_b32 s{s+3}, 0x20000")

    def stamp(k):
        if o["probe"] and str(k) not in (o["probe"].split(",")[0].lstrip("m"), o["probe"].split(",")[2]):
            return
        if o["stamps"]:
            A(f"s_memrealtime s[{76+2*k}:{77+2*k}]\ns_waitcnt lgkmcnt(0)")

    def trace(base):
        if o["trace"]:
            A(f"s_memrealtime s[100:101]\ns_add_u32 m0, s27, {base}\ns_waitcnt lgkmcnt(0)\nv_writelane_b32 v59, s100, m0")

    def trace_out():
        if o["trace"]:
            A(f"s_mov_b64 exec, -1\ns_lshl_b32 s24, s2, 2\ns_add_u32 s24, s24, s3\ns_lshl_b32 s24, s24, 8\ns_add_u32 s24, s24, {WS_STAMP + 0x10000:#x}")
            A("v_lshlrev_b32 v1, 2, v0\nbuffer_store_dword v59, v1, s[12:15], s24 offen")

    def probe_out():
        ka, ra, kb, rb, mult = o["probe"].split(",")
        mean = ka.startswith("m")
        ka = ka.lstrip("m")
        sreg = lambda k: 100 if k == "e" else 76 + 2 * int(k)
        uid[0] += 1
        u = uid[0]
        A(f"s_cmp_lg_u32 s3, 0\ns_cbranch_scc1 L_pr{u}")
        A("s_mov_b64 exec, 1")
        for k, rs, off, neg in ((ka, ra, 16, False), (kb, rb, 20, True)):
            if role[0] == "B":
                if "B" not in rs:
                    continue
                A(f"s_not_b32 s24, s{sreg(k)}" if neg else f"s_mov_b32 s24, s{sreg(k)}")
                if mean and not neg:
                    A("s_sub_u32 s24, s24, s100")
            else:
                A(f"s_not_b32 s24, s{sreg(k)}" if neg else f"s_mov_b32 s24, s{sreg(k)}")
                A("s_cmp_lt_u32 s74, 32")
                A(f"s_cselect_b32 s24, {'s24' if 'W' in rs else 0}, {'s24' if 'C' in rs else 0}")
            dig = [int(c) for c in rs if c.isdigit()]
            if dig:
                A(f"s_and_b32 s25, s2, 7\ns_bitcmp1_b32 {sum(1 << d for d in dig)}, s25\ns_cselect_b32 s24, s24, 0")
            A(f"v_mov_b32 v1, s24\nbuffer_atomic_{'add' if mean and not neg else 'umax'} v1, off, s[16:19], 0 offset:{off}\ns_waitcnt vmcnt(0)")
        A("v_mov_b32 v1, 1\nbuffer_atomic_add v1, off, s[16:19], 0 offset:24 sc0\ns_waitcnt vmcnt(0)")
        A(f"v_readfirstlane_b32 s24, v1\ns_cmp_lg_u32 s24, 255\ns_cbranch_scc1 L_pr{u}")
        A("buffer_load_dwordx2 v[4:5], off, s[16:19], 0 offset:16 sc1\ns_waitcnt vmcnt(0)")
        A("v_readfirstlane_b32 s24, v4\nv_readfirstlane_b32 s25, v5\ns_not_b32 s25, s25")
        A("s_mul_i32 s24, s24, 341\ns_lshr_b32 s24, s24, 16" if mean else "s_sub_u32 s24, s24, s25")
        A("s_min_u32 s24, s24, 20000")
        A("v_mov_b32 v1, s24\nbuffer_store_dword v1, off, s[16:19], 0 offset:28")
        if mult.startswith("T"):
            T, m = (mult[1:].split("x") + ["0"])[:2]
            A(f"s_mov_b32 s28, s25\ns_mul_i32 s24, s24, {m}\ns_add_u32 s24, s24, {T}")
        else:
            A(f"s_mul_i32 s24, s24, {mult}\ns_memrealtime s[28:29]\ns_waitcnt lgkmcnt(0)")
        A(f"L_pr{u}_w:\ns_memrealtime s[30:31]\ns_waitcnt lgkmcnt(0)\ns_sub_u32 s25, s30, s28\ns_cmp_lt_u32 s25, s24\ns_cbranch_scc1 L_pr{u}_w")
        A(f"L_pr{u}:")

    def stamps_out():
        if o["probe"]:
            probe_out()
        elif o["stamps"]:
            A("s_lshl_b32 s24, s2, 2\ns_add_u32 s24, s24, s3\ns_lshl_b32 s24, s24, 6")
            A(f"s_add_u32 s24, s24, {WS_STAMP:#x}")
            A("s_mov_b64 exec, 1")
            for k in range(12):
                A(f"v_mov_b32 v1, s{76+2*k}")
                A(f"buffer_store_dword v1, off, s[12:15], s24 offset:{4*k}")
            A("s_getreg_b32 s25, hwreg(HW_REG_XCC_ID, 0, 4)\nv_mov_b32 v1, s25")
            A("buffer_store_dword v1, off, s[12:15], s24 offset:48")
            A("s_getreg_b32 s25, hwreg(HW_REG_HW_ID)\nv_mov_b32 v1, s25")
            A("buffer_store_dword v1, off, s[12:15], s24 offset:52")

    def signal(cnt, n, also=None, only_w=False):
        uid[0] += 1
        u = uid[0]
        A("s_waitcnt vmcnt(0)\ns_barrier")
        A(f"s_cmp_lg_u32 s3, 0\ns_cbranch_scc1 L_sig{u}")
        A("s_mov_b64 exec, 1\nv_mov_b32 v3, 1")
        if also is not None:
            A(f"v_mov_b32 v4, 1\nbuffer_atomic_add v4, off, s[16:19], 0 offset:{also}")
        A(f"buffer_atomic_add v3, off, s[16:19], 0 offset:{cnt} sc0")
        A("s_waitcnt vmcnt(0)\nv_readfirstlane_b32 s24, v3\ns_mov_b64 exec, -1")
        A(f"s_and_b32 s24, s24, {n-1}\ns_cmp_lg_u32 s24, {n-1}\ns_cbranch_scc1 L_sig{u}")
        A(f"v_lshlrev_b32 v4, 7, v0\nv_mov_b32 v3, 1\ns_mov_b32 s24, {WS_FLAG:#x}")
        if only_w:
            A("s_mov_b32 exec_hi, 0")
        A(f"buffer_store_dword v3, v4, s[12:15], s24 offen offset:{cnt} sc1")
        if only_w:
            A("s_mov_b64 exec, -1")
        A(f"L_sig{u}:")

    def poll_word(load, v, val, done, sleep, cmp="eq"):
        uid[0] += 1
        u = uid[0]
        A(f"s_mov_b32 s24, {SPIN}\ns_mov_b64 exec, 1")
        A(f"L_aw{u}:")
        A(load)
        A(f"s_waitcnt vmcnt(0)\nv_readfirstlane_b32 s25, v{v}")
        A(f"s_cmp_{cmp}_u32 s25, {val}\ns_cbranch_scc1 {done}")
        A(f"s_sleep {sleep}\ns_sub_u32 s24, s24, 1\ns_cmp_lg_u32 s24, 0\ns_cbranch_scc1 L_aw{u}")

    def await_flag(cnt):
        uid[0] += 1
        x = f"L_awx{uid[0]}"
        A(f"s_cmp_lg_u32 s3, 0\ns_cbranch_scc1 {x}")
        poll_word(f"buffer_load_dword v1, off, s[12:15], s73 offset:{cnt} sc1", 1, 1, x, o["sl_cnt"])
        A(f"{x}:\ns_mov_b64 exec, -1\ns_barrier")

    def code_prefetch(lo, hi, back=True):
        if not o["cpf"]:
            return
        uid[0] += 1
        A(f"s_getpc_b64 s[24:25]\nL_pc{uid[0]}:")
        if back:
            A(f"s_sub_u32 s24, s24, L_pc{uid[0]}-{lo}\ns_subb_u32 s25, s25, 0")
        else:
            A(f"s_add_u32 s24, s24, {lo}-L_pc{uid[0]}\ns_addc_u32 s25, s25, 0")
        A(f"v_lshl_add_u32 v16, v0, 2, s3\nv_lshlrev_b32 v16, 7, v16\nv_min_u32 v16, {hi}-{lo}-4, v16")
        A("v_mov_b32 v17, s25\nv_add_co_u32 v16, vcc, s24, v16\nv_addc_co_u32 v17, vcc, 0, v17, vcc")
        A("global_load_dword v17, v[16:17], off")

    MASK, SELE, SELO = 20, 24, 28
    WB = 128

    def make_masks(sel=True):
        A("v_and_b32 v3, 1, v0\nv_lshlrev_b32 v3, 4, v3\nv_mov_b32 v4, 0xffff\nv_lshlrev_b32 v4, v3, v4")
        A("v_bfe_u32 v3, v0, 1, 2")
        for i in range(4):
            A(f"v_cmp_eq_u32 vcc, {i}, v3\nv_cndmask_b32 v{MASK+i}, 0, v4, vcc")
        if sel:
            A("v_mov_b32 v3, 0x0c0c0c0c\ns_mov_b32 s24, 0x01000100\ns_mov_b32 s25, 0x03020302")
            for i in range(4):
                A(f"v_bfi_b32 v{SELE+i}, v{MASK+i}, s24, v3\nv_bfi_b32 v{SELO+i}, v{MASK+i}, s25, v3")

    def gemv(xs, accs, wait=None, after=None):
        for j in range(32):
            sel = SELO if j & 1 else SELE
            for p, x in enumerate(xs):
                for i in range(4):
                    A(f"v_perm_b32 v{(8, 4)[p]+i}, v{x+j//2}, v{x+j//2}, v{sel+i}")
            if wait:
                wait(j)
            for p, acc in enumerate(accs):
                A(f"v_mfma_f32_16x16x32_bf16 {vr(acc)}, {vr(WB+4*j)}, {vr((8, 4)[p])}, {'0' if j == 0 else vr(acc)}")
            if after:
                after(j)

    def q_reduce(accs, rd, dst, tmp):
        A("v_lshrrev_b32 v3, 4, v0\nv_lshlrev_b32 v3, 7, v3\nv_and_b32 v4, 7, v0\nv_lshl_add_u32 v3, v4, 2, v3")
        A("v_bfe_u32 v4, v0, 3, 1\nv_lshl_add_u32 v3, v4, 9, v3")
        A(f"s_lshl_b32 s24, s3, 11\ns_add_u32 s24, s24, {L_QP}\nv_add_u32 v3, s24, v3")
        for p, acc in enumerate(accs):
            for r in range(4):
                A(f"ds_write_b32 v3, v{acc+r} offset:{p*1024 + r*32}")
        A("s_waitcnt lgkmcnt(0)\ns_barrier")
        for w in range(4):
            A(f"ds_read_b128 {vr(tmp+8*w)}, v{rd} offset:{w*2048}")
            A(f"ds_read_b128 {vr(tmp+8*w+4)}, v{rd} offset:{w*2048+16}")
        for w in range(1, 4):
            A(f"s_waitcnt lgkmcnt({6-2*w})")
            for e in range(8):
                A(f"v_add_f32 v{tmp+e}, v{tmp+e}, v{tmp+8*w+e}")
        for i in range(4):
            A(f"v_cvt_pk_bf16_f32 v{dst+i}, v{tmp+2*i}, v{tmp+2*i+1}")

    def diag_sum(D, y, t):
        src = D + y
        for a in range(4):
            if a != y:
                A(f"v_add_f32_dpp v{t}, v{D+a}, v{src} quad_perm:[{a},{a},{a},{a}] row_mask:0xf bank_mask:0xf")
                src = t

    def quad_masks():
        for y in range(1, 4):
            A(f"s_mov_b32 s{62+2*y}, {0x11111111 << y:#x}\ns_mov_b32 s{63+2*y}, {0x11111111 << y:#x}")

    def wave_reduce(op, v, sdst):
        for c in ("row_ror:8", "row_ror:4", "row_ror:2", "row_ror:1"):
            A(f"{op}_dpp v{v}, v{v}, v{v} {c} row_mask:0xf bank_mask:0xf")
        A(f"{op}_dpp v{v}, v{v}, v{v} row_bcast:15 row_mask:0xa bank_mask:0xf")
        A(f"{op}_dpp v{v}, v{v}, v{v} row_bcast:31 row_mask:0xc bank_mask:0xf")
        A(f"v_readlane_b32 s{sdst}, v{v}, 63")

    def wave_head(dst):
        A(f"s_and_b32 s24, s3, 1\ns_lshl_b32 s24, s24, 1\ns_and_b32 {dst}, s3, 2\ns_lshl_b32 {dst}, {dst}, 3\ns_or_b32 {dst}, {dst}, s24")
        A(f"s_and_b32 s24, s26, 13\ns_or_b32 {dst}, {dst}, s24")

    def wo_stage():
        wave_head("s25")
        A("s_lshl_b32 s25, s25, 17\ns_lshr_b32 s24, s74, 3\ns_lshl_b32 s24, s24, 7\ns_add_u32 s25, s24, s25")
        A("v_lshrrev_b32 v3, 4, v0\nv_lshlrev_b32 v3, 15, v3\nv_and_b32 v4, 8, v0\nv_lshl_add_u32 v3, v4, 10, v3\nv_and_b32 v4, 0x70, v2\nv_add_u32 v3, v3, v4")
        rows = [16 * (g & 1) + (g >> 1) + 2 * r for g in range(4) for r in range(4)]
        for half, ptr in enumerate((P_BWO, P_AWO)):
            srd(8, ptr, 4 << 20)
            A(f"s_mul_i32 s24, s3, {16*WROW}\ns_add_u32 m0, s24, {64*WROW*half}\ns_mov_b32 s24, s25")
            for k, row in enumerate(rows):
                A("buffer_load_dwordx4 v3, s[8:11], s24 offen nt lds")
                if k < 15:
                    A(f"s_add_u32 m0, m0, {WROW}\ns_add_u32 s24, s24, {(rows[k+1] - row) * 1024}")

    def wo_transpose():
        A(f"v_lshrrev_b32 v3, 2, v0\nv_mul_u32_u24 v3, {WROW}, v3\nv_and_b32 v4, 3, v0\nv_lshl_add_u32 v3, v4, 3, v3")
        A(f"s_lshl_b32 s24, s3, 5\nv_add_u32 v3, s24, v3\nv_add_u32 v4, {64*WROW}, v3")
        for half in range(2):
            for hq in range(4):
                for i in range(4):
                    for z in range(2):
                        A(f"ds_read_b64_tr_b16 {ar(64+64*half+(hq*4+i)*4+2*z, 2)}, v{3+half} offset:{16*hq*WROW + 128*(2*i+z)}")

    def head_of():
        A("s_and_b32 s25, s26, 1\ns_lshl_b32 s25, s25, 1\ns_and_b32 s26, s26, 2\ns_lshl_b32 s26, s26, 3\ns_or_b32 s26, s26, s25\ns_or_b32 s26, s26, s70")

    def publish_xcc():
        uid[0] += 1
        A(f"s_cmp_lg_u32 s3, 0\ns_cbranch_scc1 L_xi{uid[0]}")
        A("s_and_b32 s24, s74, 7\ns_lshl_b32 s24, s24, 5\ns_lshr_b32 s25, s74, 3\ns_add_u32 s24, s24, s25\ns_lshl_b32 s24, s24, 2")
        A(f"s_add_u32 s24, s24, {WS_XI:#x}\ns_getreg_b32 s25, hwreg(HW_REG_XCC_ID, 0, 4)")
        A("s_mov_b64 exec, 1\nv_mov_b32 v3, s25\nbuffer_store_dword v3, off, s[12:15], s24 sc1\ns_mov_b64 exec, -1")
        A(f"L_xi{uid[0]}:")

    def near_far(store):
        uid[0] += 1
        A(f"s_cbranch_scc1 L_far{uid[0]}\n{store}\ns_branch L_near{uid[0]}\nL_far{uid[0]}:\n{store} sc1\nL_near{uid[0]}:")

    def elect(so):
        A(f"s_mov_b64 exec, 1\nv_mov_b32 v83, 64\nbuffer_atomic_add v83, off, s[12:15], {so} sc0\ns_mov_b64 exec, -1")

    def poll_data(loads, lo, n, sleep):
        uid[0] += 1
        u = uid[0]
        A(f"s_mov_b32 s24, {SPIN}")
        if sleep:
            A(f"s_branch L_pd{u}_in\nL_pd{u}:\ns_sleep {sleep}\nL_pd{u}_in:")
        else:
            A(f"L_pd{u}:")
        loads()
        A("s_waitcnt vmcnt(0)")
        A(f"v_max_u32 v3, v{lo}, v{lo+1}")
        for k in range(2, n, 2):
            A(f"v_max3_u32 v3, v3, v{lo+k}, v{lo+k+1}")
        A(f"v_cmp_eq_u32 vcc, -1, v3\ns_sub_u32 s24, s24, 1\ns_cmp_eq_u32 s24, 0\ns_cbranch_scc1 L_pd{u}_x")
        A(f"s_and_b64 exec, exec, vcc\ns_cbranch_scc1 L_pd{u}")
        A(f"L_pd{u}_x:\ns_mov_b64 exec, -1")

    def helper(tag, ptr, nq, off, it0, th, last_p, V):
        U = o["h_u"]
        assert chunk == 1 and last_p - 2 + o["h_lq"] + U > nq
        A(f"s_and_b32 s35, s72, 7\ns_lshl_b32 s35, s35, 7\ns_add_u32 s35, s35, {WS_BML:#x}")
        A("s_lshr_b32 s34, s72, 3\ns_mul_i32 s34, s34, 6\ns_mul_i32 s25, s24, 3\ns_add_u32 s34, s34, s25")
        A("s_lshl_b32 s24, s24, 6\ns_add_u32 s24, s24, s26\ns_lshl_b32 s24, s24, 20")
        srd(4, ptr, 1 << 20, add="s24")
        A("s_add_u32 s8, s4, 0x2000000\ns_addc_u32 s9, s5, 0\ns_mov_b32 s10, s6\ns_mov_b32 s11, 0x20000")
        A(f"v_lshrrev_b32 v3, 4, v0\nv_mul_u32_u24 v{V}, 6144, v3\nv_and_b32 v3, 15, v0\nv_lshl_add_u32 v{V}, v3, 7, v{V}")
        A(f"v_lshlrev_b32 v{V+1}, {RC}, v0\nv_mov_b32 v{V+3}, 0")
        NX = (27, 28, 32)
        A(f"s_mov_b32 s27, {nq}\ns_mov_b32 s28, {nq}\ns_mov_b32 s32, {nq}\ns_mov_b32 s75, 1024")
        A(f"L_{tag}:")
        A(f"s_sub_u32 s75, s75, 1\ns_cmp_eq_u32 s75, 0\ns_cbranch_scc1 L_{tag}_x")
        A(f"s_mov_b64 exec, 0xffffff\nbuffer_load_dword v{V+2}, v{V+1}, s[12:15], s35 offen offset:{off} sc1")
        A(f"s_waitcnt vmcnt(0)\nv_max_i32 v{V+3}, {max(0, 4*it0 - 1)}, v{V+2}\ns_mov_b64 exec, -1")
        A(f"v_add_u32_dpp v3, v{V+3}, v{V+3} row_ror:8 row_mask:0xf bank_mask:0xf")
        for c in ("row_ror:4", "row_ror:2", "row_ror:1"):
            A(f"v_add_u32_dpp v3, v3, v3 {c} row_mask:0xf bank_mask:0xf")
        A("v_readlane_b32 s70, v3, 0\nv_readlane_b32 s24, v3, 16\ns_add_u32 s70, s70, s24")
        for t in range(3):
            A(f"s_add_u32 s24, s34, {t}\nv_readlane_b32 s24, v{V+3}, s24")
            A(f"s_sub_u32 s25, {nq}, s{NX[t]}\ns_mul_i32 s25, s25, {o['h_cw']}\ns_mul_i32 s{64+t}, s24, 24\ns_add_u32 s{64+t}, s{64+t}, s25")
            A(f"s_add_u32 s24, s24, {o['h_lq'] + U}\ns_cmp_gt_u32 s24, s{NX[t]}\ns_cselect_b32 s{64+t}, 0xffff, s{64+t}")
        A(f"s_min_u32 s71, s64, s65\ns_min_u32 s71, s71, s66\ns_cmp_eq_u32 s71, 0xffff\ns_cbranch_scc1 L_{tag}_x")
        A(f"s_add_u32 s24, s71, {th}\ns_cmp_lt_i32 s24, s70\ns_cbranch_scc1 L_{tag}_go")
        A(f"s_sleep {o['h_sl']}\ns_branch L_{tag}")
        A(f"L_{tag}_go:")
        for t in range(3):
            if t < 2:
                A(f"s_cmp_lg_u32 s71, s{64+t}\ns_cbranch_scc1 L_{tag}_n{t}")
            A(f"s_sub_u32 s{NX[t]}, s{NX[t]}, {U}\ns_mul_i32 s24, s{NX[t]}, {4*6144}\ns_add_u32 s24, s24, {2048*t}")
            if t < 2:
                A(f"s_branch L_{tag}_ld\nL_{tag}_n{t}:")
        A(f"L_{tag}_ld:")
        for k in range(U):
            A(f"buffer_load_dword v{V+4}, v{V}, s[4:7], s24 offen\nbuffer_load_dword v{V+4}, v{V}, s[8:11], s24 offen")
            if k + 1 < U:
                A(f"s_add_u32 s24, s24, {4*6144}")
        A(f"s_branch L_{tag}")

    def progress(y, off, tag):
        A(f"s_cmp_lg_u32 s71, {y}\ns_cbranch_scc1 {tag}")
        A(f"s_lshl_b32 s24, s27, 2\ns_add_u32 s24, s24, {y}\ns_mov_b64 exec, 1\nv_mov_b32 v63, s24")
        A("s_cmp_lg_u32 s75, 0")
        near_far(f"buffer_store_dword v63, off, s[12:15], s34 offset:{off}")
        A(f"s_mov_b64 exec, -1\n{tag}:")

    A(f"{NAME}_kernel:")
    if o["probe"] or o["vpad"]:
        A("s_memrealtime s[100:101]")
    elif o["stamps"]:
        A("s_memrealtime s[94:95]")
    A("s_load_dwordx16 s[36:51], s[0:1], 0\ns_load_dwordx8 s[52:59], s[0:1], 64\ns_load_dwordx4 s[60:63], s[0:1], 96")
    A("s_cmp_ge_u32 s2, 256\ns_cbranch_scc1 L_end")
    if o["remap"] == 1:
        A("s_bfe_u32 s24, s2, 0x10003\ns_cmp_lt_u32 s2, 64\ns_cselect_b32 s24, 0, s24\ns_xor_b32 s2, s2, s24")
    elif o["remap"] == 2:
        A("s_lshr_b32 s24, s2, 3\ns_cmp_eq_u32 s24, 5\ns_cselect_b32 s24, 1, 0\ns_bitcmp1_b32 s2, 2\ns_cselect_b32 s24, s24, 0\ns_xor_b32 s2, s2, s24")
    elif o["remap"] == 3:
        A("s_sub_u32 s2, 255, s2")
    A("s_cmp_lt_u32 s2, 64")
    if o["cpf"] == 2:
        A("; pull the first code of this role into L2 while the kernel arguments arrive")
        A("s_getpc_b64 s[24:25]\nL_pc0:\ns_cselect_b32 s20, L_A-L_pc0, 0")
        A("v_lshlrev_b32 v16, 7, v0\nv_min_u32 v16, L_A-L_pc0-4, v16\nv_add_u32 v16, s20, v16")
        A("v_add_co_u32 v16, vcc, s24, v16\nv_mov_b32 v17, s25\nv_addc_co_u32 v17, vcc, 0, v17, vcc")
        A("global_load_dword v17, v[16:17], off")
    A("s_cbranch_scc1 L_A")

    def lane_ids():
        A("v_lshrrev_b32 v1, 6, v0\nv_and_b32 v0, 63, v0\nv_readfirstlane_b32 s3, v1\nv_lshlrev_b32 v2, 4, v0")

    RING, BQ, SR = 64, 32, 48
    PF = dict(b=(P_BWQ, 24, 13, 512), q=(P_AWQ, 24, 13, 512), k=(P_AWUK, 24, 13, 512), u=(P_AWUV, 24, 13, 512),
              o=(P_BWO, 25, 8, 512), v=(P_AWO, 25, 8, 512), c=(P_CKV, 26, 10 + LNS, 2048))

    def l2_prefetch(order, dep):
        for ch in order:
            ptr, vb, sh, cnt = PF[ch]
            A(f"s_mov_b64 s[8:9], s[{ptr}:{ptr+1}]")
            if cnt != 512:
                A(f"s_mov_b32 s10, {cnt*8192:#x}")
            A(f"L_pf{ch}:")
            A(f"s_lshl_b32 s24, s74, {sh}")
            if dep is not None:
                A(f"s_waitcnt vmcnt({dep})")
            A(f"buffer_load_dwordx4 v[28:31], v{vb}, s[8:11], s24 offen")
            A(f"s_addk_i32 s74, 96\ns_cmpk_lt_u32 s74, {cnt}\ns_cbranch_scc1 L_pf{ch}")
            A(f"s_addk_i32 s74, {-cnt}")
            if cnt != 512:
                A("s_mov_b32 s10, 0x400000")

    A("L_B:")
    A("s_and_b32 s70, s2, 6\ns_and_b32 s25, s2, 7\ns_add_u32 s70, s70, s25\ns_lshl_b32 s25, s70, 8")
    A("v_and_b32 v6, 15, v0\nv_lshl_add_u32 v24, v6, 4, s25\nv_and_b32 v4, 16, v0\nv_lshl_add_u32 v24, v4, 5, v24")
    A("v_lshrrev_b32 v4, 5, v0\nv_lshl_add_u32 v24, v4, 12, v24")
    A("s_lshr_b32 s74, s2, 3\ns_lshl_b32 s74, s74, 2\ns_addk_i32 s74, -32")
    A("s_mov_b32 s10, 0x400000\ns_mov_b32 s11, 0x20000")
    nf = o["fast"]
    assert all(PF[c][1] == 24 for c in o["pf"][:nf])
    A("s_waitcnt lgkmcnt(0)")
    stamp(0)
    l2_prefetch(o["pf"][:nf], None)
    lane_ids()
    if o["cpf"] == 1:
        code_prefetch("L_B", "L_A")
    A("s_lshr_b32 s24, s2, 3\ns_sub_u32 s24, s24, 8")
    A("s_mul_i32 s26, s24, 43\ns_lshr_b32 s26, s26, 8\ns_mul_i32 s27, s26, 6\ns_sub_u32 s27, s24, s27")
    head_of()
    A("s_lshl_b32 s25, s70, 17\ns_lshl_b32 s24, s3, 8\ns_add_u32 s25, s25, s24\nv_lshl_add_u32 v25, v6, 4, s25")
    A("v_and_b32 v4, 16, v0\nv_lshl_add_u32 v25, v4, 14, v25\nv_and_b32 v4, 32, v0\nv_lshl_add_u32 v25, v4, 16, v25")
    A(f"s_and_b32 s25, s2, {NS-1}\ns_lshl_b32 s25, s25, 10\ns_lshl_b32 s24, s3, {10+LNS}\ns_add_u32 s25, s25, s24")
    A(f"s_bfe_u32 s24, s2, {LNS | ((3 - LNS) << 16):#x}\ns_lshl_b32 s24, s24, {21 + LNS}\ns_add_u32 s25, s25, s24")
    A("v_add_u32 v26, s25, v2")
    A("s_cmp_ge_u32 s27, 3\ns_cselect_b32 s28, 1, 0\ns_mul_i32 s29, s28, 3\ns_sub_u32 s29, s27, s29")
    A("s_lshr_b32 s72, s3, 1\ns_lshl_b32 s24, s28, 1\ns_add_u32 s72, s72, s24")
    A("s_and_b32 s31, s3, 1\ns_lshl_b32 s24, s29, 1\ns_add_u32 s31, s31, s24")
    A("s_lshl_b32 s30, s72, 5\ns_add_u32 s30, s30, s26\ns_lshl_b32 s30, s30, 20")
    A("v_lshrrev_b32 v3, 4, v0\nv_and_b32 v4, 3, v0\nv_lshlrev_b32 v5, 6, v3\nv_lshl_add_u32 v5, v4, 4, v5")
    A("v_bfe_u32 v1, v0, 2, 2\nv_lshl_add_u32 v1, v1, 8, v5")
    NREG = 1024 // (6 * chunk) * chunk
    NLFT = 171 - NREG
    A(f"s_mul_i32 s35, s31, {chunk*1024}\ns_add_u32 s32, s35, {160*6144}")
    A(f"s_mul_i32 s28, s31, {NLFT*1024}\ns_add_u32 s28, s28, {NREG*6144}")
    A("s_mov_b32 s6, 0x100000\ns_mov_b32 s7, 0x20000")
    A(f"s_add_u32 s4, s{P_K}, s30\ns_addc_u32 s5, s{P_K+1}, 0")
    srd(12, P_WS, WS_SIZE)
    srd(16, P_DBG, 256)
    make_masks(sel=False)
    quad_masks()
    for x in range(16):
        A(f"v_mov_b32 v{BQ+x}, 0")
    A("v_lshrrev_b32 v3, 4, v0\nv_lshlrev_b32 v60, 6, v3\nv_and_b32 v4, 7, v0\nv_lshl_add_u32 v60, v4, 3, v60")
    A("s_lshl_b32 s33, s26, 2\ns_add_u32 s33, s33, s72")
    A(f"s_lshl_b32 s34, s26, {RB}\ns_lshl_b32 s24, s72, 8\ns_add_u32 s34, s34, s24\ns_add_u32 s34, s34, {WS_QB:#x}")
    A(f"s_mul_i32 s73, s33, 6\ns_add_u32 s73, s73, s31\ns_lshl_b32 s73, s73, 8\ns_add_u32 s73, s73, {WS_OB:#x}")
    l2_prefetch(o["pf"][nf:], o["pdep"])
    stamp(8)

    def sload(i, dst):
        if i >= NREG:
            A(f"buffer_load_dwordx4 {dst}, v1, s[4:7], s28 offen offset:{(i - NREG)*1024} nt")
            return
        A(f"buffer_load_dwordx4 {dst}, v1, s[4:7], s32 offen offset:{(i % chunk)*1024} nt")
        if i % chunk == chunk - 1:
            A(f"s_add_u32 s32, s32, {6*chunk*1024}")

    def park(lo, hi):
        for n in range(lo, hi):
            A("s_waitcnt vmcnt(15)")
            if n < 11:
                sload(160 + n, ar(4 * n))
            else:
                if n == 11:
                    A("s_mov_b32 s32, s35")
                m = n - 11
                sload(m, ar(64 + 4 * m) if m < 16 * NB else vr(RING + 4 * (m - 16 * NB)))

    NB = o["nbank"]
    NP = 27 + 16 * NB
    qa, qb = o["qa"], o["qb"]
    park(0, qa)
    stamp(6)
    A(f"s_mov_b64 exec, 1\nbuffer_load_dword v61, off, s[16:19], 0 offset:{C_QB} sc1\ns_mov_b64 exec, -1")
    park(qa, qb)
    A(f"s_waitcnt vmcnt({qb - qa})\nv_readfirstlane_b32 s25, v61")
    A("s_cmp_ge_u32 s25, 32\ns_cbranch_scc1 L_B_q")
    poll_word(f"buffer_load_dword v61, off, s[16:19], 0 offset:{C_QB} sc1", 61, 32, "L_B_q", 16, "ge")
    A("L_B_q:\ns_mov_b64 exec, -1")
    stamp(7)
    A("buffer_load_dwordx4 v[8:11], v5, s[12:15], s34 offen sc1")
    park(qb, NP)
    A(f"s_waitcnt vmcnt({min(15, NP - qb)})")
    for x in range(4):
        for i in range(4):
            A(f"v_mov_b32_dpp v{BQ+4*x+i}, v{8+i} {DPP_ID} row_mask:0xf bank_mask:{1 << x:#x}")
    stamp(1)

    def kblock(src, S, n, stream):
        for j in range(n):
            x, y = j & 3, j >> 2
            D = 12 + 4 * (y & 1)
            if stream and o["k_it"] and x == 0:
                progress(y, 68, f"L_BK_p{y}")
            if stream:
                A("s_waitcnt vmcnt(15)")
            A(f"v_mfma_f32_16x16x32_bf16 {vr(D)}, {src(j)}, {vr(BQ+4*x)}, {'0' if x == 0 else vr(D)}")
            if stream:
                sload(j, src(j))
            if x == 3 or j == n - 1:
                if y == 0:
                    diag_sum(D, 0, S)
                else:
                    diag_sum(D, y, 3)
                    A(f"v_cndmask_b32 v{S}, v{S}, v3, s[{62+2*y}:{63+2*y}]")

    A(f"s_mov_b32 s27, {NB}")
    A("L_BK:")
    trace(1)
    A("s_cmp_lg_u32 s27, 9\ns_cbranch_scc1 L_BK_a")
    A(f"s_add_u32 s4, s{P_V}, s30\ns_addc_u32 s5, s{P_V+1}, 0\ns_mov_b32 s32, s35\nv_mov_b32 v1, v2")
    A("L_BK_a:")
    A("s_barrier")
    A(f"s_cmp_lg_u32 s27, {o['xi_it']}\ns_cbranch_scc1 L_BK_x0")
    A(f"s_and_b32 s24, s2, 7\ns_lshl_b32 s24, s24, 7\ns_add_u32 s24, s24, {WS_XI:#x}")
    A("v_and_b32 v63, 7, v0\nv_lshlrev_b32 v63, 2, v63\nbuffer_load_dword v62, v63, s[12:15], s24 offen sc1")
    A("L_BK_x0:")
    A(f"s_cmp_lg_u32 s27, {o['xi_it']+1}\ns_cbranch_scc1 L_BK_x1")
    A("s_getreg_b32 s24, hwreg(HW_REG_XCC_ID, 0, 4)\nv_cmp_ne_u32 vcc, s24, v62\ns_or_b32 s75, vcc_lo, vcc_hi")

    def clear_row():
        for i in range(4):
            A(f"v_mov_b32 v{28+i}, -1")
        A("s_mov_b64 exec, 0xffff\ns_cmp_lg_u32 s75, 0")
        near_far("buffer_store_dwordx4 v[28:31], v2, s[12:15], s73 offen")
        A("s_mov_b64 exec, -1")
    if o["c_it"] < 0:
        clear_row()
    A("L_BK_x1:")
    if o["k_it"]:
        assert o["k_it"] > max(o["xi_it"], NB + 1)
        A(f"s_cmp_ge_u32 s27, {o['k_it']}\ns_cselect_b32 s71, s3, 4")
    for k in range(NB, 9):
        A(f"v_mov_b32 v{SR+k}, v{SR+k+1}")
    kblock(lambda j: vr(RING + 4 * j), SR + 9, 16, True)
    for k in range(NB):
        A(f"s_cmp_lg_u32 s27, {NB+2+k}\ns_cbranch_scc1 L_BK_c{k}")
        kblock(lambda j: ar(64 + 64 * k + 4 * j), SR + k, 16, False)
        A(f"L_BK_c{k}:")
    A(f"s_cmp_lg_u32 s27, {NB+1}\ns_cbranch_scc1 L_BK_b")
    kblock(lambda j: ar(4 * j), SR + 10, 11, False)
    A(f"s_mul_i32 s24, s31, {NLFT}\ns_sub_i32 s24, {1024 - 6*NREG}, s24\ns_max_i32 s24, s24, 0\ns_min_i32 s24, s24, {NLFT}\ns_add_u32 s24, s24, {NREG - 160}")
    A("v_and_b32 v3, 3, v0\nv_bfe_u32 v4, v0, 2, 2\nv_lshl_add_u32 v3, v3, 2, v4")
    A(f"v_mov_b32 v4, 0xff800000\nv_cmp_gt_u32 vcc, s24, v3\nv_cndmask_b32 v{SR+10}, v4, v{SR+10}, vcc")
    A(f"v_mov_b32 v61, {SCALE:#x}\nv_mov_b32 v7, 0")
    A(f"s_lshr_b32 s34, s2, 3\ns_lshl_b32 s34, s34, {RC}\ns_and_b32 s24, s2, 7\ns_lshl_b32 s24, s24, 7\ns_add_u32 s34, s34, s24\ns_add_u32 s34, s34, {WS_BML - (8 << RC):#x}")
    A("L_BK_b:")
    A("s_add_u32 s27, s27, 1\ns_cmp_lt_u32 s27, 10\ns_cbranch_scc1 L_BK")
    stamp(2)

    A(f"v_max3_f32 v3, v{SR}, v{SR+1}, v{SR+2}")
    for k in range(3, 11, 2):
        A(f"v_max3_f32 v3, v3, v{SR+k}, v{SR+k+1}")
    wave_reduce("v_max_f32", 3, 24)
    A("v_mul_f32 v6, s24, v61")

    def probs(ks):
        for k in ks:
            A(f"v_fma_f32 v{SR+k}, v{SR+k}, v61, -v6")
        for k in ks:
            A(f"v_exp_f32 v{SR+k}, v{SR+k}")
        for k in ks:
            A(f"v_add_f32 v7, v7, v{SR+k}")
        for k in ks:
            A(f"v_cvt_pk_bf16_f32 v{SR+k}, v{SR+k}, v{SR+k}")

    def publish_ml():
        wave_reduce("v_add_f32", 7, 70)
        A("s_lshl_b32 s25, s3, 4\ns_add_u32 s25, s25, s34")
        A("s_mov_b64 exec, 1\nv_mov_b32 v7, s70")
        A("s_cmp_lg_u32 s75, 0")
        near_far("buffer_store_dwordx2 v[6:7], off, s[12:15], s25")
        A("s_mov_b64 exec, -1")
    for i in range(4):
        A(f"v_mov_b32 v{12+i}, 0")
    probs([0])
    stamp(3)

    A("s_mov_b32 s27, 0")
    A("L_BV:")
    trace(11)
    A("s_barrier")
    if o["c_it"] >= 0:
        A("; clear this wave's result row late so it stays in L2, and mark it cleared one iteration later")
        A(f"s_cmp_lg_u32 s27, {o['c_it']}\ns_cbranch_scc1 L_BV_c0")
        clear_row()
        A(f"L_BV_c0:\ns_cmp_lg_u32 s27, {o['c_it']+1}\ns_cbranch_scc1 L_BV_c1")
        A("s_lshl_b32 s25, s3, 4\ns_add_u32 s25, s25, s34\ns_mov_b64 exec, 1\nv_mov_b32 v28, 0\nv_mov_b32 v29, 0\ns_cmp_lg_u32 s75, 0")
        near_far("buffer_store_dwordx2 v[28:29], off, s[12:15], s25 offset:8")
        A("s_mov_b64 exec, -1\nL_BV_c1:")
    if o["hlp"]:
        A(f"s_cmp_ge_u32 s27, {o['h_it']}\ns_cselect_b32 s71, s3, 4")

    def v_finish():
        if o["vpad"]:
            A(f"s_lshr_b32 s24, s2, 3\ns_mul_i32 s24, s24, 6\ns_sub_u32 s24, {o['vpad']}, s24")
            A("L_vpad:\ns_memrealtime s[98:99]\ns_waitcnt lgkmcnt(0)\ns_sub_u32 s25, s98, s100\ns_cmp_lt_u32 s25, s24\ns_cbranch_scc1 L_vpad")
        stamp(4)
        A("s_mov_b32 exec_lo, 0x00ff00ff\ns_mov_b32 exec_hi, 0x00ff00ff")
        A("s_cmp_lg_u32 s75, 0")
        A("v_cvt_pk_bf16_f32 v4, v12, v13\nv_cvt_pk_bf16_f32 v5, v14, v15")
        if 'b' not in o['drop']:
            near_far("buffer_store_dwordx2 v[4:5], v60, s[12:15], s73 offen")
        stamp(5)
        if o["stamps"]:
            A("s_mov_b32 s96, s75")
        trace_out()
        stamps_out()
        A("s_endpgm")

    def v_step(j, p, cnt):
        x, y = j & 3, j >> 2
        for i in range(4):
            A(f"v_and_b32_dpp v{8+i}, v{p}, v{MASK+i} row_newbcast:{4*x+y} row_mask:0xf bank_mask:0xf")
        A(f"s_waitcnt vmcnt({cnt})")
        A(f"v_mfma_f32_16x16x32_bf16 v[12:15], {vr(RING+4*j)}, v[8:11], v[12:15]")

    NOUT = NREG - 160
    for j in range(16):
        x, y = j & 3, j >> 2
        if j == NOUT:
            A("s_cmp_eq_u32 s27, 9\ns_cbranch_scc1 L_BT")
        if j == o["dfr"]:
            A("s_cmp_lg_u32 s27, 0\ns_cbranch_scc1 L_BV_d")
            probs(range(1, 11))
            publish_ml()
            A("L_BV_d:")
        if o["hlp"] and x == 0:
            progress(y, 64, f"L_BV_p{y}")
        v_step(j, SR, 15)
        sload(j, vr(RING + 4 * j))
    for k in range(10):
        A(f"v_mov_b32 v{SR+k}, v{SR+k+1}")
    A("s_add_u32 s27, s27, 1\ns_branch L_BV")
    A("L_BT:")
    for j in range(NOUT, 11):
        v_step(j, SR, 15)
        sload(160 + j, vr(RING + 4 * j))
    for n in range(16):
        j = (11 + n) & 15
        v_step(j, SR if j >= 11 else SR + 1, 15 - n)
    v_finish()

    XA, XB = 32, 48
    A("L_A:")
    role[0] = "A"
    lane_ids()
    if o["cpf"] == 1:
        code_prefetch("L_A", "L_A2")
    A("s_mov_b32 s74, s2\ns_and_b32 s72, s2, 31")
    A("s_and_b32 s70, s2, 6\ns_and_b32 s25, s2, 7\ns_add_u32 s70, s70, s25\ns_lshr_b32 s26, s72, 3")
    head_of()
    A("v_lshrrev_b32 v3, 4, v0\nv_and_b32 v4, 15, v0")
    A("v_lshlrev_b32 v18, 18, v3\nv_lshl_add_u32 v18, v4, 4, v18")
    A("v_lshrrev_b32 v6, 3, v4\nv_lshlrev_b32 v6, 10, v6\nv_lshl_add_u32 v19, v3, 6, v6")
    A("v_bfe_u32 v1, v0, 2, 2\nv_lshlrev_b32 v64, 18, v1\nv_lshl_add_u32 v64, v3, 6, v64")
    A("v_and_b32 v4, 3, v0\nv_lshl_add_u32 v64, v4, 4, v64")
    A("v_lshlrev_b32 v65, 9, v1\nv_lshl_add_u32 v65, v3, 7, v65\nv_lshl_add_u32 v65, v4, 5, v65")
    A(f"v_add_u32 v65, {L_QP}, v65")
    A(f"v_lshlrev_b32 v66, {RQ+5}, v1\nv_lshl_add_u32 v66, v3, 6, v66\nv_lshl_add_u32 v66, v4, 4, v66")
    A("v_and_b32 v4, 15, v0\nv_lshlrev_b32 v67, 10, v3\nv_lshl_add_u32 v67, v4, 4, v67")
    A("s_lshl_b32 s35, s3, 20\ns_lshl_b32 s24, s26, 8\ns_add_u32 s35, s35, s24")
    A("s_waitcnt lgkmcnt(0)")
    stamp(0)
    A("s_cmp_lt_u32 s74, 32")
    A(f"s_cselect_b64 s[4:5], s[{P_AWQ}:{P_AWQ+1}], s[{P_BWQ}:{P_BWQ+1}]\ns_mov_b32 s6, 0x400000\ns_mov_b32 s7, 0x20000")
    A(f"s_cselect_b64 s[20:21], s[{P_AX}:{P_AX+1}], s[{P_BX}:{P_BX+1}]\ns_mov_b32 s22, 4096\ns_mov_b32 s23, 0x20000")
    A("s_cselect_b32 s75, 0x400000, 0")
    A("s_lshl_b32 s24, s3, 8\ns_mov_b32 s32, s35")
    A("buffer_load_dwordx4 v[12:15], v67, s[20:23], s24 offen")

    def wload(j, voff, pol="nt"):
        A(f"buffer_load_dwordx4 {vr(WB+4*j)}, v{voff}, s[4:7], s32 offen {pol}")
        A("s_add_u32 s32, s32, 8192")
    LEAD = o["lead"]
    for j in range(LEAD):
        wload(j, 18)
    srd(12, P_WS, WS_SIZE)
    srd(16, P_DBG, 256)
    make_masks()
    quad_masks()
    A(f"s_lshl_b32 s24, s3, 8\ns_add_u32 s24, s24, {L_CX}\nv_add_u32 v3, s24, v67\nv_add_u32 v4, s24, v19")
    A(f"s_waitcnt vmcnt({LEAD})\nds_write_b128 v3, v[12:15]\ns_waitcnt lgkmcnt(0)")
    for p in range(2):
        for i in range(4):
            A(f"ds_read_b128 {vr(XA+16*p+4*i)}, v4 offset:{2048*p+16*i}")
    A("s_waitcnt lgkmcnt(0)")

    for i in range(4):
        A(f"v_mov_b32 v{76+i}, -1")
    A(f"s_lshl_b32 s71, s72, 2\ns_add_u32 s71, s71, s3\ns_lshl_b32 s71, s71, {RC}\ns_add_u32 s71, s71, {WS_BML:#x}")
    A(f"s_cmp_lt_u32 s74, 32\ns_cselect_b32 s71, {WS_SIZE:#x}, s71")

    def s1_after(j):
        if j + LEAD == 32:
            A("; clear this workgroup's flag line and (role C) the slots that are polled for data")
            A(f"s_lshl_b32 s73, s74, 7\ns_add_u32 s73, s73, {WS_FLAG:#x}")
            A("s_cmp_lg_u32 s3, 0\ns_cbranch_scc1 L_A_nofl")
            A("s_mov_b64 exec, 1\nbuffer_store_dwordx4 v[76:79], off, s[12:15], s73 sc1\ns_mov_b64 exec, -1")
            A("L_A_nofl:")
            for i in range(0 if 'c' in o['drop'] else 1):
                A(f"s_cmp_ge_u32 s71, {WS_CLR_END:#x}\ns_cselect_b32 s71, {WS_SIZE:#x}, s71")
                A("buffer_store_dwordx4 v[76:79], v2, s[12:15], s71 offen sc1\ns_add_u32 s71, s71, 0x20000")
            code_prefetch("L_A2", "L_last", back=False)
            A(f"s_mov_b32 s4, s{P_AWUK}\ns_mov_b32 s5, s{P_AWUK+1}\ns_mov_b32 s6, s75\ns_mov_b32 s32, s35")
        if j + LEAD < 32:
            wload(j + LEAD, 18)
        else:
            wload(j + LEAD - 32, 64)
    extra = ((0 if 'c' in o['drop'] else 1) + (1 if o["cpf"] else 0)) * o["xw"]
    gemv([XA, XB], [12, 68], wait=lambda j: A(f"s_waitcnt vmcnt({LEAD - 1 + (extra if j + LEAD > 32 else 0)})"), after=s1_after)
    q_reduce([12, 68], 65, 8, 72)
    stamp(1)
    A("s_cmp_ge_u32 s74, 32\ns_cbranch_scc1 L_C")
    A("L_A2:")
    TQ = 72
    for j in range(LEAD, 32):
        wload(j, 64)
    DQ, TT = 80, 112
    for y in range(4):
        for e in range(8):
            j = 8 * y + e
            A(f"s_waitcnt vmcnt({31-j})")
            A(f"v_mfma_f32_16x16x32_bf16 {vr(DQ+4*e)}, {vr(WB+4*j)}, v[8:11], 0")
        t = TQ if y == 0 else TT
        for n, a in enumerate(a for a in range(4) if a != y):
            for e in range(8):
                src = DQ + 4 * e + y if n == 0 else t + e
                A(f"v_add_f32_dpp v{t+e}, v{DQ+4*e+a}, v{src} quad_perm:[{a},{a},{a},{a}] row_mask:0xf bank_mask:0xf")
        if y:
            for e in range(8):
                A(f"v_cndmask_b32 v{TQ+e}, v{TQ+e}, v{TT+e}, s[{62+2*y}:{63+2*y}]")
    A(f"s_mov_b32 s71, {SCALE:#x}")
    for e in range(8):
        A(f"v_mul_f32 v{TQ+e}, s71, v{TQ+e}")
    for i in range(4):
        A(f"v_cvt_pk_bf16_f32 v{4+i}, v{TQ+2*i}, v{TQ+2*i+1}")
    A(f"s_lshl_b32 s24, s26, {RQ}\ns_lshl_b32 s25, s3, 8\ns_add_u32 s24, s24, s25\ns_add_u32 s24, s24, {WS_QA:#x}")
    if 'q' not in o['drop']:
        A(f"buffer_store_dwordx4 v[4:7], v66, s[12:15], s24 offen sc1")
    wo_stage()
    signal(C_Q, 64)
    stamp(2)
    srd(4, P_AWUV, 4 << 20)
    A("s_mov_b32 s32, s35")
    for j in range(32):
        wload(j, 18)
    wo_transpose()
    A("s_waitcnt lgkmcnt(0)")
    stamp(3)
    await_flag(C_Q)
    publish_xcc()
    if o["k_it"]:
        A("; helper duty for the K streams")
        A("s_cmp_ge_u32 s3, 2\ns_cbranch_scc1 L_G_x\ns_mov_b32 s24, s3")
        helper("G", P_K, 40, 68, o["k_it"], o["k_th"], 39, 112)
        A("L_G_x:")
    await_flag(C_P)
    stamp(4)
    PR = 72
    A(f"s_and_b32 s24, s2, 7\ns_lshl_b32 s24, s24, 7\ns_add_u32 s24, s24, {WS_XI:#x}")
    A("v_and_b32 v3, 7, v0\nv_lshlrev_b32 v3, 2, v3\nbuffer_load_dword v16, v3, s[12:15], s24 offen sc1")
    A(f"s_lshl_b32 s24, s3, {8+LNS}\ns_lshl_b32 s25, s26, 3\ns_add_u32 s25, s25, s24\ns_add_u32 s25, s25, {WS_PML:#x}")
    A(f"v_and_b32 v3, {NS-1}, v0\nv_lshlrev_b32 v3, 8, v3")
    A("buffer_load_dwordx2 v[4:5], v3, s[12:15], s25 offen sc1")
    A(f"s_lshl_b32 s24, s3, {RP+5+LNS}\ns_lshl_b32 s25, s26, {RP}\ns_add_u32 s24, s24, s25\ns_add_u32 s24, s24, {WS_PART:#x}")
    for s in range(0 if 'P' in o['drop'] else NS):
        A(f"buffer_load_dwordx4 {vr(PR+4*s)}, v2, s[12:15], s24 offen sc1 nt\ns_add_u32 s24, s24, {32 << RP}")
    A(f"s_waitcnt vmcnt({NS})")
    A("v_mov_b32 v6, v4")
    rors = ("row_ror:4", "row_ror:2", "row_ror:1")[3 - LNS:]
    for c in rors:
        A(f"v_max_f32_dpp v6, v6, v6 {c} row_mask:0xf bank_mask:0xf")
    A("v_sub_f32 v4, v4, v6\nv_exp_f32 v4, v4\nv_mul_f32 v5, v4, v5")
    for c in rors:
        A(f"v_add_f32_dpp v5, v5, v5 {c} row_mask:0xf bank_mask:0xf")
    A("v_rcp_f32 v5, v5\nv_mul_f32 v4, v4, v5")
    CA = 104
    for s in range(NS):
        A(f"v_readlane_b32 s24, v4, {s}")
        A(f"s_waitcnt vmcnt({NS-1-s})")
        for i in range(4):
            A(f"v_lshlrev_b32 v5, 16, v{PR+4*s+i}\nv_and_b32 v6, 0xffff0000, v{PR+4*s+i}")
            if s == 0:
                A(f"v_mul_f32 v{CA+2*i}, s24, v5\nv_mul_f32 v{CA+2*i+1}, s24, v6")
            else:
                A(f"v_fmac_f32 v{CA+2*i}, s24, v5\nv_fmac_f32 v{CA+2*i+1}, s24, v6")
    for i in range(4):
        A(f"v_cvt_pk_bf16_f32 v{4+i}, v{CA+2*i}, v{CA+2*i+1}")
    A(f"s_lshl_b32 s24, s3, 10\ns_add_u32 s24, s24, {L_CX}\nv_add_u32 v3, s24, v2")
    A("ds_write_b128 v3, v[4:7]")
    A(f"s_lshl_b32 s24, s3, 8\ns_add_u32 s24, s24, {L_CX}\nv_add_u32 v3, s24, v19")
    A("s_waitcnt lgkmcnt(0)\ns_barrier")
    for p in range(2):
        for i in range(4):
            A(f"ds_read_b128 {vr(XA+16*p+4*i)}, v3 offset:{2048*p+16*i}")
    A("s_waitcnt lgkmcnt(0)")
    gemv([XA, XB], [12, 68])
    A("v_lshrrev_b32 v3, 4, v0\nv_lshlrev_b32 v3, 7, v3\nv_and_b32 v4, 7, v0\nv_lshl_add_u32 v3, v4, 4, v3")
    A("v_bfe_u32 v4, v0, 3, 1\nv_lshl_add_u32 v3, v4, 9, v3")
    A(f"s_lshl_b32 s24, s3, 11\ns_add_u32 s24, s24, {L_QP}\nv_add_u32 v3, s24, v3")
    A("ds_write_b128 v3, v[12:15]\nds_write_b128 v3, v[68:71] offset:1024")
    A("s_waitcnt lgkmcnt(0)\ns_barrier")
    A(f"v_and_b32 v5, 31, v0\ns_lshl_b32 s24, s3, 9\ns_add_u32 s24, s24, {L_QP}\nv_lshl_add_u32 v3, v5, 4, s24")
    for w in range(4):
        A(f"ds_read_b128 {vr(72+4*w)}, v3 offset:{w*2048}")
    A("v_lshlrev_b32 v5, 3, v5")
    A("s_waitcnt lgkmcnt(0)")
    for w in range(1, 4):
        for r in range(4):
            A(f"v_add_f32 v{72+r}, v{72+r}, v{72+4*w+r}")
    A("v_cvt_pk_bf16_f32 v6, v72, v73\nv_cvt_pk_bf16_f32 v7, v74, v75")
    A("s_getreg_b32 s24, hwreg(HW_REG_XCC_ID, 0, 4)\nv_cmp_ne_u32 vcc, s24, v16\ns_or_b32 s75, vcc_lo, vcc_hi")
    A(f"s_lshl_b32 s24, s26, 10\ns_lshl_b32 s25, s3, 8\ns_add_u32 s24, s24, s25\ns_add_u32 s24, s24, {WS_CX:#x}")
    A("s_mov_b32 exec_hi, 0\ns_cmp_lg_u32 s75, 0")
    near_far("buffer_store_dwordx2 v[6:7], v5, s[12:15], s24 offen")
    A(f"s_lshr_b32 s24, s2, 3\ns_lshl_b32 s24, s24, {RC}\ns_and_b32 s25, s2, 7\ns_lshl_b32 s25, s25, 7\ns_add_u32 s24, s24, s25")
    A(f"s_lshl_b32 s25, s3, 3\ns_add_u32 s24, s24, s25\ns_add_u32 s24, s24, {WS_CF:#x}")
    A("s_mov_b64 exec, 1\nv_mov_b32 v4, 0\nv_mov_b32 v5, 0\ns_waitcnt vmcnt(0)\ns_cmp_lg_u32 s75, 0")
    near_far("buffer_store_dwordx2 v[4:5], off, s[12:15], s24")
    A("s_mov_b64 exec, -1\ns_barrier")
    stamp(5)

    WT, OX, OA_ = 32, 56, 128
    A("L_R:")
    srd(20, P_OUT, 8192)
    make_masks(sel=False)
    A("v_lshrrev_b32 v3, 4, v0\nv_and_b32 v4, 7, v0\nv_bfe_u32 v7, v0, 3, 1")
    A(f"v_lshl_add_u32 v5, v3, 3, v4\nv_mul_u32_u24 v6, {OROW}, v7\nv_lshl_add_u32 v5, v5, 3, v6")
    A(f"s_mul_i32 s24, s3, {4*OROW}\ns_add_u32 s24, s24, {L_QP}\nv_add_u32 v24, s24, v5")
    A(f"v_and_b32 v5, 3, v0\nv_mul_u32_u24 v25, {OROW}, v5\nv_lshl_add_u32 v25, v3, 4, v25\nv_add_u32 v25, {L_QP}, v25")
    A("v_lshlrev_b32 v26, 4, v4\nv_lshl_add_u32 v26, v7, 3, v26\nv_and_b32 v5, 15, v0\nv_lshlrev_b32 v28, 11, v3\nv_lshl_add_u32 v28, v5, 1, v28")
    A("s_and_b32 s24, s74, 7\ns_lshl_b32 s24, s24, 3\ns_bfm_b64 s[44:45], 8, s24\ns_not_b64 s[44:45], s[44:45]")
    A(f"v_min_u32 v6, 5, v4\nv_lshrrev_b32 v5, 1, v6\nv_and_b32 v8, 1, v3\nv_mad_u32_u24 v5, v8, 3, v5\nv_lshlrev_b32 v31, {RC}, v5")
    A("v_and_b32 v6, 1, v6\nv_lshl_add_u32 v6, v7, 1, v6\nv_lshl_add_u32 v31, v6, 4, v31")
    stamp(8)
    A(f"s_and_b32 s35, s72, 7\ns_lshl_b32 s35, s35, 7\ns_add_u32 s35, s35, {WS_BML:#x}")
    A(f"s_lshr_b32 s34, s72, 3\ns_mul_i32 s34, s34, 6\ns_mul_i32 s29, s3, {6 << RC}\ns_add_u32 s29, s29, s35")
    A("s_mov_b32 s43, s29")
    wave_head("s29")
    A(f"s_lshl_b32 s46, s29, 10\ns_add_u32 s46, s46, {WS_CX:#x}")
    A(f"s_mul_i32 s29, s29, 6144\ns_add_u32 s29, s29, {WS_OB:#x}\ns_add_u32 s42, s29, 4096")
    A("s_lshr_b32 s24, s74, 3\ns_lshl_b32 s24, s24, 2\ns_add_u32 s24, s24, s3")
    A(f"s_lshl_b32 s36, s24, {RC}\ns_add_u32 s36, s36, {WS_YB:#x}\ns_and_b32 s37, s74, 7\ns_lshl_b32 s37, s37, 7\ns_add_u32 s37, s37, s36")
    A(f"s_lshl_b32 s38, s3, {RC}\ns_andn2_b32 s25, s74, 7\ns_lshl_b32 s25, s25, 4\ns_add_u32 s38, s38, s25\ns_add_u32 s38, s38, {WS_EL:#x}\ns_lshl_b32 s39, s24, 5\ns_add_u32 s39, s39, 1024")

    def b_weights():
        poll_data(lambda: A("buffer_load_dwordx2 v[8:9], v31, s[12:15], s43 offen sc1"), 8, 2, o['sl_ml'])
        red8 = ("quad_perm:[1,0,3,2]", "quad_perm:[2,3,0,1]", "row_half_mirror")
        A("v_and_b32 v4, 7, v0\nv_bfe_u32 v7, v0, 3, 1\nv_mov_b32 v6, v8")
        for c in red8:
            A(f"v_max_f32_dpp v6, v6, v6 {c} row_mask:0xf bank_mask:0xf")
        A("v_sub_f32 v8, v8, v6\nv_exp_f32 v8, v8\nv_cmp_gt_u32 vcc, 6, v4\nv_cndmask_b32 v8, 0, v8, vcc\nv_mul_f32 v9, v8, v9")
        for c in red8:
            A(f"v_add_f32_dpp v9, v9, v9 {c} row_mask:0xf bank_mask:0xf")
        A("v_rcp_f32 v9, v9\nv_mul_f32 v8, v8, v9\nv_cvt_pk_bf16_f32 v8, v8, v8")
        A("v_lshrrev_b32 v3, 4, v0\nv_mul_u32_u24 v9, 6, v7\nv_sub_u32 v3, v3, v9\nv_lshlrev_b32 v9, 3, v7")
        for k in range(3):
            A(f"v_add_u32 v5, {4*k}, v3\nv_min_u32 v5, 6, v5\nv_add_u32 v5, v5, v9\nv_lshlrev_b32 v5, 2, v5")
            A(f"ds_bpermute_b32 v{10+k}, v5, v8\nds_bpermute_b32 v{13+k}, v5, v8 offset:64")
        A("s_waitcnt lgkmcnt(0)")
        for k in range(6):
            for i in range(4):
                A(f"v_and_b32 v{WT+4*k+i}, v{10+k}, v{MASK+i}")

    def p_loads():
        for k in range(6):
            A(f"buffer_load_dwordx4 {vr(OX+4*k)}, v2, s[12:15], {'s29' if k < 4 else 's42'} offen offset:{1024*(k & 3)} sc1")
    A(f"s_add_u32 s30, s36, {WS_YA - WS_YB}\ns_add_u32 s31, s37, {WS_YA - WS_YB}\ns_mov_b32 s40, {WS_SIZE:#x}\ns_sub_u32 s41, s39, 1024\ns_mov_b32 s33, 0")
    A(f"s_lshl_b32 s47, s3, {RC}\ns_add_u32 s47, s47, s35\ns_add_u32 s47, s47, {WS_CF - WS_BML}")
    A("v_and_b32 v6, 3, v0\nv_lshlrev_b32 v6, 3, v6")
    poll_data(lambda: A("buffer_load_dwordx2 v[8:9], v6, s[12:15], s47 offen sc1"), 8, 2, 8)
    A(f"buffer_load_dwordx4 {vr(OX)}, v2, s[12:15], s46 offen sc1\nbuffer_load_dwordx4 {vr(OX+12)}, v2, s[12:15], s46 offen sc1")
    A("v_lshrrev_b32 v3, 4, v0\nv_sub_u32 v3, v3, v7\nv_mov_b32 v5, 0x3f803f80")
    for p in range(2):
        A(f"v_cmp_eq_u32 vcc, {2*p}, v3\nv_cndmask_b32 v6, 0, v5, vcc")
        for i in range(4):
            A(f"v_and_b32 v{WT+12*p+i}, v6, v{MASK+i}")
        for i in range(4, 12):
            A(f"v_mov_b32 v{WT+12*p+i}, 0\nv_mov_b32 v{OX+12*p+i}, 0")
    A("s_waitcnt vmcnt(0)\ns_branch L_P_go")
    A("L_P:\ns_mov_b64 s[30:31], s[36:37]\ns_mov_b64 s[40:41], s[38:39]\ns_mov_b32 s33, 1")
    stamp(6)
    for r in range(64):
        A(f"v_accvgpr_mov_b32 a{128+r}, a{64+r}")
    b_weights()
    if o["hlp"]:
        A("; helper duty for the V streams")
        A("s_cmp_lg_u32 s3, 0\ns_cbranch_scc1 L_H_x\ns_lshr_b32 s24, s74, 5")
        helper("H", P_V, 43, 64, o["h_it"], o["h_th"], 38, 112)
        A("L_H_x:\ns_barrier")
    if 'e' in o['drop']:
        A("s_endpgm")
    if o["c_it"] >= 0:
        poll_data(lambda: A("buffer_load_dwordx2 v[8:9], v31, s[12:15], s43 offen offset:8 sc1"), 8, 2, 4)
    poll_data(p_loads, OX, 24, 0)
    stamp(9)
    A("L_P_go:")
    if o["eb"] == 2:
        A("s_barrier")
        elect("s40")
    for k in (0, 3, 1, 4, 2, 5):
        D = 12 + 4 * (k // 3)
        A(f"v_mfma_f32_16x16x32_bf16 {vr(D)}, {vr(OX+4*k)}, {vr(WT+4*k)}, {vr(D) if k % 3 else 0}")
    if o["eb"] == 1:
        A("s_barrier")
        elect("s40")
    A("v_cvt_pk_bf16_f32 v4, v12, v13\nv_cvt_pk_bf16_f32 v5, v14, v15\nds_write_b64 v24, v[4:5]")
    A(f"v_cvt_pk_bf16_f32 v6, v16, v17\nv_cvt_pk_bf16_f32 v7, v18, v19\nds_write_b64 v24, v[6:7] offset:{2*OROW}")
    A("s_waitcnt lgkmcnt(0)\ns_barrier")
    for n in range(16):
        A(f"ds_read_b128 {vr(OA_+4*n)}, v25 offset:{(n >> 2)*4*OROW + 64*(n & 3)}")
        if n == 7 and not o["eb"]:
            elect("s40")
        if n >= 8:
            A("s_waitcnt lgkmcnt(8)")
            A(f"v_mfma_f32_16x16x32_bf16 v[12:15], {vr(OA_+4*(n-8))}, {ar(128+4*(n-8))}, {'v[12:15]' if n > 8 else 0}")
    for n in range(8, 16):
        A(f"s_waitcnt lgkmcnt({15-n})")
        A(f"v_mfma_f32_16x16x32_bf16 v[12:15], {vr(OA_+4*n)}, {ar(128+4*n)}, v[12:15]")
    A("v_cvt_pk_bf16_f32 v4, v12, v13\nv_cvt_pk_bf16_f32 v5, v14, v15\ns_mov_b64 exec, 0xffff")
    A("buffer_store_dwordx2 v[4:5], v26, s[12:15], s31 offen sc1\ns_mov_b64 exec, -1")
    A("v_mov_b32 v16, v4\nv_mov_b32 v17, v5\nv_mov_b32 v18, v4\nv_mov_b32 v19, v5")
    for i in range(4):
        A(f"v_mov_b32_dpp v{16+i}, v{4 + (i & 1)} row_ror:8 row_mask:0xf bank_mask:{'0xc' if i < 2 else '0x3'}")
    A("s_waitcnt vmcnt(1)\nv_readfirstlane_b32 s24, v83\ns_cmpk_eq_u32 s24, 447\ns_cbranch_scc1 L_P_f")
    A("s_waitcnt vmcnt(0)\ns_cmp_eq_u32 s33, 0\ns_cbranch_scc1 L_P_a")
    A("v_readfirstlane_b32 s24, v83\ns_cmpk_lg_u32 s24, 447\ns_cbranch_scc1 L_P_x")
    A("L_P_f:\ns_mov_b64 exec, s[44:45]\nL_P_g:")
    poll_data(lambda: A("buffer_load_dwordx4 v[16:19], v2, s[12:15], s30 offen sc1"), 16, 4, 0)
    for i in range(4):
        A(f"v_lshlrev_b32 v{56+2*i}, 16, v{16+i}\nv_and_b32 v{57+2*i}, 0xffff0000, v{16+i}")
    for a in (56, 57, 60, 61):
        A(f"v_permlane32_swap_b32 v{a}, v{a+2}")
    for a in (56, 57, 60, 61):
        A(f"v_add_f32 v{a}, v{a}, v{a+2}")
    A("v_permlane16_swap_b32 v56, v57\nv_permlane16_swap_b32 v60, v61\nv_add_f32 v56, v56, v57\nv_add_f32 v60, v60, v61")
    A("v_add_f32_dpp v4, v56, v56 row_ror:8 row_mask:0xf bank_mask:0x3\nv_add_f32_dpp v4, v60, v60 row_ror:8 row_mask:0xf bank_mask:0xc")
    A("v_cvt_pk_bf16_f32 v4, v4, v4")
    A("buffer_store_short v4, v28, s[20:23], s41 offen")
    A("s_cmp_lg_u32 s33, 0\ns_cbranch_scc1 L_P_x")
    A(f"s_add_u32 s30, s30, {1 << RC}\ns_add_u32 s41, s41, 32\ns_and_b32 s24, s41, 96\ns_cbranch_scc1 L_P_g")
    A("s_branch L_P")
    A("L_P_a:\ns_barrier\ns_cmp_lg_u32 s3, 1\ns_cbranch_scc1 L_P_w")
    A(f"s_add_u32 s24, s38, 4\ns_sub_u32 s30, s30, {1 << RC}\ns_sub_u32 s41, s41, 32")
    elect("s24")
    A("s_waitcnt vmcnt(0)\nv_readfirstlane_b32 s24, v83\ns_cmpk_eq_u32 s24, 447\ns_cbranch_scc1 L_P_g")
    A(f"L_P_w:\ns_mov_b32 s30, {WS_SIZE:#x}\ns_mov_b32 s41, {WS_SIZE + 96:#x}\ns_branch L_P_g")
    A("L_P_x:")
    stamp(11)
    stamps_out()
    A("L_end:")
    A("s_endpgm")

    ST, SS, PP, TR, ACC = 32, 64, 72, 192, 128
    A("L_C:")
    A("s_cmp_lg_u32 s3, 0\ns_cbranch_scc1 L_C_q")
    A("v_lshrrev_b32 v3, 4, v0\nv_and_b32 v4, 3, v0\nv_lshlrev_b32 v5, 6, v3\nv_lshl_add_u32 v5, v4, 4, v5")
    A("v_bfe_u32 v4, v0, 2, 2\nv_lshl_add_u32 v5, v4, 8, v5")
    A(f"s_lshl_b32 s24, s26, {RB}\ns_add_u32 s24, s24, {WS_QB:#x}")
    A(f"buffer_store_dwordx4 v[8:11], v5, s[12:15], s24 offen sc1")
    A("L_C_q:")
    signal(C_Q, 64, also=C_QB)
    stamp(5)
    wo_stage()
    A("s_waitcnt vmcnt(0)\ns_barrier")
    wo_transpose()
    LG = int(math.log2(G))
    RS = 1024 * NS
    NR = 16
    A(f"s_and_b32 s70, s72, {NS-1}\ns_lshr_b32 s71, s72, {3+LG}")
    A(f"s_bfe_u32 s24, s72, {LNS | ((3 - LNS) << 16):#x}\ns_lshl_b32 s24, s24, {LNS-1}\ns_add_u32 s71, s71, s24")
    A(f"s_bfe_u32 s75, s72, {3 | (LG << 16):#x}")
    A("s_lshl_b32 s30, s71, 22")
    srd(4, P_CKV, 1 << 22, add="s30")
    A(f"s_mul_i32 s32, s3, {NR*RS}\ns_lshl_b32 s24, s70, 10\ns_add_u32 s32, s32, s24\ns_mul_i32 s34, s3, {NR*CROW}")

    def c_row(r):
        A("buffer_load_dwordx4 v2, s[4:7], s32 offen lds")
        A(f"s_add_u32 m0, m0, {CROW}\ns_add_u32 s32, s32, {RS if r < NR - 1 else (3*NR + 1)*RS}")

    A("s_waitcnt lgkmcnt(0)\ns_barrier")
    A("s_mov_b32 m0, s34")
    for r in range(NR):
        c_row(r)
    A("s_lshr_b32 s28, s3, 1\ns_and_b32 s29, s3, 1")
    A(f"v_and_b32 v3, 15, v0\nv_lshrrev_b32 v4, 4, v0\nv_mul_u32_u24 v19, {CROW}, v3\nv_lshl_add_u32 v19, v4, 4, v19")
    A(f"v_lshrrev_b32 v5, 2, v0\nv_mul_u32_u24 v20, {CROW}, v5\nv_and_b32 v5, 3, v0\nv_lshl_add_u32 v20, v5, 3, v20")
    A("s_lshl_b32 s24, s29, 9\nv_add_u32 v20, s24, v20")
    A(f"v_and_b32 v3, {HN-1}, v0\nv_mul_u32_u24 v18, {CROW}, v3\nv_lshl_add_u32 v18, v4, 4, v18\nv_add_u32 v18, {3*CTILE}, v18")
    A(f"s_mul_i32 s24, s28, {CTILE}\nv_add_u32 v19, s24, v19\nv_add_u32 v20, s24, v20")
    for r in range(64):
        A(f"v_mov_b32 v{ACC+r}, 0")
    A("v_mov_b32 v22, 0xff800000\nv_mov_b32 v23, 0")
    await_flag(C_Q)
    stamp(2)
    NQ = HN // 4
    A(f"s_lshl_b32 s24, s71, {RQ+5}\ns_mul_i32 s25, s3, {NQ << RQ}\ns_add_u32 s24, s24, s25\ns_add_u32 s24, s24, {WS_QA:#x}")
    A(f"s_mul_i32 s25, s75, {HN << RQ}\ns_add_u32 s24, s24, s25")
    for r in range(0 if 'Q' in o['drop'] else NQ):
        A(f"buffer_load_dwordx4 {vr(ST+4*r)}, v2, s[12:15], s24 offen sc1\ns_add_u32 s24, s24, {1 << RQ}")
    A(f"s_mul_i32 s24, s3, {NQ*CROW}\ns_add_u32 s24, s24, {3*CTILE}\nv_add_u32 v3, s24, v2")
    for r in range(NQ):
        A(f"s_waitcnt vmcnt({NQ-1-r})\nds_write_b128 v3, {vr(ST+4*r)} offset:{r*CROW}")
    A("s_waitcnt lgkmcnt(0)\ns_barrier")
    for k in range(16):
        A(f"ds_read_b128 {ar(4*k)}, v18 offset:{64*k}")
    publish_xcc()
    STEP = 2 * CTILE
    A(f"s_mov_b32 s27, 0\ns_mov_b32 s33, {4*CTILE - STEP}\ns_mov_b32 s35, 0")
    A("s_waitcnt lgkmcnt(0)")
    A("L_CT:")
    A("s_waitcnt vmcnt(0)\ns_barrier")
    A("v_add_u32 v24, s35, v19\nv_add_u32 v25, s35, v20")

    def qk_read(n):
        A(f"ds_read_b128 {vr(ST+4*(n & 7))}, v24 offset:{64*(n >> 1) + 16*CROW*(n & 1)}")
    for n in range(7):
        qk_read(n)
    A("s_add_u32 m0, s33, s34")
    A(f"s_mov_b32 s33, s35\ns_add_u32 s35, s35, {STEP}\ns_cmp_eq_u32 s35, {4*CTILE}\ns_cselect_b32 s35, 0, s35")
    trs = [f"ds_read_b64_tr_b16 {vr(TR+4*ct+2*z, 2)}, v25 offset:{16*z*CROW + 32*ct}" for ct in range(16) for z in range(2)]
    rows = list(range(NR))
    for n in range(32):
        D = SS + 4 * (n & 1)
        A("s_waitcnt lgkmcnt(6)")
        A(f"v_mfma_f32_16x16x32_bf16 {vr(D)}, {vr(ST+4*(n & 7))}, {ar(4*(n >> 1))}, {'0' if n < 2 else vr(D)}")
        if n + 7 < 32:
            qk_read(n + 7)
        else:
            A(trs.pop(0))
        if o["cq"] and n % (32 // o["cq"]) == 0:
            c_row(rows.pop(0))
    for _ in range(7):
        A(trs.pop(0))
    sm = [f"v_max3_f32 v3, v{SS}, v{SS+1}, v22"]
    sm += [f"v_max3_f32 v3, v3, v{SS+r}, v{SS+r+1}" for r in range(2, 8, 2)]
    sm += ["v_mov_b32 v4, v3", "v_permlane32_swap_b32 v3, v4", "v_max_f32 v3, v3, v4"]
    sm += ["v_mov_b32 v4, v3", "v_permlane16_swap_b32 v3, v4", "v_max_f32 v3, v3, v4"]
    sm += ["v_sub_f32 v4, v22, v3", "v_exp_f32 v4, v4", "v_mov_b32 v22, v3"]
    sm += [f"v_sub_f32 v{SS+r}, v{SS+r}, v3" for r in range(8)]
    sm += [f"v_exp_f32 v{SS+r}, v{SS+r}" for r in range(8)]
    sm += [f"v_cvt_pk_bf16_f32 v{PP+i}, v{SS+2*i}, v{SS+2*i+1}" for i in range(4)]
    for n, ins in enumerate(sm):
        A(ins)
        if trs and n >= 4:
            A(trs.pop(0))
        if rows and n % 2 == 0:
            c_row(rows.pop(0))
    assert not trs and not rows
    ls = [f"v_fma_f32 v23, v23, v4, v{SS}"] + [f"v_add_f32 v23, v23, v{SS+r}" for r in range(1, 8)]

    def rescale(ct):
        if o["pk"]:
            for r in range(0, 4, 2):
                A(f"v_pk_mul_f32 {vr(ACC+4*ct+r,2)}, {vr(ACC+4*ct+r,2)}, v[4:5] op_sel_hi:[1,0]")
        else:
            for r in range(4):
                A(f"v_mul_f32 v{ACC+4*ct+r}, v{ACC+4*ct+r}, v4")
    rescale(0)
    rescale(1)
    A("s_waitcnt lgkmcnt(0)")
    for ct in range(16):
        A(f"v_mfma_f32_16x16x32_bf16 {vr(ACC+4*ct)}, {vr(TR+4*ct)}, {vr(PP)}, {vr(ACC+4*ct)}")
        if ct + 2 < 16:
            rescale(ct + 2)
    for ins in ls:
        A(ins)
    A(f"s_add_u32 s27, s27, 1\ns_cmp_lt_u32 s27, {8*G}\ns_cbranch_scc1 L_CT")
    stamp(3)
    A("s_waitcnt vmcnt(0)\ns_barrier")
    A("v_mov_b32 v4, v23\nv_permlane32_swap_b32 v23, v4\nv_add_f32 v23, v23, v4")
    A("v_mov_b32 v4, v23\nv_permlane16_swap_b32 v23, v4\nv_add_f32 v23, v23, v4")
    XM, XA_, XT = 0, 4096, 40960
    A(f"s_lshl_b32 s24, s3, 9\nv_lshl_add_u32 v3, v0, 3, s24\nds_write_b64 v3, v[22:23] offset:{XM}")
    A("v_xor_b32 v3, 0x400, v3\ns_waitcnt lgkmcnt(0)\ns_barrier")
    A(f"ds_read_b64 v[6:7], v3 offset:{XM}\ns_waitcnt lgkmcnt(0)")
    A("v_max_f32 v3, v22, v6\nv_sub_f32 v4, v22, v3\nv_sub_f32 v6, v6, v3\nv_exp_f32 v4, v4\nv_exp_f32 v6, v6")
    A("v_mov_b32 v22, v3\nv_mul_f32 v23, v23, v4\nv_fmac_f32 v23, v7, v6")
    A(f"v_and_b32 v3, 15, v0\nv_lshlrev_b32 v5, 3, v3")
    A(f"s_lshl_b32 s24, s71, {LNS}\ns_add_u32 s31, s24, s70\ns_lshl_b32 s24, s31, 8\ns_mul_i32 s25, s75, {HN*8}\ns_add_u32 s24, s24, s25\ns_add_u32 s24, s24, {WS_PML:#x}")
    A("s_cmp_lg_u32 s3, 0\ns_cbranch_scc1 L_C_ml")
    if 'm' not in o['drop']:
        A(f"s_mov_b64 exec, {(1 << HN) - 1:#x}\nbuffer_store_dwordx2 v[22:23], v5, s[12:15], s24 offen sc1\ns_mov_b64 exec, -1")
    A("L_C_ml:")
    for r in range(0, 64, 2):
        A(f"v_pk_mul_f32 {vr(ACC+r,2)}, {vr(ACC+r,2)}, v[4:5] op_sel_hi:[1,0]")
    A(f"s_lshl_b32 s24, s3, 13\ns_add_u32 s24, s24, {XA_}\nv_add_u32 v6, s24, v2")
    A(f"s_xor_b32 s24, s3, 2\ns_lshl_b32 s24, s24, 13\ns_add_u32 s24, s24, {XA_}\nv_add_u32 v7, s24, v2")
    A("s_cmp_lg_u32 s28, 0\ns_cbranch_scc1 L_C_x1")
    for k in range(8):
        A(f"ds_write_b128 v6, {vr(ACC+32+4*k)} offset:{1024*k}")
    A("s_branch L_C_x2\nL_C_x1:")
    for k in range(8):
        A(f"ds_write_b128 v6, {vr(ACC+4*k)} offset:{1024*k}")
    A("s_waitcnt lgkmcnt(0)")
    for r in range(32):
        A(f"v_mov_b32 v{ACC+r}, v{ACC+32+r}")
    A("L_C_x2:\ns_waitcnt lgkmcnt(0)\ns_barrier")
    for k in range(8):
        A(f"ds_read_b128 {vr(TR+4*k)}, v7 offset:{1024*k}")
    TROW = 272
    A(f"v_lshrrev_b32 v4, 4, v0\nv_mul_u32_u24 v3, {TROW}, v3\nv_lshl_add_u32 v3, v4, 3, v3")
    A(f"s_mul_i32 s24, s3, {16*TROW}\ns_add_u32 s24, s24, {XT}\nv_add_u32 v3, s24, v3")
    for k in range(8):
        r = ACC + 4 * k
        d = ST + 2 * k
        A(f"s_waitcnt lgkmcnt(7)")
        for e in range(4):
            A(f"v_add_f32 v{r+e}, v{r+e}, v{TR+4*k+e}")
        A(f"v_cvt_pk_bf16_f32 v{d}, v{r}, v{r+1}\nv_cvt_pk_bf16_f32 v{d+1}, v{r+2}, v{r+3}")
        A(f"ds_write_b64 v3, {vr(d,2)} offset:{32*k}")
    A(f"v_and_b32 v5, 15, v0\nv_mul_u32_u24 v3, {TROW}, v4\nv_lshl_add_u32 v3, v5, 4, v3\nv_add_u32 v3, s24, v3")
    HS, US = RP, RP + 5
    A(f"v_lshlrev_b32 v4, {HS}, v4\nv_lshl_add_u32 v4, v5, 4, v4")
    A("s_waitcnt lgkmcnt(0)")
    for k in range(NQ):
        A(f"ds_read_b128 {vr(SS+4*k)}, v3 offset:{4*k*TROW}")
    A(f"s_lshl_b32 s24, s31, {US}\ns_lshl_b32 s25, s29, 9\ns_add_u32 s24, s24, s25\ns_lshl_b32 s25, s28, 8\ns_add_u32 s24, s24, s25")
    A(f"s_mul_i32 s25, s75, {HN << HS}\ns_add_u32 s24, s24, s25\ns_add_u32 s24, s24, {WS_PART:#x}")
    for k in range(NQ):
        A(f"s_waitcnt lgkmcnt({NQ-1-k})")
        if 'p' not in o['drop']:
            A(f"buffer_store_dwordx4 {vr(SS+4*k)}, v4, s[12:15], s24 offen sc1 nt")
        A(f"s_add_u32 s24, s24, {4 << HS}")
    signal(C_P, 32, only_w=True)
    stamp(4)
    A("s_branch L_R")
    A("L_last:")
    A("s_endpgm")

    ref = open(os.path.join(os.path.dirname(os.path.abspath(__file__)), "..", NAME + ".s.ref")).read().splitlines()
    head = [l for l in ref if l.startswith(";") and "@launch" not in l]
    head.append(f"; @launch grid=(256,1,1) block=(256,1,1) lds={LDS_BYTES}")
    pre = f'.amdgcn_target "amdgcn-amd-amdhsa--gfx950"\n.text\n.globl {NAME}_kernel\n.p2align 8\n.type {NAME}_kernel,@function\n'
    post = f""".section .rodata,"a"
.p2align 6
.amdhsa_kernel {NAME}_kernel
  .amdhsa_next_free_vgpr {448 + 64 * max(0, NB - 2)}
  .amdhsa_next_free_sgpr 102
  .amdhsa_accum_offset 256
  .amdhsa_group_segment_fixed_size 0
  .amdhsa_kernarg_size 112
  .amdhsa_user_sgpr_count 2
  .amdhsa_user_sgpr_kernarg_segment_ptr 1
  .amdhsa_system_sgpr_workgroup_id_x 1
  .amdhsa_float_denorm_mode_32 3
.end_amdhsa_kernel
"""
    return "\n".join(head) + "\n" + pre + A.text() + post


if __name__ == "__main__":
    kw = {}
    out = None
    for a in sys.argv[1:]:
        if "=" in a:
            k, v = a.split("=", 1)
            kw[k] = int(v) if v.lstrip("-").isdigit() else v
        else:
            out = a
    s = gen(**kw)
    if out:
        open(out, "w").write(s)
    else:
        sys.stdout.write(s)
```
